```python
import torch

def _softmax(x, axis=-1):
    return torch.softmax(x, dim=axis)
def _gelu(x):
    return torch.nn.functional.gelu(x, approximate="tanh")
def _silu(x):
    return torch.nn.functional.silu(x)
def _sigmoid(x):
    return torch.sigmoid(x)
def _layernorm(x, axis=-1, eps=1e-5):
    m = x.mean(dim=axis, keepdim=True)
    v = x.var(dim=axis, keepdim=True, unbiased=False)
    return (x - m) / torch.sqrt(v + eps)
def _scatter_add(tgt, idx, src, axis=0):
    return tgt.clone().index_add_(axis, idx, src)
def _segment_sum(src, seg, n):
    out = torch.zeros((n,) + src.shape[1:], dtype=src.dtype)
    return out.index_add_(0, seg, src)
def _pad(x, pw):
    flat = tuple(v for pair in reversed(pw) for v in pair)
    return torch.nn.functional.pad(x, flat)

kernel_name = 'parallel_sum__ssm_conv_h3__dense_activation_gelu__prompt'

def setup_inputs():

    _w = (lambda a: (lambda t: t.to(torch.bfloat16) if t.is_floating_point() else t)(torch.as_tensor(a)))
    def _A_setup():
        B, S, D = 1, 2048, 640
        ks = 4
        return {
            "q": _w((lambda *s: torch.randn(*s, dtype=torch.bfloat16) * 0.05)(B, S, D)),
            "k": _w((lambda *s: torch.randn(*s, dtype=torch.bfloat16) * 0.2)(B, S, D)),
            "v": _w((lambda *s: torch.randn(*s, dtype=torch.bfloat16) * 0.2)(B, S, D)),
            "shift_k": _w((lambda *s: torch.randn(*s, dtype=torch.bfloat16) * 0.2)(D, ks) * 0.5),
            "ssm_k": _w((lambda *s: torch.randn(*s, dtype=torch.bfloat16) * 0.8)(D, S) * (1.0 / S ** 0.5)),
            "ssm_D": _w((lambda *s: torch.randn(*s, dtype=torch.bfloat16) * 0.2)(D)),
        }
    _A_in = _A_setup()

    def _B_setup():
        B, S, D, F = 1, 2048, 640, 1728
        return {
            "x": _w((lambda *s: torch.randn(*s, dtype=torch.bfloat16) * 0.05)(B, S, D)),
            "w1": _w((lambda *s: torch.randn(*s, dtype=torch.bfloat16) * 0.4)(D, F) * (D ** -0.5)),
            "b1": _w((lambda *s: torch.randn(*s, dtype=torch.bfloat16) * 12.8)(F) * 0.01),
            "w2": _w((lambda *s: torch.randn(*s, dtype=torch.bfloat16) * 0.2)(F, D) * (F ** -0.5)),
            "b2": _w((lambda *s: torch.randn(*s, dtype=torch.bfloat16) * 1.6)(D) * 0.01),
        }
    _B_in = _B_setup()

    return {
        "A_q": _A_in["q"],
        "A_k": _A_in["k"],
        "A_v": _A_in["v"],
        "A_shift_k": _A_in["shift_k"],
        "A_ssm_k": _A_in["ssm_k"],
        "A_ssm_D": _A_in["ssm_D"],
        "B_x": _B_in["x"],
        "B_w1": _B_in["w1"],
        "B_b1": _B_in["b1"],
        "B_w2": _B_in["w2"],
        "B_b2": _B_in["b2"],
    }

def reference(A_q, A_k, A_v, A_shift_k, A_ssm_k, A_ssm_D, B_x, B_w1, B_b1, B_w2, B_b2):
    def _A_ref(q, k, v, shift_k, ssm_k, ssm_D):
        B, S, D = q.shape
        ks = shift_k.shape[-1]
        k_pad = _pad(k, ((0, 0), (ks - 1, 0), (0, 0)))
        k_shift = torch.zeros_like(k)
        for t in range(ks):
            k_shift = k_shift + k_pad[:, t:t + S, :] * shift_k[:, ks - 1 - t][None, None, :]
        kv = k_shift * v
        L = 2 * S
        kv_pad = _pad(kv, ((0, 0), (0, S), (0, 0)))
        kf_pad = _pad(ssm_k, ((0, 0), (0, S)))
        kv_f = (lambda x, axes=(-2,-1): torch.fft.rfft2(x.float(), dim=axes))(kv_pad[:, None, :, :], axes=(1, 2))
        kf_f = (lambda x, axes=(-2,-1): torch.fft.rfft2(x.float(), dim=axes))(kf_pad[:, None, :], axes=(1, 2))
        kf_f = (lambda x, *d: x.permute(*d))(kf_f, 1, 2, 0)
        y_f = kv_f * kf_f[None, :, :, :]
        y = (lambda x, s, axes=(-2,-1): torch.fft.irfft2(x, s=s, dim=axes).to(torch.bfloat16))(y_f, (1, L), axes=(1, 2))[:, 0, :S, :]
        y = y + kv * ssm_D[None, None, :]
        return q * y

    def _B_ref(x, w1, b1, w2, b2):
        h = torch.einsum("bsd,df->bsf", x, w1) + b1
        h = _gelu(h)
        return torch.einsum("bsf,fd->bsd", h, w2) + b2

    x = A_q
    xn = _layernorm(x, axis=-1)
    return x + _A_ref(xn, A_k, A_v, A_shift_k, A_ssm_k, A_ssm_D) + _B_ref(xn, B_w1, B_b1, B_w2, B_b2)
```

```python
import re

TRANS = ("v_exp_f32", "v_log_f32", "v_rcp_f32", "v_rsq_f32", "v_sqrt_f32", "v_sin_f32", "v_cos_f32", "v_rcp_iflag_f32")

def _regs(tok):
    tok = tok.strip()
    tok = tok.lstrip("-")
    m = re.fullmatch(r"abs\((.*)\)", tok)
    if m: tok = m.group(1)
    m = re.fullmatch(r"\|(.*)\|", tok)
    if m: tok = m.group(1)
    m = re.fullmatch(r"([vas])(\d+)", tok)
    if m: return [(m.group(1), int(m.group(2)))]
    m = re.fullmatch(r"([vas])\[(\d+):(\d+)\]", tok)
    if m: return [(m.group(1), i) for i in range(int(m.group(2)), int(m.group(3)) + 1)]
    if tok == "vcc": return [("s", 106), ("s", 107)]
    if tok == "m0": return [("s", 124)]
    if tok == "exec": return [("s", 126), ("s", 127)]
    return []

class I:
    def __init__(self, text):
        self.text = text
        t = text.split(";")[0].strip()
        self.op = None; self.cls = "none"; self.r = set(); self.w = set(); self.srcc = set()
        self.dpp = False
        if not t or t.endswith(":") or t.startswith("."):
            return
        parts = t.split(None, 1)
        op = self.op = parts[0]
        rest = parts[1] if len(parts) > 1 else ""
        toks = [x.strip() for x in rest.split(",")] if rest else []
        mods = ""
        if toks:
            last = toks[-1].split(None, 1)
            toks[-1] = last[0]
            mods = last[1] if len(last) > 1 else ""
        R = lambda i: _regs(toks[i]) if i < len(toks) else []
        allr = lambda a: [x for i in range(a, len(toks)) for x in _regs(toks[i])]
        if op.startswith("v_mfma"):
            self.cls = "mfma"; self.w = set(R(0)); self.r = set(allr(1)); self.srcc = set(R(3))
            self.passes = 8 if "32x32" in op else 4
        elif op.startswith("v_"):
            self.cls = "trans" if op.replace("_e32", "").replace("_e64", "") in TRANS else "valu"
            self.dpp = "row_" in mods or "quad_perm" in mods or "wave_" in mods or op.endswith("_dpp")
            if op.startswith("v_cmp"):
                self.w = set(R(0)); self.r = set(allr(1))
            elif op.startswith(("v_add_co", "v_sub_co", "v_addc_co", "v_subb_co")):
                self.w = set(R(0) + R(1)); self.r = set(allr(2))
            elif op.startswith("v_permlane") and "swap" in op:
                self.w = set(R(0) + R(1)); self.r = set(R(0) + R(1))
            else:
                self.w = set(R(0)); self.r = set(allr(1))
                if op.startswith(("v_fmac", "v_pk_fmac", "v_dot2c")) or self.dpp: self.r |= self.w
        elif op.startswith("ds_"):
            self.cls = "ds"
            if op.startswith(("ds_read", "ds_add_rtn", "ds_bpermute", "ds_permute", "ds_swizzle")):
                self.w = set(R(0)); self.r = set(allr(1))
            else:
                self.r = set(allr(0))
        elif op.startswith(("buffer_", "global_")):
            self.cls = "vmem"
            self.lds = " lds" in (" " + mods)
            if "load" in op and not self.lds:
                self.w = set(R(0)); self.r = set(allr(1))
            else:
                self.r = set(allr(0))
                if "atomic" in op and "sc0" in mods: self.w = set(R(0))
            if self.lds: self.r |= {("s", 124)}
            self.widestore = ("store" in op) and ("x4" in op or "x3" in op)
            self.data = set(R(0)) if op.startswith("buffer_store") else set()
        elif op.startswith("s_"):
            self.cls = "salu"
            if op == "s_nop":
                self.cls = "nop"; self.n = int(toks[0], 0) + 1
            elif op.startswith(("s_cmp", "s_cbranch", "s_branch", "s_waitcnt", "s_barrier", "s_endpgm", "s_sleep", "s_setprio")):
                self.r = set(allr(0))
            else:
                self.w = set(R(0)); self.r = set(allr(1))
                if "saveexec" in op: self.w |= {("s", 126), ("s", 127)}

def need(p, c):
    n = 0
    V = lambda s: {x for x in s if x[0] in "va"}
    S = lambda s: {x for x in s if x[0] == "s"}
    pv = p.cls in ("valu", "trans")
    cv = c.cls in ("valu", "trans")
    if pv:
        if c.cls == "mfma" and V(p.w) & c.r: n = max(n, 2)
        if cv and c.dpp and V(p.w) & c.r: n = max(n, 2)
        if c.op and c.op.startswith("v_permlane") and V(p.w) & c.r: n = max(n, 2)
        if c.op in ("v_readfirstlane_b32", "v_readlane_b32") and V(p.w) & c.r: n = max(n, 1)
        if S(p.w):
            if c.cls == "vmem" and S(p.w) & c.r: n = max(n, 5)
            if cv and S(p.w) & c.r: n = max(n, 2)
            if c.cls == "salu" and S(p.w) & c.r: n = max(n, 1)
        if p.cls == "trans" and c.cls in ("valu", "mfma") and V(p.w) & c.r: n = max(n, 1)
    if p.cls == "mfma":
        big = 12 if p.passes == 8 else 8
        if cv and (p.w & (c.r | c.w)): n = max(n, big)
        if c.cls in ("ds", "vmem") and (p.w & (c.r | c.w)): n = max(n, big)
        if c.cls == "mfma":
            if p.w & (c.r - c.srcc): n = max(n, big)
            if (p.w & c.srcc) and p.w != c.srcc: n = max(n, 10 if p.passes == 8 else 6)
            if (p.w & c.w) and not (p.w & c.srcc): n = max(n, big)
        if cv and (p.srcc & c.w): n = max(n, 7 if p.passes == 8 else 3)
    if p.cls == "salu" and ("s", 124) in p.w and c.cls == "vmem" and getattr(c, "lds", False): n = max(n, 1)
    if p.cls == "vmem" and getattr(p, "widestore", False) and (p.data & c.w):
        n = max(n, 2 if cv else 1)
    return n

def pad(lines):
    out = []; hist = []
    nops = 0
    for ln in lines:
        c = I(ln)
        if c.cls == "none":
            out.append(ln); continue
        req = 0; dist = 0
        for p in reversed(hist):
            if dist >= 12: break
            k = need(p, c) - dist
            if k > req: req = k
            dist += p.n if p.cls == "nop" else 1
        if req > 0:
            t = f"    s_nop {req-1}"
            out.append(t); hist.append(I(t)); nops += req
        out.append(ln); hist.append(c)
        if len(hist) > 16: hist.pop(0)
    return out, nops

class A:
    def __init__(self):
        self.l = []
    def __call__(self, s):
        for x in s.strip("\n").split("\n"):
            self.l.append(x)
    def text(self, dopad=False):
        l = self.l
        if dopad:
            l, n = pad(l)
            self.nops = n
        return "\n".join(l) + "\n"

def kd(name, vgpr, sgpr=102, accum=None, wgy=False):
    if accum is None:
        accum = min(256, (vgpr + 3) // 4 * 4)
    s = f""".amdhsa_kernel {name}
  .amdhsa_next_free_vgpr {vgpr}
  .amdhsa_next_free_sgpr {sgpr}
  .amdhsa_accum_offset {accum}
  .amdhsa_group_segment_fixed_size 0
  .amdhsa_kernarg_size 112
  .amdhsa_user_sgpr_count 2
  .amdhsa_user_sgpr_kernarg_segment_ptr 1
  .amdhsa_system_sgpr_workgroup_id_x 1
"""
    if wgy:
        s += "  .amdhsa_system_sgpr_workgroup_id_y 1\n"
    s += "  .amdhsa_float_denorm_mode_32 3\n.end_amdhsa_kernel\n"
    return s

def head(name):
    return f""".globl {name}
.p2align 8
.type {name},@function
{name}:
"""
```

```python
import sys
from asm import *

NAME = "parallel_sum__ssm_conv_h3__dense_activation_gelu__prompt_kernel"
H_OFF, W2T_OFF, KVT_OFF, Z_OFF, ST_OFF, TS_OFF, WS_REC = 0x0, 0x700000, 0xA00000, 0xD00000, 0x1000000, 0x1010000, 0x1100000
OOB = 0x40000000
LDS_BYTES = 163840
SPARE = 143360
CONV_STRIDE = 21504
sQ, sK, sV, sSHK, sSSMK, sSSMD, sW1, sB1, sW2, sB2, sOUT, sDBG, sWS = [4 + 4*i for i in range(13)]
srd = lambda b: f"s[{b}:{b+3}]"
(sW, sX, sI, sRB, sCJ, sP0, sSG, sMB, sNI, sC, sT0, sT1, sT2, sT3, sCH, sXO, sWO, sM0, sROT, sCNT, sT4, sT5) = range(56, 78)
sTS = 80

def vr(b, n): return f"v[{b}:{b+n-1}]" if n > 1 else f"v{b}"
def ar(b, n): return f"a[{b}:{b+n-1}]"

def gen(stamps=False, opt=None):
    opt = opt or {}
    a = A()
    nst = [0]
    def stamp():
        if stamps:
            a(f"s_memrealtime s[{sTS+2*nst[0]}:{sTS+2*nst[0]+1}]"); nst[0] += 1
    a(f"; @launch kernel={NAME} grid=(256,1,1) block=(256,1,1) lds={LDS_BYTES}")
    a('.amdgcn_target "amdgcn-amd-amdhsa--gfx950"\n.text')
    a(head(NAME))
    a(f"""
    s_cmp_ge_u32 s2, 256
    s_cbranch_scc1 L_end
    s_load_dwordx16 s[72:87], s[0:1], 0
    s_load_dwordx8 s[88:95], s[0:1], 64
    s_load_dwordx4 s[96:99], s[0:1], 96
    v_lshrrev_b32 v1, 6, v0
    v_and_b32 v0, 63, v0
    v_readfirstlane_b32 s{sW}, v1
    v_and_b32 v1, 15, v0
    v_lshrrev_b32 v2, 4, v0
    v_lshlrev_b32 v3, 4, v0
    s_and_b32 s{sX}, s2, 7
    s_lshr_b32 s{sI}, s2, 3
    """)
    sizes = {sQ: 2621440, sK: 2621440, sV: 2621440, sSHK: 5120, sSSMK: 2621440, sSSMD: 1280, sW1: 2211840, sB1: 3456,
             sW2: 2211840, sB2: 1280, sOUT: 2621440, sDBG: 256, sWS: WS_REC}
    for b, n in sizes.items():
        a(f"s_mov_b32 s{b+2}, {n}\ns_mov_b32 s{b+3}, 0x20000")
    a("s_waitcnt lgkmcnt(0)")
    src = {sQ: 72, sK: 74, sV: 76, sSHK: 78, sSSMK: 80, sSSMD: 82, sW1: 86, sB1: 88, sW2: 90, sB2: 92, sOUT: 94, sDBG: 96, sWS: 98}
    for b, s in src.items():
        a(f"s_mov_b64 s[{b}:{b+1}], s[{s}:{s+1}]")
    stamp()
    a(f"""
    s_lshr_b32 s{sT0}, s{sX}, 1
    s_lshl_b32 s{sRB}, s{sT0}, 2
    s_lshr_b32 s{sT1}, s{sI}, 3
    s_add_u32 s{sRB}, s{sRB}, s{sT1}
    s_and_b32 s{sT1}, s{sX}, 1
    s_lshl_b32 s{sCJ}, s{sT1}, 3
    s_and_b32 s{sT2}, s{sI}, 7
    s_add_u32 s{sCJ}, s{sCJ}, s{sT2}
    ; G2 tile
    s_lshl_b32 s{sMB}, s{sT0}, 3
    s_lshr_b32 s{sT2}, s{sI}, 2
    s_add_u32 s{sMB}, s{sMB}, s{sT2}
    s_lshl_b32 s{sNI}, s{sT1}, 2
    s_and_b32 s{sT2}, s{sI}, 3
    s_add_u32 s{sNI}, s{sNI}, s{sT2}
    ; P0 / SG
    s_lshr_b32 s{sT0}, s{sCJ}, 1
    s_mul_i32 s{sT0}, s{sT0}, 14
    s_and_b32 s{sT1}, s{sCJ}, 1
    s_add_u32 s{sSG}, s{sT0}, s{sT1}
    s_add_u32 s{sSG}, s{sSG}, 6
    s_lshl_b32 s{sT1}, s{sT1}, 3
    s_add_u32 s{sP0}, s{sT0}, s{sT1}
    s_mul_i32 s{sT0}, s{sCJ}, 6
    s_add_u32 s{sT0}, s{sT0}, 12
    s_cmp_lt_u32 s{sCJ}, 12
    s_cselect_b32 s{sP0}, s{sP0}, s{sT0}
    s_cselect_b32 s{sSG}, s{sSG}, 0x1000000
    s_mul_i32 s{sT0}, s{sI}, 5
    s_lshr_b32 s{sT0}, s{sT0}, 1
    s_mul_i32 s{sCH}, s{sX}, 80
    s_add_u32 s{sCH}, s{sCH}, s{sT0}
    s_add_u32 s{sCH}, s{sCH}, s{sW}
    s_and_b32 s{sCNT}, s{sI}, 1
    s_add_u32 s{sCNT}, s{sCNT}, 2
    """)
    KR, VR_, SW = 52, 74, 90
    a(f"""
    ; kv task: q = l%20, rb2 = l/20, lanes >= 40 idle (offsets out of range)
    v_cmp_le_u32 vcc, 20, v0
    v_cndmask_b32 v15, 0, 1, vcc
    v_mul_u32_u24 v16, 20, v15
    v_sub_u32 v16, v0, v16
    s_lshl_b32 s{sT0}, s{sW}, 1
    v_add_u32 v15, s{sT0}, v15           ; rbk
    s_lshl_b32 s{sT1}, s{sI}, 3
    v_add_u32 v17, s{sT1}, v15
    v_mul_u32_u24 v18, 10240, v17
    s_mul_i32 s{sT2}, s{sX}, 160
    v_lshl_add_u32 v19, v16, 3, s{sT2}
    v_add_u32 v18, v18, v19              ; row0*1280 + x*160 + q*8
    v_mov_b32 v98, {OOB}
    v_cmp_gt_u32 vcc, 40, v0
    v_cndmask_b32 v18, v98, v18, vcc
    v_add_u32 v99, 5120, v18
    v_subrev_u32 v100, 3840, v18
    v_cmp_eq_u32 s[{sT4}:{sT5}], 0, v17
    v_cndmask_b32 v100, v100, v98, s[{sT4}:{sT5}]
    s_mul_i32 s{sT2}, s{sX}, 640
    v_lshl_add_u32 v101, v16, 5, s{sT2}
    v_cndmask_b32 v101, v98, v101, vcc
    """)
    for j in range(3): a(f"buffer_load_dwordx2 {vr(KR+2*j,2)}, v100, {srd(sK)}, 0 offen offset:{1280*j}")
    for j in range(8): a(f"buffer_load_dwordx2 {vr(KR+6+2*j,2)}, v{18 if j<4 else 99}, {srd(sK)}, 0 offen offset:{1280*(j%4)}")
    for j in range(8): a(f"buffer_load_dwordx2 {vr(VR_+2*j,2)}, v{18 if j<4 else 99}, {srd(sV)}, 0 offen offset:{1280*(j%4)}")
    for j in range(2): a(f"buffer_load_dwordx4 {vr(SW+4*j,4)}, v101, {srd(sSHK)}, 0 offen offset:{16*j}")
    a(f"""
    s_lshr_b32 s{sT0}, s{sW}, 1
    s_lshl_b32 s{sT1}, s{sI}, 1
    s_add_u32 s{sT1}, s{sT1}, s{sT0}           ; ks
    s_mul_i32 s{sM0}, s{sT0}, 5120
    s_add_u32 s{sM0}, s{sM0}, {SPARE+10240}
    s_mul_i32 s{sT2}, s{sT1}, {32*1280}
    s_mul_i32 s{sT3}, s{sX}, 160
    s_add_u32 s{sT2}, s{sT2}, s{sT3}
    s_mul_i32 s{sT3}, s{sX}, 54
    s_add_u32 s{sT3}, s{sT3}, s{sT1}
    s_mul_i32 s{sT3}, s{sT3}, 5120
    s_add_u32 s{sWO}, s{sT3}, {W2T_OFF}
    s_and_b32 s{sT0}, s{sW}, 1
    s_cmp_ge_u32 s{sT1}, 54
    s_cselect_b32 s{sXO}, 1, s{sT0}
    s_cmp_eq_u32 s{sXO}, 1
    s_cbranch_scc1 L_now2a
    """)
    for j in range(5):
        a(f"""
    v_add_u32 v102, {64*j}, v0
    v_mul_u32_u24 v103, 6554, v102
    v_lshrrev_b32 v103, 16, v103
    v_mul_u32_u24 v104, 10, v103
    v_sub_u32 v104, v102, v104                 ; c = id%10
    v_mul_u32_u24 v103, 1280, v103
    v_lshl_add_u32 v103, v104, 4, v103
    s_add_u32 m0, s{sM0}, {1024*j}
    buffer_load_dwordx4 v103, {srd(sW2)}, s{sT2} offen lds
    """)
    a("L_now2a:")
    XF, WF0, WF1, ACC, RS, GR, CS, ONES, SEL, B1R = 20, 52, 80, 108, 164, 172, 180, 184, 188, 216
    a(f"""
    s_lshl_b32 s{sT0}, s{sRB}, 7
    s_lshl_b32 s{sT1}, s{sW}, 5
    s_add_u32 s{sT0}, s{sT0}, s{sT1}
    v_add_u32 v4, s{sT0}, v1
    v_mul_u32_u24 v4, 1280, v4
    v_lshl_add_u32 v4, v2, 4, v4
    v_add_u32 v5, 20480, v4
    s_lshl_b32 s{sT0}, s{sP0}, 5
    s_lshl_b32 s{sT1}, s{sSG}, 5
    s_sub_u32 s{sT1}, s{sT1}, 192
    """)
    for j in range(7):
        a(f"""
    v_add_u32 v102, {64*j}, v0
    v_mul_u32_u24 v103, 4682, v102
    v_lshrrev_b32 v103, 16, v103
    v_mul_u32_u24 v104, 14, v103
    v_sub_u32 v104, v102, v104                 ; c16 = id%14
    v_lshrrev_b32 v102, 1, v103
    v_and_b32 v102, 4, v102
    v_xor_b32 v103, v103, v102
    v_mul_u32_u24 v103, 3456, v103
    v_lshl_add_u32 v103, v104, 4, v103
    v_mov_b32 v102, s{sT0}
    v_mov_b32 v105, s{sT1}
    v_cmp_gt_u32 vcc, 12, v104
    v_cndmask_b32 v102, v105, v102, vcc
    v_add_u32 v{6+j}, v103, v102
    """)
    a(f"""
    v_lshrrev_b32 v102, 2, v0
    v_and_b32 v102, 3, v102
    v_lshl_add_u32 v102, v2, 3, v102
    v_and_b32 v103, 1, v2
    v_lshlrev_b32 v103, 2, v103
    v_add_u32 v104, v102, v103
    v_xor_b32 v103, 4, v103
    v_add_u32 v105, v102, v103
    v_and_b32 v102, 3, v0
    v_lshlrev_b32 v102, 3, v102
    v_mul_u32_u24 v104, 224, v104
    v_mul_u32_u24 v105, 224, v105
    v_add_u32 v13, v104, v102
    v_add_u32 v14, v105, v102
    """)
    a(f"s_mov_b32 s{sROT}, 0")
    if opt.get("rot"):
        a(f"""
    s_and_b32 s{sT0}, s{sI}, 7
    s_lshr_b32 s{sT1}, s{sI}, 3
    s_add_u32 s{sT0}, s{sT0}, s{sT1}
    s_mul_i32 s{sT1}, s{sT0}, 52
    s_lshr_b32 s{sT1}, s{sT1}, 8
    s_mul_i32 s{sT1}, s{sT1}, 5
    s_sub_u32 s{sROT}, s{sT0}, s{sT1}
    """)
    def w1_dma(slot_s, chunk_s):
        a(f"""
    s_lshl_b32 s{sT0}, s{slot_s}, 2
    s_add_u32 s{sT0}, s{sT0}, s{sW}
    s_mul_i32 s{sT0}, s{sT0}, 7168
    s_lshl_b32 s{sT1}, s{chunk_s}, 2
    s_add_u32 s{sT1}, s{sT1}, s{sW}
    s_mul_i32 s{sT1}, s{sT1}, {32*3456}
    """)
        for j in range(7):
            a(f"s_add_u32 m0, s{sT0}, {1024*j}\nbuffer_load_dwordx4 v{6+j}, {srd(sW1)}, s{sT1} offen lds")
    def nextchunk(dst, srcs):
        a(f"s_add_u32 s{dst}, s{srcs}, 1\ns_cmp_eq_u32 s{dst}, 5\ns_cselect_b32 s{dst}, 0, s{dst}")
    def xload(s, so):
        for mt in range(2):
            a(f"buffer_load_dwordx4 {vr(XF+8*s+4*mt,4)}, v{4+mt}, {srd(sQ)}, s{so} offen offset:{64*s}")
    sL1, sL2, sPH = 78, 79, sC
    a(f"s_mov_b32 s{sT2}, 0")
    w1_dma(sT2, sROT)
    a(f"s_lshl_b32 s{sT3}, s{sROT}, 8")
    for s in range(4): xload(s, sT3)
    nextchunk(sL1, sROT)
    a(f"s_mov_b32 s{sT2}, 1")
    w1_dma(sT2, sL1)
    nextchunk(sL2, sL1)
    a(f"""
    s_lshl_b32 s{sT0}, s{sP0}, 5
    s_lshl_b32 s{sT1}, s{sSG}, 5
    v_lshlrev_b32 v102, 3, v2
    """)
    for T in range(6): a(f"buffer_load_dwordx2 {vr(B1R+2*T,2)}, v102, {srd(sB1)}, s{sT0} offen offset:{32*T}")
    a(f"buffer_load_dwordx2 {vr(B1R+12,2)}, v102, {srd(sB1)}, s{sT1} offen")
    NPRO = 7 + 8 + 7 + 7
    stamp()
    a(f"s_waitcnt vmcnt({NPRO})")
    stamp()
    WP, KU, VU, U = 108, 124, 168, 136
    for c in range(4):
        for j in range(4):
            r = SW + 2*c + (j >> 1)
            if j & 1: a(f"v_and_b32 v{WP+4*j+c}, 0xffff0000, v{r}")
            else: a(f"v_lshlrev_b32 v{WP+4*j+c}, 16, v{r}")
    KU = 124
    def unp(dst, srcr):
        for d in range(2):
            a(f"v_lshlrev_b32 v{dst+2*d}, 16, v{srcr+d}\nv_and_b32 v{dst+2*d+1}, 0xffff0000, v{srcr+d}")
    for rho in range(11): unp(KU + 4*rho, KR + 2*rho)
    U = 184
    for s in range(8):
        unp(168, VR_ + 2*s)
        for h in range(2):
            d = U + 4*s + 2*h
            a(f"v_pk_mul_f32 {vr(d,2)}, {vr(KU+4*(s+3)+2*h,2)}, {vr(WP+2*h,2)}")
            for j in range(1, 4):
                a(f"v_pk_fma_f32 {vr(d,2)}, {vr(KU+4*(s+3-j)+2*h,2)}, {vr(WP+4*j+2*h,2)}, {vr(d,2)}")
            a(f"v_pk_mul_f32 {vr(d,2)}, {vr(d,2)}, {vr(168+2*h,2)}")
    PK = 52
    for c in range(4):
        for d in range(4):
            a(f"v_cvt_pk_bf16_f32 v{PK+4*c+d}, v{U+4*(7-2*d)+c}, v{U+4*(6-2*d)+c}")
    a(f"""
    v_sub_u32 v102, 7, v15
    v_xor_b32 v102, v102, v16
    v_and_b32 v102, 7, v102
    v_lshlrev_b32 v102, 4, v102
    v_lshl_add_u32 v102, v16, 9, v102
    v_add_u32 v102, {SPARE}, v102
    s_mov_b32 exec_hi, 0xff
    """)
    for c in range(4): a(f"ds_write_b128 v102, {vr(PK+4*c,4)} offset:{128*c}")
    a(f"""
    s_mov_b32 exec_hi, -1
    s_waitcnt lgkmcnt(0)
    s_barrier
    """)
    for j in range(3):
        a(f"""
    s_add_u32 s{sT0}, s{sW}, {4*j}
    s_lshl_b32 s{sT0}, s{sT0}, 3
    v_lshrrev_b32 v102, 3, v0
    v_add_u32 v102, s{sT0}, v102
    v_and_b32 v103, 7, v0
    v_lshrrev_b32 v104, 2, v102
    v_xor_b32 v104, v104, v103
    v_and_b32 v104, 7, v104
    v_lshlrev_b32 v104, 4, v104
    v_min_u32 v105, 79, v102
    v_lshl_add_u32 v104, v105, 7, v104
    v_add_u32 v104, {SPARE}, v104
    ds_read_b128 {vr(PK+4*j,4)}, v104
    v_lshlrev_b32 v105, 12, v102
    v_lshl_add_u32 v105, v103, 4, v105
    v_cmp_gt_u32 vcc, 80, v102
    v_cndmask_b32 v{68+j}, v98, v105, vcc
    """)
    a(f"""
    s_mul_i32 s{sT0}, s{sX}, {80*4096}
    s_lshl_b32 s{sT1}, s{sI}, 7
    s_sub_u32 s{sT0}, s{sT0}, s{sT1}
    s_add_u32 s{sT0}, s{sT0}, {KVT_OFF + 1984*2}
    s_waitcnt lgkmcnt(0)
    """)
    for j in range(3): a(f"buffer_store_dwordx4 {vr(PK+4*j,4)}, v{68+j}, {srd(sWS)}, s{sT0} offen sc0 sc1")
    a(f"""
    s_cmp_eq_u32 s{sXO}, 1
    s_cbranch_scc1 L_now2b
    v_lshrrev_b32 v102, 2, v0                  ; 4g + ((l>>2)&3)
    v_mul_u32_u24 v102, 160, v102
    v_add_u32 v102, s{sM0}, v102
    v_and_b32 v103, 3, v0
    v_lshl_add_u32 v104, v103, 3, v102
    v_lshl_add_u32 v102, v103, 4, v102
    """)
    W2R = 124
    for t in range(5):
        for j in range(2):
            if t < 4: a(f"ds_read_b64_tr_b16 {vr(W2R+4*t+2*j,2)}, v102 offset:{2560*j + 8*(t&1) + 64*(t>>1)}")
            else: a(f"ds_read_b64_tr_b16 {vr(W2R+4*t+2*j,2)}, v104 offset:{2560*j + 128}")
    a(f"s_add_u32 s{sT0}, s{sWO}, 4096\ns_waitcnt lgkmcnt(0)")
    for t in range(5):
        if t < 4: a(f"buffer_store_dwordx4 {vr(W2R+4*t,4)}, v3, {srd(sWS)}, s{sWO} offen offset:{1024*t} sc0 sc1")
        else: a(f"buffer_store_dwordx4 {vr(W2R+4*t,4)}, v3, {srd(sWS)}, s{sT0} offen sc0 sc1")
    a("L_now2b:")
    for r in range(ACC, CS+4): a(f"v_mov_b32 v{r}, 0")
    for r in range(4): a(f"v_mov_b32 v{ONES+r}, 0x3f803f80")
    for T in range(7):
        a(f"v_cmp_eq_u32 vcc, {T}, v1")
        a(f"v_cndmask_b32 v{SEL+4*T}, 0, v{ONES}, vcc")
        for r in range(1, 4): a(f"v_mov_b32 v{SEL+4*T+r}, v{SEL+4*T}")
    def signal(cnt_off_s, lane0_only_wave0=True, tag=""):
        a(f"""
    s_cmp_lg_u32 s{sW}, 0
    s_cbranch_scc1 L_nosig{tag}
    """ if lane0_only_wave0 else "")
        a(f"""
    v_mov_b32 v19, 1
    s_mov_b64 exec, 1
    buffer_atomic_add v19, off, {srd(sDBG)}, s{cnt_off_s} sc1
    s_mov_b64 exec, -1
    """)
        if lane0_only_wave0: a(f"L_nosig{tag}:")
    a(f"""
    s_waitcnt vmcnt(0)
    s_barrier
    s_lshl_b32 s{sT0}, s{sX}, 2
    """)
    signal(sT0, tag="P")
    stamp()
    a(f"s_mov_b32 s{sPH}, 0\nL_g1:\ns_barrier")
    def wreads(s):
        WF = WF1 if s & 1 else WF0
        return [f"ds_read_b64_tr_b16 {vr(WF+4*T+2*j,2)}, v{13+j} offset:{7168*s+32*T}" for T in range(7) for j in range(2)]
    for x in wreads(0): a(x)
    for s in range(4):
        for mt in range(2):
            xf = vr(XF+8*s+4*mt, 4)
            a(f"v_mfma_f32_16x16x32_bf16 {vr(RS+4*mt,4)}, {vr(ONES,4)}, {xf}, {vr(RS+4*mt,4)}")
            a(f"v_mfma_f32_16x16x32_bf16 {vr(GR+4*mt,4)}, {xf}, {xf}, {vr(GR+4*mt,4)}")
    a(f"""
    s_lshl_b32 s{sXO}, s{sL1}, 8
    s_cmp_eq_u32 s{sPH}, 4
    s_cselect_b32 s{sXO}, {OOB}, s{sXO}
    """)
    for s in range(4):
        WF = WF1 if s & 1 else WF0
        nxt = wreads(s+1) if s < 3 else []
        a("s_waitcnt lgkmcnt(0)")
        for T in range(7):
            for mt in range(2):
                ac = vr(ACC+(mt*7+T)*4, 4)
                a(f"v_mfma_f32_16x16x32_bf16 {ac}, {vr(WF+4*T,4)}, {vr(XF+8*s+4*mt,4)}, {ac}")
                if nxt: a(nxt.pop(0))
        a(f"s_cmp_lg_u32 s{sW}, {s}\ns_cbranch_scc1 L_nocs{s}")
        for T in range(7):
            a(f"v_mfma_f32_16x16x32_bf16 {vr(CS,4)}, {vr(WF+4*T,4)}, {vr(SEL+4*T,4)}, {vr(CS,4)}")
        a(f"L_nocs{s}:")
        xload(s, sXO)
    a(f"""
    v_add_u32 v13, 28672, v13
    v_add_u32 v14, 28672, v14
    s_cmp_ge_u32 s{sPH}, 3
    s_cbranch_scc1 L_g1_nodma
    s_add_u32 s{sT2}, s{sPH}, 2
    """)
    w1_dma(sT2, sL2)
    a(f"""
    s_waitcnt vmcnt(7)
    s_branch L_g1_next
L_g1_nodma:
    s_waitcnt vmcnt(0)
L_g1_next:
    s_mov_b32 s{sL1}, s{sL2}
    """)
    nextchunk(sL2, sL2)
    a(f"""
    s_add_u32 s{sPH}, s{sPH}, 1
    s_cmp_lt_u32 s{sPH}, 5
    s_cbranch_scc1 L_g1
    """)
    stamp()
    a(f"""
    s_lshl_b32 s{sT0}, s{sW}, 10
    s_add_u32 s{sT0}, s{sT0}, {SPARE}
    v_add_u32 v15, s{sT0}, v3
    s_nop 4
    ds_write_b128 v15, {vr(CS,4)}
    v_and_b32 v16, 3, v1
    v_lshrrev_b32 v17, 2, v1
    v_lshl_add_u32 v17, v17, 4, v1
    v_lshlrev_b32 v17, 2, v17
    """)
    for mt in range(2):
        g = GR + 4*mt
        a(f"""
    v_cmp_eq_u32 vcc, 1, v16
    v_cndmask_b32 v{g}, v{g}, v{g+1}, vcc
    v_cmp_eq_u32 vcc, 2, v16
    v_cndmask_b32 v{g}, v{g}, v{g+2}, vcc
    v_cmp_eq_u32 vcc, 3, v16
    v_cndmask_b32 v{g}, v{g}, v{g+3}, vcc
    ds_bpermute_b32 v{g+1}, v17, v{g}
    """)
    a("s_waitcnt lgkmcnt(0)\ns_barrier")
    a(f"v_add_u32 v15, {SPARE}, v3")
    CP = 52
    for w in range(4): a(f"ds_read_b128 {vr(CP+4*w,4)}, v15 offset:{1024*w}")
    def poll(tag, conds, vtmp=18):
        a(f"v_lshlrev_b32 v19, 2, v0\ns_mov_b32 s78, 0\nL_poll{tag}:")
        a(f"buffer_load_dword v{vtmp}, v19, {srd(sDBG)}, 0 offen sc0 sc1\ns_waitcnt vmcnt(0)")
        for k, (idx_s, add, target) in enumerate(conds):
            a(f"s_add_u32 s{sT4}, s{idx_s}, {add}\nv_readlane_b32 s{sT5}, v{vtmp}, s{sT4}\ns_cmp_ge_u32 s{sT5}, {target}\ns_cbranch_scc0 L_pollw{tag}")
        a(f"s_branch L_polld{tag}\nL_pollw{tag}:\ns_sleep 2\ns_add_u32 s78, s78, 1\ns_cmp_lt_u32 s78, 0x8000\ns_cbranch_scc1 L_poll{tag}\nL_polld{tag}:")
    poll("P", [(sX, 0, 32), (sNI, 0, 32)])
    stamp()
    KVR, K0R, DR = 20, 36, 38
    a(f"""
    s_cmp_ge_u32 s{sW}, s{sCNT}
    s_cbranch_scc1 L_noconv_in
    s_mul_i32 s{sM0}, s{sW}, {CONV_STRIDE}
    s_lshl_b32 s{sT0}, s{sCH}, 12
    s_add_u32 s{sT1}, s{sT0}, {KVT_OFF}
    """)
    for j in range(4): a(f"buffer_load_dwordx4 {vr(KVR+4*j,4)}, v3, {srd(sWS)}, s{sT1} offen offset:{1024*j} sc1")
    a(f"buffer_load_dwordx2 {vr(K0R,2)}, off, {srd(sSSMK)}, s{sT0}")
    a(f"s_lshl_b32 s{sT1}, s{sCH}, 1\nbuffer_load_ushort v{DR}, off, {srd(sSSMD)}, s{sT1}")
    for cp in range(4):
        a(f"s_add_u32 m0, s{sM0}, {cp*4160+32}\ns_add_u32 s{sT1}, s{sT0}, {2*cp}")
        for j in range(4): a(f"buffer_load_dwordx4 v3, {srd(sSSMK)}, s{sT1} offen offset:{1024*j} lds")
    a("L_noconv_in:")
    MN, RSV, NM = 72, 76, 80
    a(f"s_mov_b32 s{sT0}, 0x3acccccd\ns_mov_b32 s{sT1}, 0x3727c5ac")
    def rbf(r):
        a(f"v_cvt_pk_bf16_f32 v{r}, v{r}, v{r}\nv_and_b32 v{r}, 0xffff0000, v{r}")
    for mt in range(2):
        m, r, n = MN + 2*mt, RSV + 2*mt, NM + 2*mt
        a(f"""
    v_mul_f32 v{m}, s{sT0}, v{RS+4*mt}
    v_mul_f32 v{r}, s{sT0}, v{GR+4*mt+1}
    v_fma_f32 v{r}, -v{m}, v{m}, v{r}
    v_max_f32 v{r}, 0, v{r}
    """)
        rbf(r); a(f"v_add_f32 v{r}, s{sT1}, v{r}"); rbf(r); a(f"v_sqrt_f32 v{r}, v{r}"); rbf(r)
        a(f"v_rcp_f32 v{r}, v{r}"); rbf(m)
        a(f"v_mul_f32 v{n}, -v{m}, v{r}\nv_mov_b32 v{m+1}, v{r}")
    a(f"""
    s_lshl_b32 s{sT0}, s{sRB}, 7
    s_lshl_b32 s{sT1}, s{sW}, 5
    s_add_u32 s{sT0}, s{sT0}, s{sT1}
    s_lshl_b32 s{sT0}, s{sT0}, 3
    s_add_u32 s{sT0}, s{sT0}, {ST_OFF}
    s_cmp_eq_u32 s{sCJ}, 0
    s_cselect_b32 s{sT0}, s{sT0}, {OOB}
    v_lshlrev_b32 v15, 3, v0
    s_mov_b64 exec, 0xffff
    buffer_store_dwordx2 {vr(MN,2)}, v15, {srd(sWS)}, s{sT0} offen sc0 sc1
    buffer_store_dwordx2 {vr(MN+2,2)}, v15, {srd(sWS)}, s{sT0} offen offset:128 sc0 sc1
    s_mov_b64 exec, -1
    s_waitcnt lgkmcnt(0)
    v_pk_add_f32 {vr(CP,2)}, {vr(CP,2)}, {vr(CP+4,2)}
    v_pk_add_f32 {vr(CP+2,2)}, {vr(CP+2,2)}, {vr(CP+6,2)}
    v_pk_add_f32 {vr(CP+8,2)}, {vr(CP+8,2)}, {vr(CP+12,2)}
    v_pk_add_f32 {vr(CP+10,2)}, {vr(CP+10,2)}, {vr(CP+14,2)}
    v_pk_add_f32 {vr(CP,2)}, {vr(CP,2)}, {vr(CP+8,2)}
    v_pk_add_f32 {vr(CP+2,2)}, {vr(CP+2,2)}, {vr(CP+10,2)}
    """)
    import struct, math
    f2u = lambda x: struct.unpack("<I", struct.pack("<f", x))[0]
    k0 = -2.0 * math.log2(math.e) * math.sqrt(2.0/math.pi)
    C0, C1, ONE, CST, B1F, TT = 84, 86, 88, 56, 60, 92
    a(f"v_mov_b32 v{C0}, {f2u(k0):#x}\nv_mov_b32 v{C1}, {f2u(k0*0.044715):#x}\nv_mov_b32 v{ONE}, 1.0")
    HP = 184
    for T in range(7):
        for r in range(4): a(f"v_mov_b32_dpp v{CST+r}, v{CP+r} row_newbcast:{T} row_mask:0xf bank_mask:0xf")
        unp(B1F, B1R + 2*T)
        for mt in range(2):
            ac = ACC + (mt*7+T)*4
            for h in range(2):
                t = TT + 2*h
                a(f"v_pk_fma_f32 {vr(t,2)}, {vr(CST+2*h,2)}, {vr(NM+2*mt,2)}, {vr(B1F+2*h,2)} op_sel_hi:[1,0,1]")
            for h in range(2):
                a(f"v_pk_fma_f32 {vr(ac+2*h,2)}, {vr(ac+2*h,2)}, {vr(RSV+2*mt,2)}, {vr(TT+2*h,2)} op_sel_hi:[1,0,1]")
            for h in range(2): a(f"v_pk_mul_f32 {vr(TT+2*h,2)}, {vr(ac+2*h,2)}, {vr(ac+2*h,2)}")
            for h in range(2): a(f"v_pk_fma_f32 {vr(TT+2*h,2)}, {vr(TT+2*h,2)}, {vr(C1,2)}, {vr(C0,2)} op_sel_hi:[1,0,0]")
            for h in range(2): a(f"v_pk_mul_f32 {vr(TT+2*h,2)}, {vr(TT+2*h,2)}, {vr(ac+2*h,2)}")
            for r in range(4): a(f"v_exp_f32 v{TT+r}, v{TT+r}")
            for h in range(2): a(f"v_pk_add_f32 {vr(TT+2*h,2)}, {vr(TT+2*h,2)}, {vr(ONE,2)} op_sel_hi:[1,0]")
            for r in range(4): a(f"v_rcp_f32 v{TT+r}, v{TT+r}")
            for h in range(2): a(f"v_pk_mul_f32 {vr(ac+2*h,2)}, {vr(ac+2*h,2)}, {vr(TT+2*h,2)}")
            for h in range(2): a(f"v_cvt_pk_bf16_f32 v{HP+(mt*8+T)*2+h}, v{ac+2*h}, v{ac+2*h+1}")
    a(f"""
    s_lshl_b32 s{sT0}, s{sRB}, 1
    s_lshr_b32 s{sT1}, s{sW}, 1
    s_add_u32 s{sT0}, s{sT0}, s{sT1}
    s_mul_i32 s{sT0}, s{sT0}, {54*4096}
    s_and_b32 s{sT1}, s{sW}, 1
    s_lshl_b32 s{sT1}, s{sT1}, 11
    s_add_u32 s{sT0}, s{sT0}, s{sT1}
    s_lshl_b32 s{sT1}, s{sP0}, 11
    s_add_u32 s{sT1}, s{sT1}, s{sT0}
    s_lshr_b32 s{sT2}, s{sSG}, 1
    s_lshl_b32 s{sT2}, s{sT2}, 12
    s_add_u32 s{sT2}, s{sT2}, s{sT0}
    s_and_b32 s{sT3}, s{sSG}, 1
    s_lshl_b32 s{sT3}, s{sT3}, 3
    s_add_u32 s{sT2}, s{sT2}, s{sT3}
    s_cmp_lt_u32 s{sCJ}, 12
    s_cselect_b32 s{sT2}, s{sT2}, {OOB}
    """)
    for p in range(3):
        for mt in range(2):
            a(f"buffer_store_dwordx4 {vr(HP+(mt*8+2*p)*2,4)}, v3, {srd(sWS)}, s{sT1} offen offset:{1024*mt} sc0 sc1")
        a(f"s_add_u32 s{sT1}, s{sT1}, 4096")
    for mt in range(2):
        a(f"buffer_store_dwordx2 {vr(HP+(mt*8+6)*2,2)}, v3, {srd(sWS)}, s{sT2} offen offset:{1024*mt} sc0 sc1")
    a(f"""
    s_waitcnt vmcnt(0)
    s_barrier
    s_lshl_b32 s{sT0}, s{sRB}, 2
    s_add_u32 s{sT0}, s{sT0}, 128
    """)
    signal(sT0, tag="H")
    stamp()
    a(f"""
    s_sub_u32 s{sT0}, 3, s{sW}
    s_mul_i32 s{sT1}, s{sNI}, 54
    s_add_u32 s{sT1}, s{sT1}, s{sT0}
    s_mul_i32 s{sWO}, s{sT1}, 5120
    s_add_u32 s{sWO}, s{sWO}, {W2T_OFF}
    v_add_u32 v4, 4096, v3
    """)
    W2V = 216
    def w2dst(j, t):
        return ar((j*5+t)*4, 4) if j < 12 else vr(W2V + ((j-12)*5+t)*4, 4)
    w2loads = []
    for j in range(14):
        for t in range(5):
            pre = ""
            if j == 10 and t == 0: pre = "s_waitcnt vmcnt(36)\n"
            if j == 13 and t == 0:
                pre = f"s_cmp_ge_u32 s{sW}, 2\ns_cselect_b32 s{sWO}, s{sWO}, {OOB}\n"
            post = f"\ns_add_u32 s{sWO}, s{sWO}, {4*5120}" if (t == 4 and j < 13) else ""
            w2loads.append(pre + f"buffer_load_dwordx4 {w2dst(j,t)}, v{3 if t<4 else 4}, {srd(sWS)}, s{sWO} offen offset:{1024*(t%4)} sc1" + post)
    a(f"""
    s_cmp_ge_u32 s{sW}, s{sCNT}
    s_cbranch_scc0 L_conv
    """)
    for x in w2loads: a(x)
    a("s_branch L_conv_done\nL_conv:")
    CA, CB, CACC = (40, 104), (72, 136), 168
    a(f"""
    s_add_u32 s{sT0}, s{sM0}, 16640
    v_add_u32 v15, s{sT0}, v3
    v_mov_b32 v8, 0
    v_mov_b32 v9, 0
    v_mov_b32 v10, 0
    v_mov_b32 v11, 0
    """)
    for j in range(4): a(f"ds_write_b128 v15, {vr(KVR+4*j,4)} offset:{1024*j}")
    a(f"""
    s_mov_b64 exec, 0x3fffffff
    ds_write_b128 v15, v[8:11] offset:4096
    v_lshrrev_b32 v16, 1, v0
    v_lshlrev_b32 v17, 4, v16
    v_sub_u32 v17, 48, v17
    v_lshlrev_b64 v[10:11], v17, {vr(K0R,2)}
    v_lshlrev_b64 v[10:11], 16, v[10:11]
    v_and_b32 v17, 1, v0
    v_cmp_eq_u32 vcc, 1, v17
    v_cndmask_b32 v10, 0, v10, vcc
    v_cndmask_b32 v11, 0, v11, vcc
    v_mul_u32_u24 v16, 4160, v16
    v_lshl_add_u32 v16, v17, 4, v16
    v_add_u32 v16, s{sM0}, v16
    s_mov_b64 exec, 0xff
    ds_write_b128 v16, v[8:11]
    s_mov_b64 exec, -1
    v_add_u32 v16, 1, v1
    v_and_b32 v17, 3, v16
    v_mul_u32_u24 v17, 4160, v17
    v_and_b32 v16, 28, v16
    v_lshl_add_u32 v17, v16, 1, v17
    v_lshl_add_u32 v17, v2, 4, v17
    v_add_u32 v5, s{sM0}, v17
    v_lshlrev_b32 v16, 5, v1
    v_sub_u32 v16, 480, v16
    v_lshl_add_u32 v17, v2, 4, v16
    v_add_u32 v6, s{sT0}, v17
    v_lshlrev_b32 v17, 3, v2
    v_sub_u32 v17, v16, v17
    v_add_u32 v17, {s if False else 24}, v17
    v_add_u32 v7, s{sT0}, v17
    v_lshlrev_b32 v{DR}, 16, v{DR}
    s_waitcnt lgkmcnt(0)
    """)
    def creads(n):
        A_, B_ = CA[n & 1], CB[n & 1]
        l = []
        for i in range(8):
            l.append(f"ds_read_b128 {vr(B_+4*i,4)}, v6 offset:{64*n+512*i}")
            l.append(f"ds_read_b64 {vr(A_+4*i,2)}, v5 offset:{64*n+512*i}")
            l.append(f"ds_read_b64 {vr(A_+4*i+2,2)}, v5 offset:{64*n+512*i+8}")
        return l
    first = creads(0)
    for x in first[:12]: a(x)
    a("s_waitcnt lgkmcnt(3)")
    for x in first[12:]: a(x)
    pend = list(w2loads)
    for n in range(8):
        A_, B_ = CA[n & 1], CB[n & 1]
        nxt = creads(n+1) if n < 7 else []
        a("s_waitcnt lgkmcnt(0)")
        k = 0
        for ip in range(8):
            for i in range(ip+1):
                ac = vr(CACC + 4*(7-(ip-i)), 4)
                c = "0" if (n == 0 and i == 0) else ac
                a(f"v_mfma_f32_16x16x32_bf16 {ac}, {vr(A_+4*i,4)}, {vr(B_+4*ip,4)}, {c}")
                k += 1
                if nxt and k <= 24:
                    a(nxt.pop(0))
                    if k == 12: a("s_waitcnt lgkmcnt(3)")
                if k % 4 == 0 and pend: a(pend.pop(0))
    for x in pend: a(x)
    UR = 40
    for jt in range(8): a(f"ds_read_b64 {vr(UR+2*jt,2)}, v7 offset:{512*(7-jt)}")
    a(f"""
    s_lshl_b32 s{sT0}, s{sCH}, 12
    s_add_u32 s{sT0}, s{sT0}, {Z_OFF}
    v_lshlrev_b32 v15, 5, v1
    v_lshl_add_u32 v15, v2, 3, v15
    s_waitcnt lgkmcnt(0)
    """)
    for jt in range(8):
        ac = CACC + 4*jt; u = UR + 2*jt
        a(f"""
    v_and_b32 v8, 0xffff0000, v{u+1}
    v_lshlrev_b32 v9, 16, v{u+1}
    v_and_b32 v10, 0xffff0000, v{u}
    v_lshlrev_b32 v11, 16, v{u}
    v_pk_fma_f32 {vr(ac,2)}, v[8:9], {vr(DR,2)}, {vr(ac,2)} op_sel_hi:[1,0,1]
    v_pk_fma_f32 {vr(ac+2,2)}, v[10:11], {vr(DR,2)}, {vr(ac+2,2)} op_sel_hi:[1,0,1]
    v_cvt_pk_bf16_f32 v{u}, v{ac}, v{ac+1}
    v_cvt_pk_bf16_f32 v{u+1}, v{ac+2}, v{ac+3}
    buffer_store_dwordx2 {vr(u,2)}, v15, {srd(sWS)}, s{sT0} offen offset:{512*jt} sc0 sc1
    """)
    a(f"""
    s_waitcnt vmcnt(0)
    s_lshl_b32 s{sT0}, s{sX}, 2
    s_add_u32 s{sT0}, s{sT0}, 32
    """)
    signal(sT0, lane0_only_wave0=False)
    a("L_conv_done:")
    stamp()
    a(f"s_lshr_b32 s{sT3}, s{sMB}, 1")
    poll("H", [(sT3, 32, 16)])
    stamp()
    GA, HF, DEPTH = 40, 120, 4
    a(f"""
    s_mul_i32 s{sT1}, s{sMB}, 54
    s_sub_u32 s{sT0}, 3, s{sW}
    s_add_u32 s{sT1}, s{sT1}, s{sT0}
    s_lshl_b32 s{sXO}, s{sT1}, 12
    """)
    for mu in range(4):
        a(f"s_xor_b32 s{sT0}, s{sW}, {mu}\ns_lshl_b32 s{sT0}, s{sT0}, 10\nv_add_u32 v{8+mu}, s{sT0}, v3")
    def hload(j):
        if j == 13: a(f"s_cmp_ge_u32 s{sW}, 2\ns_cselect_b32 s{sXO}, s{sXO}, {OOB}")
        for mu in range(4):
            a(f"buffer_load_dwordx4 {vr(HF+16*(j%DEPTH)+4*mu,4)}, v{8+mu}, {srd(sWS)}, s{sXO} offen sc1")
        if j < 13: a(f"s_add_u32 s{sXO}, s{sXO}, 16384")
    XR, B2R, STR = 20, 30, 12
    a(f"""
    s_lshl_b32 s{sT0}, s{sMB}, 6
    s_lshl_b32 s{sT1}, s{sW}, 4
    s_add_u32 s{sT0}, s{sT0}, s{sT1}
    v_add_u32 v15, s{sT0}, v1
    v_lshlrev_b32 v16, 3, v15
    v_mul_u32_u24 v15, 1280, v15
    s_mul_i32 s{sT2}, s{sNI}, 160
    v_lshlrev_b32 v17, 4, v2
    v_lshlrev_b32 v18, 3, v2
    v_add_u32 v5, v15, v17
    v_add_u32 v6, v15, v18
    s_mov_b32 s{sT1}, {ST_OFF}
    buffer_load_dwordx2 {vr(STR,2)}, v16, {srd(sWS)}, s{sT1} offen sc1
    buffer_load_dwordx4 {vr(XR,4)}, v5, {srd(sQ)}, s{sT2} offen
    buffer_load_dwordx4 {vr(XR+4,4)}, v5, {srd(sQ)}, s{sT2} offen offset:64
    buffer_load_dwordx2 {vr(XR+8,2)}, v6, {srd(sQ)}, s{sT2} offen offset:128
    buffer_load_dwordx4 {vr(B2R,4)}, v17, {srd(sB2)}, s{sT2} offen
    buffer_load_dwordx4 {vr(B2R+4,4)}, v17, {srd(sB2)}, s{sT2} offen offset:64
    buffer_load_dwordx2 {vr(B2R+8,2)}, v18, {srd(sB2)}, s{sT2} offen offset:128
    s_mov_b32 s{sCJ}, s{sT2}
    """)
    for j in range(DEPTH): hload(j)
    for j in range(14):
        rem = min(DEPTH-1, 13-j)
        a(f"s_waitcnt vmcnt({4*rem})")
        if j == 13: a(f"s_cmp_lt_u32 s{sW}, 2\ns_cbranch_scc1 L_g2_done")
        for mu in range(4):
            for t in range(5):
                ac = vr(GA + (mu*5+t)*4, 4)
                a(f"v_mfma_f32_16x16x32_bf16 {ac}, {w2dst(j,t)}, {vr(HF+16*(j%DEPTH)+4*mu,4)}, {'0' if j==0 else ac}")
        if j + DEPTH < 14: hload(j + DEPTH)
    a("L_g2_done:")
    stamp()
    for mu in range(1, 4):
        a(f"s_xor_b32 s{sT0}, s{sW}, {mu}\ns_mul_i32 s{sT0}, s{sT0}, 15360\ns_add_u32 s{sT0}, s{sT0}, {65536 + (mu-1)*5120}\nv_add_u32 v{8+mu}, s{sT0}, v3")
    for mu in range(1, 4):
        for t in range(5): a(f"ds_write_b128 v{8+mu}, {vr(GA+(mu*5+t)*4,4)} offset:{1024*t}")
    poll("Z", [(sNI, 8, 80)])
    ZR, ZT = 120, 132
    a(f"""
    s_mul_i32 s{sT0}, s{sNI}, {80*4096}
    s_lshl_b32 s{sT1}, s{sMB}, 7
    s_add_u32 s{sT0}, s{sT0}, s{sT1}
    s_lshl_b32 s{sT1}, s{sW}, 5
    s_add_u32 s{sT0}, s{sT0}, s{sT1}
    s_add_u32 s{sT0}, s{sT0}, {Z_OFF}
    v_lshrrev_b32 v15, 1, v0
    v_lshlrev_b32 v15, 12, v15
    v_and_b32 v16, 1, v0
    v_lshl_add_u32 v15, v16, 4, v15
    v_add_u32 v16, {32*4096}, v15
    v_add_u32 v17, {64*4096}, v15
    buffer_load_dwordx4 {vr(ZR,4)}, v15, {srd(sWS)}, s{sT0} offen sc1
    buffer_load_dwordx4 {vr(ZR+4,4)}, v16, {srd(sWS)}, s{sT0} offen sc1
    s_mov_b32 exec_hi, 0
    buffer_load_dwordx4 {vr(ZR+8,4)}, v17, {srd(sWS)}, s{sT0} offen sc1
    s_mov_b32 exec_hi, -1
    s_mul_i32 s{sT0}, s{sW}, 3072
    s_add_u32 s{sT0}, s{sT0}, {131072}
    v_add_u32 v15, s{sT0}, v3
    s_waitcnt vmcnt(0)
    ds_write_b128 v15, {vr(ZR,4)}
    ds_write_b128 v15, {vr(ZR+4,4)} offset:1024
    ds_write_b128 v15, {vr(ZR+8,4)} offset:2048
    v_lshrrev_b32 v16, 2, v0
    v_and_b32 v17, 3, v0
    v_lshlrev_b32 v17, 3, v17
    v_add_u32 v17, s{sT0}, v17
    v_lshl_add_u32 v18, v16, 5, v17
    v_lshl_add_u32 v16, v2, 2, v16
    v_lshl_add_u32 v16, v16, 5, v17
    s_waitcnt lgkmcnt(0)
    """)
    for t in range(5):
        if t < 4: a(f"ds_read_b64_tr_b16 {vr(ZT+2*t,2)}, v16 offset:{32*(32*(t>>1)+4*(t&1))}")
        else: a(f"ds_read_b64_tr_b16 {vr(ZT+2*t,2)}, v18 offset:{32*64}")
    a("s_waitcnt lgkmcnt(0)")
    for t in range(5):
        ac = GA + 4*t
        unp(144, XR + 2*t); unp(148, ZT + 2*t); unp(152, B2R + 2*t)
        for h in range(2):
            a(f"v_pk_add_f32 {vr(156+2*h,2)}, {vr(144+2*h,2)}, {vr(STR,2)} op_sel_hi:[1,0] neg_lo:[0,1] neg_hi:[0,1]")
        for h in range(2):
            a(f"v_pk_mul_f32 {vr(156+2*h,2)}, {vr(156+2*h,2)}, {vr(STR,2)} op_sel:[0,1] op_sel_hi:[1,1]")
        for h in range(2):
            a(f"v_pk_fma_f32 {vr(144+2*h,2)}, {vr(156+2*h,2)}, {vr(148+2*h,2)}, {vr(144+2*h,2)}")
        for h in range(2):
            a(f"v_pk_add_f32 {vr(ac+2*h,2)}, {vr(ac+2*h,2)}, {vr(152+2*h,2)}")
        for h in range(2):
            a(f"v_pk_add_f32 {vr(ac+2*h,2)}, {vr(ac+2*h,2)}, {vr(144+2*h,2)}")
    a(f"""
    s_barrier
    s_mul_i32 s{sT0}, s{sW}, 15360
    s_add_u32 s{sT0}, s{sT0}, 65536
    v_add_u32 v15, s{sT0}, v3
    """)
    for mu in range(1, 4):
        for t in range(5): a(f"ds_read_b128 {vr(GA+(mu*5+t)*4,4)}, v15 offset:{(mu-1)*5120+1024*t}")
    for mu in range(1, 4):
        a(f"s_waitcnt lgkmcnt({5*(3-mu)})")
        for t in range(5):
            for h in range(2):
                a(f"v_pk_add_f32 {vr(GA+4*t+2*h,2)}, {vr(GA+4*t+2*h,2)}, {vr(GA+(mu*5+t)*4+2*h,2)}")
    for t in range(5):
        for h in range(2): a(f"v_cvt_pk_bf16_f32 v{XR+2*t+h}, v{GA+4*t+2*h}, v{GA+4*t+2*h+1}")
    a(f"""
    buffer_store_dwordx4 {vr(XR,4)}, v5, {srd(sOUT)}, s{sCJ} offen
    buffer_store_dwordx4 {vr(XR+4,4)}, v5, {srd(sOUT)}, s{sCJ} offen offset:64
    buffer_store_dwordx2 {vr(XR+8,2)}, v6, {srd(sOUT)}, s{sCJ} offen offset:128
    """)
    if stamps:
        a("s_waitcnt vmcnt(0)")
        stamp()
        a("s_waitcnt lgkmcnt(0)")
        for k in range(12):
            a(f"v_mov_b32 v{40+k}, s{sTS+2*k}" if k < nst[0] else f"v_mov_b32 v{40+k}, 0")
        a(f"""
    s_lshl_b32 s{sT0}, s2, 2
    s_add_u32 s{sT0}, s{sT0}, s{sW}
    s_lshl_b32 s{sT0}, s{sT0}, 6
    s_add_u32 s{sT0}, s{sT0}, {TS_OFF}
    s_mov_b64 exec, 1
    buffer_store_dwordx4 v[40:43], off, {srd(sWS)}, s{sT0}
    buffer_store_dwordx4 v[44:47], off, {srd(sWS)}, s{sT0} offset:16
    buffer_store_dwordx4 v[48:51], off, {srd(sWS)}, s{sT0} offset:32
    """)
    a("""
L_end:
    s_endpgm
.section .rodata,"a"
.p2align 6
""")
    a(kd(NAME, 512, accum=256))
    return a.text(dopad=True), a

if __name__ == "__main__":
    out = sys.argv[1] if len(sys.argv) > 1 else "k.s"
    opt = {k: 1 for k in sys.argv[2:]}
    t, a = gen(stamps=bool(opt.get("stamps")), opt=opt)
    open(out, "w").write(t)
    print("nops inserted:", a.nops, "lines", len(t.split("\n")))
```

```python
import sys, struct, math
from asm import *

NAME = "parallel_sum__ssm_conv_h3__dense_activation_gelu__prompt_kernel"
NONCE_OFF, FP_OFF, FS_OFF, FH_OFF, FZ_OFF = 0x0, 0x1000, 0x2000, 0x3000, 0x4000
H_OFF, W2T_OFF, KVT_OFF, Z_OFF, ST_OFF, TS_OFF, WS_REC = 0x10000, 0x700000, 0xA00000, 0xD00000, 0x1000000, 0x1010000, 0x1100000
OOB = 0x40000000
LDS_BYTES = 163840
SLOT, WP_O, WS_O = 30720, 16384, 28672
SPARE = 4 * SLOT
CONV_STRIDE = 21504
sQ, sK, sV, sSHK, sSSMK, sSSMD, sW1, sB1, sW2, sB2, sOUT, sWS = [4 + 4*i for i in range(12)]
srd = lambda b: f"s[{b}:{b+3}]"
(sW, sX, sI, sRB, sCJ, sP0, sSG, sMB, sNI, sC, sT0, sT1, sT2, sT3, sCH, sXO, sNON, sSPIN, sL, sCNT) = range(52, 72)
(sWO, sM0, sNP, sLD, sT4, sT5) = range(72, 78)
sTS = 78

def vr(b, n): return f"v[{b}:{b+n-1}]" if n > 1 else f"v{b}"
def ar(b, n): return f"a[{b}:{b+n-1}]"
f2u = lambda x: struct.unpack("<I", struct.pack("<f", x))[0]

def gen(stamps=False, opt=None):
    opt = opt or {}
    a = A()
    nst = [0]
    def stamp():
        if stamps:
            a(f"{'s_memtime' if opt.get('cyc') else 's_memrealtime'} s[{sTS+2*nst[0]}:{sTS+2*nst[0]+1}]"); nst[0] += 1
    def unp(dst, srcr, n=2):
        for d in range(n):
            a(f"v_lshlrev_b32 v{dst+2*d}, 16, v{srcr+d}\nv_and_b32 v{dst+2*d+1}, 0xffff0000, v{srcr+d}")
    def rbf(r):
        a(f"v_cvt_pk_bf16_f32 v{r}, v{r}, v{r}\nv_and_b32 v{r}, 0xffff0000, v{r}")
    def flag_store(soff):
        a(f"""
    v_mov_b32 v19, s{sNON}
    s_mov_b64 exec, 1
    buffer_store_dword v19, off, {srd(sWS)}, s{soff} sc0 sc1
    s_mov_b64 exec, -1
    """)
    def poll(tag, loads):
        a(f"s_mov_b32 s{sSPIN}, 0\nL_poll{tag}:")
        r = 16; regs = []
        for vo, so, wd in loads:
            a(f"buffer_load_dword{'x'+str(wd) if wd>1 else ''} {vr(r,wd)}, v{vo}, {srd(sWS)}, s{so} offen sc1")
            regs += list(range(r, r+wd)); r += wd
        a("s_waitcnt vmcnt(0)")
        for k, x in enumerate(regs):
            if k == 0: a(f"v_cmp_eq_u32 vcc, s{sNON}, v{x}")
            else: a(f"v_cmp_eq_u32 s[{sT4}:{sT5}], s{sNON}, v{x}\ns_and_b64 vcc, vcc, s[{sT4}:{sT5}]")
        a(f"""
    s_cmp_eq_u64 vcc, -1
    s_cbranch_scc1 L_polld{tag}
    s_sleep 4
    s_add_u32 s{sSPIN}, s{sSPIN}, 1
    s_cmp_lt_u32 s{sSPIN}, 0x8000
    s_cbranch_scc1 L_poll{tag}
L_polld{tag}:
    """)
    a(f"; @launch {'kernel='+NAME+' ' if not opt.get('final') else ''}grid=(256,1,1) block=(256,1,1) lds={LDS_BYTES}")
    a('.amdgcn_target "amdgcn-amd-amdhsa--gfx950"\n.text')
    a(head(NAME))
    a(f"""
    s_cmp_ge_u32 s2, 256
    s_cbranch_scc1 L_end
    s_load_dwordx16 s[72:87], s[0:1], 0
    s_load_dwordx8 s[88:95], s[0:1], 64
    s_load_dwordx2 s[96:97], s[0:1], 104
    v_lshrrev_b32 v1, 6, v0
    v_and_b32 v0, 63, v0
    v_readfirstlane_b32 s{sW}, v1
    v_and_b32 v1, 15, v0
    v_lshrrev_b32 v2, 4, v0
    v_lshlrev_b32 v3, 4, v0
    s_and_b32 s{sX}, s2, 7
    s_lshr_b32 s{sI}, s2, 3
    """)
    sizes = {sQ: 2621440, sK: 2621440, sV: 2621440, sSHK: 5120, sSSMK: 2621440, sSSMD: 1280, sW1: 2211840, sB1: 3456,
             sW2: 2211840, sB2: 1280, sOUT: 2621440, sWS: WS_REC}
    for b, n in sizes.items():
        a(f"s_mov_b32 s{b+2}, {n}\ns_mov_b32 s{b+3}, 0x20000")
    a(f"""
    s_lshr_b32 s{sT0}, s{sX}, 1
    s_lshl_b32 s{sRB}, s{sT0}, 2
    s_lshr_b32 s{sT1}, s{sI}, 3
    s_add_u32 s{sRB}, s{sRB}, s{sT1}
    s_and_b32 s{sT1}, s{sX}, 1
    s_lshl_b32 s{sCJ}, s{sT1}, 3
    s_and_b32 s{sT2}, s{sI}, 7
    s_add_u32 s{sCJ}, s{sCJ}, s{sT2}
    ; G2 tile
    s_lshl_b32 s{sMB}, s{sT0}, 3
    s_lshr_b32 s{sT2}, s{sI}, 2
    s_add_u32 s{sMB}, s{sMB}, s{sT2}
    s_lshl_b32 s{sNI}, s{sT1}, 2
    s_and_b32 s{sT2}, s{sI}, 3
    s_add_u32 s{sNI}, s{sNI}, s{sT2}
    ; P0 / SG
    s_lshr_b32 s{sT0}, s{sCJ}, 1
    s_mul_i32 s{sT0}, s{sT0}, 14
    s_and_b32 s{sT1}, s{sCJ}, 1
    s_add_u32 s{sSG}, s{sT0}, s{sT1}
    s_add_u32 s{sSG}, s{sSG}, 6
    s_lshl_b32 s{sT1}, s{sT1}, 3
    s_add_u32 s{sP0}, s{sT0}, s{sT1}
    s_mul_i32 s{sT0}, s{sCJ}, 6
    s_add_u32 s{sT0}, s{sT0}, 12
    s_cmp_lt_u32 s{sCJ}, 12
    s_cselect_b32 s{sP0}, s{sP0}, s{sT0}
    s_cselect_b32 s{sSG}, s{sSG}, 0x1000000
    s_mul_i32 s{sT0}, s{sI}, 5
    s_lshr_b32 s{sT0}, s{sT0}, 1
    s_mul_i32 s{sCH}, s{sX}, 80
    s_add_u32 s{sCH}, s{sCH}, s{sT0}
    s_add_u32 s{sCH}, s{sCH}, s{sW}
    s_and_b32 s{sCNT}, s{sI}, 1
    s_add_u32 s{sCNT}, s{sCNT}, 2
    """)
    KR, VR_, SW, XS = 92, 114, 130, 138
    a(f"""
    ; kv task: q = l%20, rb2 = l/20, lanes >= 40 idle (offsets out of range)
    v_cmp_le_u32 vcc, 20, v0
    v_cndmask_b32 v15, 0, 1, vcc
    v_mul_u32_u24 v16, 20, v15
    v_sub_u32 v16, v0, v16
    s_lshl_b32 s{sT0}, s{sW}, 1
    v_add_u32 v15, s{sT0}, v15           ; rbk
    s_lshl_b32 s{sT1}, s{sI}, 3
    v_add_u32 v17, s{sT1}, v15
    v_mul_u32_u24 v18, 10240, v17
    s_mul_i32 s{sT2}, s{sX}, 160
    v_lshl_add_u32 v19, v16, 3, s{sT2}
    v_add_u32 v18, v18, v19              ; row0*1280 + x*160 + q*8
    v_mov_b32 v20, {OOB}
    v_cmp_gt_u32 vcc, 40, v0
    v_cndmask_b32 v18, v20, v18, vcc
    v_add_u32 v21, 5120, v18
    v_subrev_u32 v22, 3840, v18
    s_mul_i32 s{sT2}, s{sX}, 640
    v_lshl_add_u32 v23, v16, 5, s{sT2}
    v_cndmask_b32 v23, v20, v23, vcc
    v_cmp_eq_u32 vcc, 0, v17
    v_cndmask_b32 v22, v22, v20, vcc
    v_cmp_gt_u32 vcc, 32, v0
    v_cndmask_b32 v24, v20, v3, vcc
    s_lshl_b32 s{sT0}, s{sRB}, 6
    s_lshl_b32 s{sT1}, s{sCJ}, 2
    s_add_u32 s{sT0}, s{sT0}, s{sT1}
    s_add_u32 s{sL}, s{sT0}, s{sW}       ; R/2
    s_mul_i32 s{sT3}, s{sL}, 2560
    s_waitcnt lgkmcnt(0)
    """)
    src = {sQ: 72, sK: 74, sV: 76, sSHK: 78, sSSMK: 80, sSSMD: 82, sW1: 86, sB1: 88, sW2: 90, sB2: 92, sOUT: 94, sWS: 96}
    for b, s in src.items():
        a(f"s_mov_b64 s[{b}:{b+1}], s[{s}:{s+1}]")
    a(f"s_load_dword s{sNON}, s[{sWS}:{sWS+1}], {NONCE_OFF}")
    stamp()
    for j in range(3): a(f"buffer_load_dwordx2 {vr(KR+2*j,2)}, v22, {srd(sK)}, 0 offen offset:{1280*j}")
    for j in range(8): a(f"buffer_load_dwordx2 {vr(KR+6+2*j,2)}, v{18 if j<4 else 21}, {srd(sK)}, 0 offen offset:{1280*(j%4)}")
    for j in range(8): a(f"buffer_load_dwordx2 {vr(VR_+2*j,2)}, v{18 if j<4 else 21}, {srd(sV)}, 0 offen offset:{1280*(j%4)}")
    for j in range(2): a(f"buffer_load_dwordx4 {vr(SW+4*j,4)}, v23, {srd(sSHK)}, 0 offen offset:{16*j}")
    for j in range(3): a(f"buffer_load_dwordx4 {vr(XS+4*j,4)}, v{3 if j<2 else 24}, {srd(sQ)}, s{sT3} offen offset:{1024*j}")
    a(f"""
    s_lshl_b32 s{sT1}, s{sW}, 4
    s_add_u32 s{sT1}, s{sT1}, s{sI}
    s_mul_i32 s{sM0}, s{sW}, 5120
    s_add_u32 s{sM0}, s{sM0}, {SPARE+10240}
    s_mul_i32 s{sT2}, s{sT1}, {32*1280}
    s_mul_i32 s{sT3}, s{sX}, 160
    s_add_u32 s{sT2}, s{sT2}, s{sT3}
    ; slot of ks: p = ks/7, e = ks%7
    s_mul_i32 s{sT3}, s{sT1}, 37
    s_lshr_b32 s{sT3}, s{sT3}, 8
    s_mul_i32 s{sT4}, s{sT3}, 7
    s_sub_u32 s{sT4}, s{sT1}, s{sT4}
    s_sub_u32 s{sT5}, s{sT1}, s{sT3}           ; e<3: ks - p
    s_cmp_gt_u32 s{sT4}, 3
    s_subb_u32 s{sT5}, s{sT5}, 0               ; e>3: ks - p - 1
    s_add_u32 s{sT3}, s{sT3}, 48
    s_cmp_eq_u32 s{sT4}, 3
    s_cselect_b32 s{sT5}, s{sT3}, s{sT5}
    s_sub_u32 s{sT3}, s{sT1}, 6
    s_cmp_ge_u32 s{sT1}, 42
    s_cselect_b32 s{sT5}, s{sT3}, s{sT5}
    s_mul_i32 s{sT3}, s{sX}, 54
    s_add_u32 s{sT3}, s{sT3}, s{sT5}
    s_mul_i32 s{sT3}, s{sT3}, 5120
    s_add_u32 s{sWO}, s{sT3}, {W2T_OFF}
    s_bitcmp1_b32 s{sW}, 0
    s_cselect_b32 s{sT1}, 99, s{sT1}
    s_cmp_ge_u32 s{sT1}, 54
    s_cselect_b32 s{sT2}, {OOB}, s{sT2}
    s_cselect_b32 s{sWO}, {OOB}, s{sWO}
    """)
    for j in range(5):
        a(f"""
    v_add_u32 v25, {64*j}, v0
    v_mul_u32_u24 v26, 6554, v25
    v_lshrrev_b32 v26, 16, v26
    v_mul_u32_u24 v27, 10, v26
    v_sub_u32 v27, v25, v27                  ; c = id%10
    v_mul_u32_u24 v26, 1280, v26
    v_lshl_add_u32 v26, v27, 4, v26
    s_add_u32 m0, s{sM0}, {1024*j}
    buffer_load_dwordx4 v26, {srd(sW2)}, s{sT2} offen lds
    """)
    BX, BW, BS = 244, 246, 248
    FS0, FS1, ACC, CS, SEL, B1R = 20, 56, 92, 148, 152, 228
    a(f"""
    s_lshl_b32 s{sT0}, s{sRB}, 7
    s_lshl_b32 s{sT1}, s{sW}, 5
    s_add_u32 s{sT0}, s{sT0}, s{sT1}
    v_lshrrev_b32 v25, 3, v0
    v_and_b32 v26, 7, v0
    v_xor_b32 v26, v26, v25
    v_add_u32 v25, s{sT0}, v25
    v_mul_u32_u24 v25, 1280, v25
    v_lshl_add_u32 v4, v26, 4, v25
    v_add_u32 v5, 10240, v4
    v_add_u32 v6, 20480, v4
    v_add_u32 v7, 30720, v4
    s_lshl_b32 s{sT0}, s{sP0}, 5
    s_mul_i32 s{sT1}, s{sW}, {16*3456}
    s_add_u32 s{sT0}, s{sT0}, s{sT1}
    """)
    for j in range(3):
        a(f"""
    v_add_u32 v25, {64*j}, v0
    v_mul_u32_u24 v26, 5462, v25
    v_lshrrev_b32 v26, 16, v26
    v_mul_u32_u24 v27, 12, v26
    v_sub_u32 v27, v25, v27                  ; c = id%12
    v_lshrrev_b32 v25, 2, v26
    v_and_b32 v25, 2, v25
    v_xor_b32 v27, v27, v25
    v_mul_u32_u24 v26, 3456, v26
    v_lshl_add_u32 v26, v27, 4, v26
    v_add_u32 v{8+j}, s{sT0}, v26
    """)
    a(f"""
    s_lshl_b32 s{sT0}, s{sSG}, 5
    s_add_u32 s{sT0}, s{sT0}, s{sT1}
    v_lshrrev_b32 v25, 1, v0
    v_lshrrev_b32 v26, 2, v0
    v_and_b32 v26, 4, v26
    v_xor_b32 v25, v25, v26
    v_and_b32 v25, 15, v25
    v_mul_u32_u24 v25, 3456, v25
    v_and_b32 v26, 1, v0
    v_lshl_add_u32 v25, v26, 4, v25
    v_add_u32 v11, s{sT0}, v25
    v_and_b32 v25, 7, v1
    v_xor_b32 v25, v25, v2
    v_lshlrev_b32 v25, 4, v25
    v_lshl_add_u32 v25, v1, 7, v25
    s_lshl_b32 s{sT0}, s{sW}, 12
    v_add_u32 v{BX}, s{sT0}, v25
    v_xor_b32 v{BX+1}, 64, v{BX}
    v_lshrrev_b32 v25, 2, v0
    v_and_b32 v25, 3, v25
    v_lshl_add_u32 v25, v2, 3, v25
    v_and_b32 v26, 3, v0
    v_lshlrev_b32 v26, 3, v26
    v_and_b32 v27, 1, v2
    v_lshlrev_b32 v27, 5, v27                ; 32*(g&1)
    v_mul_u32_u24 v28, 192, v25
    v_add3_u32 v28, v28, v26, v27
    v_add_u32 v{BW}, {WP_O}, v28
    v_lshlrev_b32 v29, 1, v27
    v_sub_u32 v{BW+1}, v{BW}, v29
    v_lshl_add_u32 v28, v25, 5, v26
    v_lshlrev_b32 v27, 2, v27                ; 128*(g&1)
    v_add_u32 v28, {WS_O}, v28
    v_add_u32 v{BS}, v28, v27
    v_sub_u32 v27, 128, v27
    v_add_u32 v{BS+1}, v28, v27
    """)
    sROT = sXO
    a(f"s_mov_b32 s{sLD}, 0")
    if opt.get("rot"):
        a(f"""
    s_and_b32 s{sT0}, s{sI}, 7
    s_lshr_b32 s{sT1}, s{sI}, 3
    s_mul_i32 s{sT1}, s{sT1}, 3
    s_add_u32 s{sLD}, s{sT0}, s{sT1}
    s_cmp_ge_u32 s{sLD}, 10
    s_cselect_b32 s{sT1}, 10, 0
    s_sub_u32 s{sLD}, s{sLD}, s{sT1}
    """)
    a(f"s_mov_b32 s{sNP}, 0")
    def dma_chunk():
        l = [f"""
    s_lshl_b32 s{sT0}, s{sLD}, 7
    s_mul_i32 s{sT1}, s{sLD}, {64*3456}
    s_lshl_b32 s{sT2}, s{sW}, 12
    s_add_u32 s{sT2}, s{sT2}, s{sNP}
    s_mov_b32 m0, s{sT2}
    s_mul_i32 s{sT3}, s{sW}, 3072
    buffer_load_dwordx4 v4, {srd(sQ)}, s{sT0} offen lds"""]
        for j in range(1, 4):
            l.append(f"s_add_u32 m0, s{sT2}, {1024*j}\ns_nop 0\nbuffer_load_dwordx4 v{4+j}, {srd(sQ)}, s{sT0} offen lds")
        for j in range(3):
            pre = f"s_add_u32 s{sT3}, s{sT3}, s{sNP}\n" if j == 0 else ""
            l.append(pre + f"s_add_u32 m0, s{sT3}, {WP_O+1024*j}\ns_nop 0\nbuffer_load_dwordx4 v{8+j}, {srd(sW1)}, s{sT1} offen lds")
        l.append(f"""
    s_lshl_b32 s{sT2}, s{sW}, 9
    s_add_u32 s{sT2}, s{sT2}, s{sNP}
    s_add_u32 m0, s{sT2}, {WS_O}
    s_mov_b32 exec_hi, 0
    buffer_load_dwordx4 v11, {srd(sW1)}, s{sT1} offen lds
    s_mov_b32 exec_hi, -1
    s_add_u32 s{sLD}, s{sLD}, 1
    s_cmp_eq_u32 s{sLD}, 10
    s_cselect_b32 s{sLD}, 0, s{sLD}
    s_add_u32 s{sNP}, s{sNP}, {SLOT}
    s_cmp_eq_u32 s{sNP}, {4*SLOT}
    s_cselect_b32 s{sNP}, 0, s{sNP}""")
        return l
    for x in dma_chunk(): a(x)
    a(f"""
    s_lshl_b32 s{sT0}, s{sP0}, 5
    s_lshl_b32 s{sT1}, s{sSG}, 5
    v_lshlrev_b32 v25, 3, v2
    """)
    for T in range(6): a(f"buffer_load_dwordx2 {vr(B1R+2*T,2)}, v25, {srd(sB1)}, s{sT0} offen offset:{32*T}")
    a(f"buffer_load_dwordx2 {vr(B1R+12,2)}, v25, {srd(sB1)}, s{sT1} offen")
    for x in dma_chunk(): a(x)
    NPRO = 8 + 7 + 8
    a(f"s_waitcnt vmcnt({NPRO})")
    stamp()
    a(f"v_mov_b32 v25, 0x3f803f80")
    S1, S2 = 26, 29
    for j in range(3):
        for d in range(4):
            c1 = "0" if d == 0 else f"v{S1+j}"; c2 = "0" if d == 0 else f"v{S2+j}"
            a(f"v_dot2_f32_bf16 v{S1+j}, v{XS+4*j+d}, v25, {c1}\nv_dot2_f32_bf16 v{S2+j}, v{XS+4*j+d}, v{XS+4*j+d}, {c2}")
    WPK, KU, U = 152, 168, 212
    for c in range(4):
        for j in range(4):
            r = SW + 2*c + (j >> 1)
            if j & 1: a(f"v_and_b32 v{WPK+4*j+c}, 0xffff0000, v{r}")
            else: a(f"v_lshlrev_b32 v{WPK+4*j+c}, 16, v{r}")
    a(f"""
    v_cmp_gt_u32 vcc, 16, v0
    v_cndmask_b32 v32, 0, v{S1+1}, vcc
    v_cndmask_b32 v33, 0, v{S2+1}, vcc
    v_cndmask_b32 v34, v{S1+1}, 0, vcc
    v_cndmask_b32 v35, v{S2+1}, 0, vcc
    v_add_f32 v32, v32, v{S1}
    v_add_f32 v33, v33, v{S2}
    v_add_f32 v34, v34, v{S1+2}
    v_add_f32 v35, v35, v{S2+2}
    """)
    for st in ("row_shr:1 row_mask:0xf bank_mask:0xf bound_ctrl:1", "row_shr:2 row_mask:0xf bank_mask:0xf bound_ctrl:1",
               "row_shr:4 row_mask:0xf bank_mask:0xf bound_ctrl:1", "row_shr:8 row_mask:0xf bank_mask:0xf bound_ctrl:1",
               "row_bcast:15 row_mask:0xa bank_mask:0xf", "row_bcast:31 row_mask:0xc bank_mask:0xf"):
        for r in range(32, 36): a(f"v_add_f32_dpp v{r}, v{r}, v{r} {st}")
    a(f"s_mov_b32 s{sT0}, 0x3acccccd\ns_mov_b32 s{sT1}, 0x3727c5ac")
    for m in (32, 34):
        r = m + 1
        a(f"""
    v_mul_f32 v{m}, s{sT0}, v{m}
    v_mul_f32 v{r}, s{sT0}, v{r}
    v_fma_f32 v{r}, -v{m}, v{m}, v{r}
    v_max_f32 v{r}, 0, v{r}
    """)
        rbf(r); a(f"v_add_f32 v{r}, s{sT1}, v{r}"); rbf(r); a(f"v_sqrt_f32 v{r}, v{r}"); rbf(m); rbf(r)
        a(f"v_rcp_f32 v{r}, v{r}")
    for rho in range(11): unp(KU + 4*rho, KR + 2*rho)
    U = 40
    for s in range(8):
        unp(36, VR_ + 2*s)
        for h in range(2):
            d = U + 4*s + 2*h
            a(f"v_pk_mul_f32 {vr(d,2)}, {vr(KU+4*(s+3)+2*h,2)}, {vr(WPK+2*h,2)}")
        for j in range(1, 4):
            for h in range(2):
                d = U + 4*s + 2*h
                a(f"v_pk_fma_f32 {vr(d,2)}, {vr(KU+4*(s+3-j)+2*h,2)}, {vr(WPK+4*j+2*h,2)}, {vr(d,2)}")
        for h in range(2):
            d = U + 4*s + 2*h
            a(f"v_pk_mul_f32 {vr(d,2)}, {vr(d,2)}, {vr(36+2*h,2)}")
    PK = 72
    for c in range(4):
        for d in range(4):
            a(f"v_cvt_pk_bf16_f32 v{PK+4*c+d}, v{U+4*(7-2*d)+c}, v{U+4*(6-2*d)+c}")
    a(f"""
    v_sub_u32 v25, 7, v15
    v_xor_b32 v25, v25, v16
    v_and_b32 v25, 7, v25
    v_lshlrev_b32 v25, 4, v25
    v_lshl_add_u32 v25, v16, 9, v25
    v_add_u32 v25, {SPARE}, v25
    s_mov_b32 exec_hi, 0xff
    """)
    for c in range(4): a(f"ds_write_b128 v25, {vr(PK+4*c,4)} offset:{128*c}")
    a(f"""
    s_mov_b32 exec_hi, -1
    v_lshrrev_b32 v25, 2, v0                  ; 4g + ((l>>2)&3)
    v_mul_u32_u24 v25, 160, v25
    v_add_u32 v25, s{sM0}, v25
    v_and_b32 v26, 3, v0
    v_lshl_add_u32 v27, v26, 3, v25
    v_lshl_add_u32 v25, v26, 4, v25
    """)
    W2R = 40
    for t in range(5):
        for j in range(2):
            if t < 4: a(f"ds_read_b64_tr_b16 {vr(W2R+4*t+2*j,2)}, v25 offset:{2560*j + 8*(t&1) + 64*(t>>1)}")
            else: a(f"ds_read_b64_tr_b16 {vr(W2R+4*t+2*j,2)}, v27 offset:{2560*j + 128}")
    a(f"""
    s_lshl_b32 s{sT0}, s{sL}, 4
    s_add_u32 s{sT0}, s{sT0}, {ST_OFF}
    s_mov_b32 exec_lo, 0
    s_mov_b32 exec_hi, 0x80000000
    buffer_store_dwordx4 v[32:35], off, {srd(sWS)}, s{sT0} sc0 sc1
    s_mov_b64 exec, -1
    s_add_u32 s{sT0}, s{sWO}, 4096
    s_waitcnt lgkmcnt(0)
    s_mul_i32 s{sNON}, s{sNON}, 1664525
    s_add_u32 s{sNON}, s{sNON}, 1013904223
    s_barrier
    """)
    for t in range(5):
        if t < 4: a(f"buffer_store_dwordx4 {vr(W2R+4*t,4)}, v3, {srd(sWS)}, s{sWO} offen offset:{1024*t} sc0 sc1")
        else: a(f"buffer_store_dwordx4 {vr(W2R+4*t,4)}, v3, {srd(sWS)}, s{sT0} offen sc0 sc1")
    for j in range(3):
        a(f"""
    s_add_u32 s{sT0}, s{sW}, {4*j}
    s_lshl_b32 s{sT0}, s{sT0}, 3
    v_lshrrev_b32 v25, 3, v0
    v_add_u32 v25, s{sT0}, v25
    v_and_b32 v26, 7, v0
    v_lshrrev_b32 v27, 2, v25
    v_xor_b32 v27, v27, v26
    v_and_b32 v27, 7, v27
    v_lshlrev_b32 v27, 4, v27
    v_min_u32 v28, 79, v25
    v_lshl_add_u32 v27, v28, 7, v27
    v_add_u32 v27, {SPARE}, v27
    ds_read_b128 {vr(PK+4*j,4)}, v27
    v_lshlrev_b32 v28, 12, v25
    v_lshl_add_u32 v28, v26, 4, v28
    v_cmp_gt_u32 vcc, 80, v25
    v_cndmask_b32 v{88+j}, v20, v28, vcc
    """)
    a(f"""
    s_mul_i32 s{sT0}, s{sX}, {80*4096}
    s_lshl_b32 s{sT1}, s{sI}, 7
    s_sub_u32 s{sT0}, s{sT0}, s{sT1}
    s_add_u32 s{sT0}, s{sT0}, {KVT_OFF + 1984*2}
    s_waitcnt lgkmcnt(0)
    """)
    for j in range(3): a(f"buffer_store_dwordx4 {vr(PK+4*j,4)}, v{88+j}, {srd(sWS)}, s{sT0} offen sc0 sc1")
    for x in dma_chunk(): a(x)
    for r in range(ACC, CS+4): a(f"v_mov_b32 v{r}, 0")
    a("v_mov_b32 v25, 0x3f803f80")
    for T in range(7):
        a(f"v_cmp_eq_u32 vcc, {T}, v1")
        a(f"v_cndmask_b32 v{SEL+4*T}, 0, v25, vcc")
        for r in range(1, 4): a(f"v_mov_b32 v{SEL+4*T+r}, v{SEL+4*T}")
    def reads(sig):
        F = FS1 if sig else FS0
        l = [f"ds_read_b128 {vr(F+4*mt,4)}, v{BX+sig} offset:{2048*mt}" for mt in range(2)]
        for T in range(6):
            for j in range(2):
                l.append(f"ds_read_b64_tr_b16 {vr(F+8+4*T+2*j,2)}, v{BW+(T&1)} offset:{6144*sig+768*j+32*T}")
        for j in range(2):
            l.append(f"ds_read_b64_tr_b16 {vr(F+8+24+2*j,2)}, v{BS+j} offset:{1024*sig}")
        return l
    a(f"s_waitcnt vmcnt({8+9+8})\ns_barrier")
    r0 = reads(0)
    for x in r0[:12]: a(x)
    a("s_waitcnt lgkmcnt(4)")
    for x in r0[12:]: a(x)
    stamp()
    a(f"s_mov_b32 s{sC}, 0\nL_g1:")
    def step(sig, extra):
        F = FS1 if sig else FS0
        a("s_waitcnt lgkmcnt(0)")
        k = 0
        for T in range(7):
            for mt in range(2):
                ac = vr(ACC+(mt*7+T)*4, 4)
                a(f"v_mfma_f32_16x16x32_bf16 {ac}, {vr(F+8+4*T,4)}, {vr(F+4*mt,4)}, {ac}")
                for _ in range(2 if k < 2 else 1):
                    if extra and not opt.get("x_nog1r"): a(extra.pop(0))
                if k == 9: a("s_waitcnt lgkmcnt(4)")
                k += 1
        if not opt.get("x_nog1r"):
            for x in extra: a(x)
        a(f"s_and_b32 s{sT0}, s{sC}, 1\ns_lshl_b32 s{sT0}, s{sT0}, 1\ns_add_u32 s{sT0}, s{sT0}, {sig}\ns_cmp_lg_u32 s{sW}, s{sT0}\ns_cbranch_scc1 L_nocs{sig}")
        for T in range(7):
            a(f"v_mfma_f32_16x16x32_bf16 {vr(CS,4)}, {vr(F+8+4*T,4)}, {vr(SEL+4*T,4)}, {vr(CS,4)}")
        a(f"L_nocs{sig}:")
    step(0, reads(1))
    a(f"""
    s_and_b32 s{sT0}, s{sC}, 3
    s_cmp_eq_u32 s{sT0}, 3
    s_movk_i32 s{sT0}, {SLOT}
    s_cselect_b32 s{sT0}, {-3*SLOT}, s{sT0}
    """)
    for r in range(BX, BX+6): a(f"v_add_u32 v{r}, s{sT0}, v{r}")
    a(f"""
    s_cmp_ge_u32 s{sC}, 8
    s_cbranch_scc1 L_g1_w0
    s_waitcnt vmcnt(8)
    s_branch L_g1_w1
L_g1_w0:
    s_waitcnt vmcnt(0)
L_g1_w1:
    s_waitcnt lgkmcnt(0)
    s_barrier
    s_or_b32 s{sT0}, s{sC}, s{sW}
    s_cmp_lg_u32 s{sT0}, 0
    s_cbranch_scc1 L_g1_nosig
    s_lshl_b32 s{sT0}, s{sX}, 5
    s_add_u32 s{sT0}, s{sT0}, s{sI}
    s_lshl_b32 s{sT0}, s{sT0}, 2
    s_add_u32 s{sT0}, s{sT0}, {FP_OFF}
    """)
    flag_store(sT0)
    a(f"""
    s_lshl_b32 s{sT0}, s{sRB}, 5
    s_add_u32 s{sT0}, s{sT0}, s{sCJ}
    s_lshl_b32 s{sT0}, s{sT0}, 2
    s_add_u32 s{sT0}, s{sT0}, {FS_OFF}
    """)
    flag_store(sT0)
    a(f"""
L_g1_nosig:
    s_cmp_ge_u32 s{sC}, 7
    s_cbranch_scc1 L_g1_nodma
    """)
    if not opt.get("x_nog1d"):
        for x in dma_chunk(): a(x)
    a("L_g1_nodma:")
    step(1, reads(0))
    a(f"""
    s_add_u32 s{sC}, s{sC}, 1
    s_cmp_lt_u32 s{sC}, 10
    s_cbranch_scc1 L_g1
    """)
    stamp()
    a(f"""
    s_lshl_b32 s{sT0}, s{sW}, 10
    s_add_u32 s{sT0}, s{sT0}, {SPARE}
    v_add_u32 v15, s{sT0}, v3
    v_and_b32 v12, 31, v0
    v_lshlrev_b32 v12, 2, v12
    v_lshlrev_b32 v13, 2, v1
    s_nop 1
    ds_write_b128 v15, {vr(CS,4)}
    s_lshl_b32 s{sT0}, s{sX}, 7
    s_add_u32 s{sT0}, s{sT0}, {FP_OFF}
    s_lshl_b32 s{sT1}, s{sNI}, 7
    s_add_u32 s{sT1}, s{sT1}, {FP_OFF}
    s_lshl_b32 s{sT2}, s{sRB}, 7
    s_add_u32 s{sT2}, s{sT2}, {FS_OFF}
    """)
    poll("P", [(12, sT0, 1), (12, sT1, 1), (13, sT2, 1)])
    MN = 72
    NM = 76
    a(f"""
    s_lshl_b32 s{sT0}, s{sRB}, 7
    s_lshl_b32 s{sT1}, s{sW}, 5
    s_add_u32 s{sT0}, s{sT0}, s{sT1}
    s_lshl_b32 s{sT0}, s{sT0}, 3
    s_add_u32 s{sT0}, s{sT0}, {ST_OFF}
    v_lshlrev_b32 v14, 3, v1
    buffer_load_dwordx2 {vr(MN,2)}, v14, {srd(sWS)}, s{sT0} offen sc1
    buffer_load_dwordx2 {vr(MN+2,2)}, v14, {srd(sWS)}, s{sT0} offen offset:128 sc1
    s_waitcnt lgkmcnt(0)
    s_barrier
    v_add_u32 v15, {SPARE}, v3
    """)
    CP = 52
    for w in range(4): a(f"ds_read_b128 {vr(CP+4*w,4)}, v15 offset:{1024*w}")
    stamp()
    KVR, K0R, DR = 20, 36, 38
    a(f"""
    s_mul_i32 s{sM0}, s{sW}, {CONV_STRIDE}
    s_cmp_ge_u32 s{sW}, s{sCNT}
    s_cbranch_scc1 L_noconv_in
    s_lshl_b32 s{sT0}, s{sCH}, 12
    s_add_u32 s{sT1}, s{sT0}, {KVT_OFF}
    """)
    for j in range(4): a(f"buffer_load_dwordx4 {vr(KVR+4*j,4)}, v3, {srd(sWS)}, s{sT1} offen offset:{1024*j} sc1")
    a(f"buffer_load_dwordx2 {vr(K0R,2)}, off, {srd(sSSMK)}, s{sT0}")
    a(f"s_lshl_b32 s{sT1}, s{sCH}, 1\nbuffer_load_ushort v{DR}, off, {srd(sSSMD)}, s{sT1}")
    for cp in range(4):
        a(f"s_add_u32 m0, s{sM0}, {cp*4160+32}\ns_add_u32 s{sT1}, s{sT0}, {2*cp}")
        for j in range(4): a(f"buffer_load_dwordx4 v3, {srd(sSSMK)}, s{sT1} offen offset:{1024*j} lds")
    a(f"""
    s_waitcnt vmcnt(22)
    s_branch L_conv_in_done
L_noconv_in:
    s_waitcnt vmcnt(0)
L_conv_in_done:
    s_waitcnt lgkmcnt(0)
    v_mul_f32 v{NM}, -v{MN}, v{MN+1}
    v_mul_f32 v{NM+2}, -v{MN+2}, v{MN+3}
    v_pk_add_f32 {vr(CP,2)}, {vr(CP,2)}, {vr(CP+4,2)}
    v_pk_add_f32 {vr(CP+2,2)}, {vr(CP+2,2)}, {vr(CP+6,2)}
    v_pk_add_f32 {vr(CP+8,2)}, {vr(CP+8,2)}, {vr(CP+12,2)}
    v_pk_add_f32 {vr(CP+10,2)}, {vr(CP+10,2)}, {vr(CP+14,2)}
    v_pk_add_f32 {vr(CP,2)}, {vr(CP,2)}, {vr(CP+8,2)}
    v_pk_add_f32 {vr(CP+2,2)}, {vr(CP+2,2)}, {vr(CP+10,2)}
    """)
    k0 = -2.0 * math.log2(math.e) * math.sqrt(2.0/math.pi)
    C0, C1, ONE, CST, B1F, TT = 80, 82, 84, 56, 60, 86
    a(f"v_mov_b32 v{C0}, {f2u(k0):#x}\nv_mov_b32 v{C1}, {f2u(k0*0.044715):#x}\nv_mov_b32 v{ONE}, 1.0")
    a(f"""
    s_lshl_b32 s{sT0}, s{sRB}, 1
    s_lshr_b32 s{sT1}, s{sW}, 1
    s_add_u32 s{sT0}, s{sT0}, s{sT1}
    s_mul_i32 s{sT0}, s{sT0}, {54*4096}
    s_and_b32 s{sT1}, s{sW}, 1
    s_lshl_b32 s{sT1}, s{sT1}, 11
    s_add_u32 s{sT0}, s{sT0}, s{sT1}
    s_add_u32 s{sT0}, s{sT0}, {H_OFF}
    s_mul_i32 s{sT1}, s{sCJ}, {3*4096}
    s_add_u32 s{sT1}, s{sT1}, s{sT0}
    s_lshr_b32 s{sT2}, s{sCJ}, 1
    s_add_u32 s{sT2}, s{sT2}, 48
    s_lshl_b32 s{sT2}, s{sT2}, 12
    s_add_u32 s{sT2}, s{sT2}, s{sT0}
    s_and_b32 s{sT3}, s{sCJ}, 1
    s_lshl_b32 s{sT3}, s{sT3}, 9
    s_add_u32 s{sT2}, s{sT2}, s{sT3}
    s_cmp_lt_u32 s{sCJ}, 12
    s_cselect_b32 s{sT2}, s{sT2}, {OOB}
    v_lshlrev_b32 v14, 3, v0
    """)
    HP = 152
    for T in range(7):
        for r in range(4): a(f"v_mov_b32_dpp v{CST+r}, v{CP+r} row_newbcast:{T} row_mask:0xf bank_mask:0xf")
        unp(B1F, B1R + 2*T)
        for mt in range(2):
            ac = ACC + (mt*7+T)*4
            for h in range(2):
                a(f"v_pk_fma_f32 {vr(TT+2*h,2)}, {vr(CST+2*h,2)}, {vr(NM+2*mt,2)}, {vr(B1F+2*h,2)} op_sel_hi:[1,0,1]")
            for h in range(2):
                a(f"v_pk_fma_f32 {vr(ac+2*h,2)}, {vr(ac+2*h,2)}, {vr(MN+2*mt,2)}, {vr(TT+2*h,2)} op_sel:[0,1,0] op_sel_hi:[1,1,1]")
            for h in range(2): a(f"v_pk_mul_f32 {vr(TT+2*h,2)}, {vr(ac+2*h,2)}, {vr(ac+2*h,2)}")
            for h in range(2): a(f"v_pk_fma_f32 {vr(TT+2*h,2)}, {vr(TT+2*h,2)}, {vr(C1,2)}, {vr(C0,2)} op_sel_hi:[1,0,0]")
            for h in range(2): a(f"v_pk_mul_f32 {vr(TT+2*h,2)}, {vr(TT+2*h,2)}, {vr(ac+2*h,2)}")
            for r in range(4): a(f"v_exp_f32 v{TT+r}, v{TT+r}")
            for h in range(2): a(f"v_pk_add_f32 {vr(TT+2*h,2)}, {vr(TT+2*h,2)}, {vr(ONE,2)} op_sel_hi:[1,0]")
            for r in range(4): a(f"v_rcp_f32 v{TT+r}, v{TT+r}")
            for h in range(2): a(f"v_pk_mul_f32 {vr(ac+2*h,2)}, {vr(ac+2*h,2)}, {vr(TT+2*h,2)}")
            for h in range(2): a(f"v_cvt_pk_bf16_f32 v{HP+(mt*8+T)*2+h}, v{ac+2*h}, v{ac+2*h+1}")
            if T & 1:
                a(f"buffer_store_dwordx4 {vr(HP+(mt*8+T-1)*2,4)}, v3, {srd(sWS)}, s{sT1} offen offset:{1024*mt} sc0 sc1")
                if mt == 1: a(f"s_add_u32 s{sT1}, s{sT1}, 4096")
            if T == 6:
                a(f"buffer_store_dwordx2 {vr(HP+(mt*8+6)*2,2)}, v14, {srd(sWS)}, s{sT2} offen offset:{1024*mt} sc0 sc1")
    a(f"""
    s_waitcnt vmcnt(0)
    s_barrier
    s_cmp_lg_u32 s{sW}, 0
    s_cbranch_scc1 L_nosigH
    s_lshl_b32 s{sT0}, s{sRB}, 5
    s_add_u32 s{sT0}, s{sT0}, s{sCJ}
    s_lshl_b32 s{sT0}, s{sT0}, 2
    s_add_u32 s{sT0}, s{sT0}, {FH_OFF}
    """)
    flag_store(sT0)
    a("L_nosigH:")
    stamp()
    a(f"""
    s_mul_i32 s{sT1}, s{sNI}, 54
    s_add_u32 s{sT1}, s{sT1}, s{sW}
    s_mul_i32 s{sWO}, s{sT1}, 5120
    s_add_u32 s{sWO}, s{sWO}, {W2T_OFF}
    s_lshl_b32 s{sL}, s{sW}, 1
    s_sub_u32 s{sL}, 7, s{sL}
    v_add_u32 v4, 4096, v3
    """)
    W2V = 216
    def w2dst(j, t):
        return ar((j*5+t)*4, 4) if j < 12 else vr(W2V + ((j-12)*5+t)*4, 4)
    w2loads = []
    for j in range(14):
        for t in range(5):
            pre = ""
            if j == 10 and t == 0: pre = "s_waitcnt vmcnt(36)\n"
            if j == 13 and t == 0:
                pre = f"s_cmp_ge_u32 s{sW}, 2\ns_cselect_b32 s{sWO}, s{sWO}, {OOB}\n"
            post = ""
            if t == 4 and j < 13:
                post = f"\ns_add_u32 s{sWO}, s{sWO}, {4*5120}" if j != 11 else f"\ns_mul_i32 s{sT3}, s{sL}, 5120\ns_add_u32 s{sWO}, s{sWO}, s{sT3}"
            w2loads.append(pre + f"buffer_load_dwordx4 {w2dst(j,t)}, v{3 if t<4 else 4}, {srd(sWS)}, s{sWO} offen offset:{1024*(t%4)} sc1" + post)
    a(f"""
    s_cmp_ge_u32 s{sW}, s{sCNT}
    s_cbranch_scc0 L_conv
    """)
    for x in w2loads: a(x)
    a(f"""
    s_cmp_lg_u32 s2, 0
    s_cbranch_scc1 L_conv_done
    s_cmp_lg_u32 s{sW}, 3
    s_cbranch_scc1 L_conv_done
    s_mov_b32 s{sT0}, {FP_OFF}
    """)
    poll("N", [(3, sT0, 4)])
    a(f"s_mov_b32 s{sT0}, {NONCE_OFF}")
    flag_store(sT0)
    a("s_branch L_conv_done\nL_conv:")
    CA, CB, CACC = (40, 104), (72, 136), 168
    a(f"""
    s_add_u32 s{sT0}, s{sM0}, 16640
    v_add_u32 v15, s{sT0}, v3
    v_mov_b32 v8, 0
    v_mov_b32 v9, 0
    v_mov_b32 v10, 0
    v_mov_b32 v11, 0
    """)
    for j in range(4): a(f"ds_write_b128 v15, {vr(KVR+4*j,4)} offset:{1024*j}")
    a(f"""
    s_mov_b64 exec, 0x3fffffff
    ds_write_b128 v15, v[8:11] offset:4096
    v_lshrrev_b32 v16, 1, v0
    v_lshlrev_b32 v17, 4, v16
    v_sub_u32 v17, 48, v17
    v_lshlrev_b64 v[10:11], v17, {vr(K0R,2)}
    v_lshlrev_b64 v[10:11], 16, v[10:11]
    v_and_b32 v17, 1, v0
    v_cmp_eq_u32 vcc, 1, v17
    v_cndmask_b32 v10, 0, v10, vcc
    v_cndmask_b32 v11, 0, v11, vcc
    v_mul_u32_u24 v16, 4160, v16
    v_lshl_add_u32 v16, v17, 4, v16
    v_add_u32 v16, s{sM0}, v16
    s_mov_b64 exec, 0xff
    ds_write_b128 v16, v[8:11]
    s_mov_b64 exec, -1
    v_add_u32 v16, 1, v1
    v_and_b32 v17, 3, v16
    v_mul_u32_u24 v17, 4160, v17
    v_and_b32 v16, 28, v16
    v_lshl_add_u32 v17, v16, 1, v17
    v_lshl_add_u32 v17, v2, 4, v17
    v_add_u32 v5, s{sM0}, v17
    v_lshlrev_b32 v16, 5, v1
    v_lshl_add_u32 v12, v2, 3, v16
    v_add_u32 v12, s{sM0}, v12
    v_add_u32 v13, s{sM0}, v3
    v_sub_u32 v16, 480, v16
    v_lshl_add_u32 v17, v2, 4, v16
    v_add_u32 v6, s{sT0}, v17
    v_lshlrev_b32 v17, 3, v2
    v_sub_u32 v17, v16, v17
    v_add_u32 v17, 24, v17
    v_add_u32 v7, s{sT0}, v17
    v_lshlrev_b32 v{DR}, 16, v{DR}
    s_waitcnt lgkmcnt(0)
    """)
    def creads(n):
        A_, B_ = CA[n & 1], CB[n & 1]
        l = []
        for i in range(8):
            l.append(f"ds_read_b128 {vr(B_+4*i,4)}, v6 offset:{64*n+512*i}")
            l.append(f"ds_read_b64 {vr(A_+4*i,2)}, v5 offset:{64*n+512*i}")
            l.append(f"ds_read_b64 {vr(A_+4*i+2,2)}, v5 offset:{64*n+512*i+8}")
        return l
    first = creads(0)
    for x in first[:12]: a(x)
    a("s_waitcnt lgkmcnt(3)")
    for x in first[12:]: a(x)
    pend = list(w2loads)
    UR = 40
    for n in range(8):
        A_, B_ = CA[n & 1], CB[n & 1]
        nxt = creads(n+1) if n < 7 else [f"ds_read_b64 {vr(UR+2*jt,2)}, v7 offset:{512*(7-jt)}" for jt in range(8)]
        a("s_waitcnt lgkmcnt(0)")
        k = 0
        for ip in range(8):
            for i in range(ip+1):
                ac = vr(CACC + 4*(7-(ip-i)), 4)
                c = "0" if (n == 0 and i == 0) else ac
                a(f"v_mfma_f32_16x16x32_bf16 {ac}, {vr(A_+4*i,4)}, {vr(B_+4*ip,4)}, {c}")
                k += 1
                if nxt and not opt.get("x_nocr"):
                    a(nxt.pop(0))
                    if k == 12: a("s_waitcnt lgkmcnt(3)")
                if k % 4 == 0 and pend and not opt.get("x_now2"): a(pend.pop(0))
    stamp()
    for x in pend: a(x)
    a(f"""
    s_lshl_b32 s{sT0}, s{sCH}, 12
    s_add_u32 s{sT0}, s{sT0}, {Z_OFF}
    s_waitcnt lgkmcnt(0)
    """)
    for jt in range(8):
        ac = CACC + 4*jt; u = UR + 2*jt
        a(f"""
    v_and_b32 v8, 0xffff0000, v{u+1}
    v_lshlrev_b32 v9, 16, v{u+1}
    v_and_b32 v10, 0xffff0000, v{u}
    v_lshlrev_b32 v11, 16, v{u}
    v_pk_fma_f32 {vr(ac,2)}, v[8:9], {vr(DR,2)}, {vr(ac,2)} op_sel_hi:[1,0,1]
    v_pk_fma_f32 {vr(ac+2,2)}, v[10:11], {vr(DR,2)}, {vr(ac+2,2)} op_sel_hi:[1,0,1]
    v_cvt_pk_bf16_f32 v{u}, v{ac}, v{ac+1}
    v_cvt_pk_bf16_f32 v{u+1}, v{ac+2}, v{ac+3}
    ds_write_b64 v12, {vr(u,2)} offset:{512*jt}
    """)
    a("s_waitcnt lgkmcnt(0)")
    for j in range(4): a(f"ds_read_b128 {vr(60+4*j,4)}, v13 offset:{1024*j}")
    for j in range(4):
        a(f"s_waitcnt lgkmcnt({3-j})\nbuffer_store_dwordx4 {vr(60+4*j,4)}, v3, {srd(sWS)}, s{sT0} offen offset:{1024*j} sc0 sc1")
    a(f"""
    s_mul_i32 s{sT0}, s{sX}, 16
    s_add_u32 s{sT0}, s{sT0}, s{sCH}
    s_lshl_b32 s{sT0}, s{sT0}, 2
    s_add_u32 s{sT0}, s{sT0}, {FZ_OFF}
    s_waitcnt vmcnt(0)
    """)
    flag_store(sT0)
    a("L_conv_done:")
    stamp()
    a(f"""
    s_lshr_b32 s{sT0}, s{sMB}, 1
    s_lshl_b32 s{sT0}, s{sT0}, 7
    s_add_u32 s{sT0}, s{sT0}, {FH_OFF}
    v_lshlrev_b32 v13, 2, v1
    """)
    poll("H", [(13, sT0, 1)])
    stamp()
    GA, HF, DEPTH = 40, 120, 4
    a(f"""
    s_mul_i32 s{sT1}, s{sMB}, 54
    s_add_u32 s{sT1}, s{sT1}, s{sW}
    s_lshl_b32 s{sXO}, s{sT1}, 12
    s_add_u32 s{sXO}, s{sXO}, {H_OFF}
    v_lshlrev_b32 v14, 3, v0
    """)
    for mu in range(4):
        a(f"s_xor_b32 s{sT0}, s{sW}, {mu}\ns_lshl_b32 s{sT0}, s{sT0}, 10\nv_add_u32 v{8+mu}, s{sT0}, v3\nv_add_u32 v{184+mu}, s{sT0}, v14")
    def hload(j):
        if j == 13: a(f"s_cmp_ge_u32 s{sW}, 2\ns_cselect_b32 s{sXO}, s{sXO}, {OOB}")
        for mu in range(4):
            d = HF+16*(j%DEPTH)+4*mu
            if j < 12: a(f"buffer_load_dwordx4 {vr(d,4)}, v{8+mu}, {srd(sWS)}, s{sXO} offen sc1")
            else:
                for hf in range(2): a(f"buffer_load_dwordx2 {vr(d+2*hf,2)}, v{184+mu}, {srd(sWS)}, s{sXO} offen offset:{512*hf} sc1")
        if j == 11: a(f"s_lshl_b32 s{sT3}, s{sL}, 12\ns_add_u32 s{sXO}, s{sXO}, s{sT3}")
        elif j < 13: a(f"s_add_u32 s{sXO}, s{sXO}, 16384")
    nld = lambda j: 4 if j < 12 else 8
    XR, B2R, STR = 20, 30, 12
    for j in range(DEPTH): hload(j)
    a(f"""
    s_lshl_b32 s{sT0}, s{sMB}, 6
    s_lshl_b32 s{sT1}, s{sW}, 4
    s_add_u32 s{sT0}, s{sT0}, s{sT1}
    v_add_u32 v15, s{sT0}, v1
    v_lshlrev_b32 v16, 3, v15
    v_mul_u32_u24 v15, 1280, v15
    s_mul_i32 s{sCJ}, s{sNI}, 160
    v_lshlrev_b32 v17, 4, v2
    v_lshlrev_b32 v18, 3, v2
    v_add_u32 v5, v15, v17
    v_add_u32 v6, v15, v18
    s_mov_b32 s{sT1}, {ST_OFF}
    """)
    epi = [f"buffer_load_dwordx2 {vr(STR,2)}, v16, {srd(sWS)}, s{sT1} offen sc1",
           f"buffer_load_dwordx4 {vr(XR,4)}, v5, {srd(sQ)}, s{sCJ} offen",
           f"buffer_load_dwordx4 {vr(XR+4,4)}, v5, {srd(sQ)}, s{sCJ} offen offset:64",
           f"buffer_load_dwordx2 {vr(XR+8,2)}, v6, {srd(sQ)}, s{sCJ} offen offset:128",
           f"buffer_load_dwordx4 {vr(B2R,4)}, v17, {srd(sB2)}, s{sCJ} offen",
           f"buffer_load_dwordx4 {vr(B2R+4,4)}, v17, {srd(sB2)}, s{sCJ} offen offset:64",
           f"buffer_load_dwordx2 {vr(B2R+8,2)}, v18, {srd(sB2)}, s{sCJ} offen offset:128"]
    fifo = [("h", j) for j in range(DEPTH) for _ in range(nld(j))]
    for j in range(14):
        last = max(i for i, e in enumerate(fifo) if e == ("h", j))
        a(f"s_waitcnt vmcnt({len(fifo)-1-last})")
        if j == 13: a(f"s_cmp_lt_u32 s{sW}, 2\ns_cbranch_scc1 L_g2_done")
        for mu in range(4):
            for t in range(5):
                ac = vr(GA + (mu*5+t)*4, 4)
                a(f"v_mfma_f32_16x16x32_bf16 {ac}, {w2dst(j,t)}, {vr(HF+16*(j%DEPTH)+4*mu,4)}, {'0' if j==0 else ac}")
        if j + DEPTH < 14:
            hload(j + DEPTH); fifo += [("h", j+DEPTH)] * nld(j+DEPTH)
        if j == 9:
            for x in epi: a(x)
            fifo += [("e", 0)] * len(epi)
    a("L_g2_done:")
    stamp()
    for mu in range(1, 4):
        a(f"s_xor_b32 s{sT0}, s{sW}, {mu}\ns_mul_i32 s{sT0}, s{sT0}, 15360\ns_add_u32 s{sT0}, s{sT0}, {65536 + (mu-1)*5120}\nv_add_u32 v{8+mu}, s{sT0}, v3")
    for mu in range(1, 4):
        for t in range(5): a(f"ds_write_b128 v{8+mu}, {vr(GA+(mu*5+t)*4,4)} offset:{1024*t}")
    a(f"""
    s_mul_i32 s{sT0}, s{sNI}, 384
    s_add_u32 s{sT0}, s{sT0}, {FZ_OFF}
    v_min_u32 v14, 39, v0
    v_lshlrev_b32 v14, 3, v14
    """)
    poll("Z", [(14, sT0, 2)])
    stamp()
    ZR, ZT = 120, 132
    a(f"""
    s_mul_i32 s{sT0}, s{sNI}, {80*4096}
    s_lshl_b32 s{sT1}, s{sMB}, 7
    s_add_u32 s{sT0}, s{sT0}, s{sT1}
    s_lshl_b32 s{sT1}, s{sW}, 5
    s_add_u32 s{sT0}, s{sT0}, s{sT1}
    s_add_u32 s{sT0}, s{sT0}, {Z_OFF}
    v_lshrrev_b32 v15, 1, v0
    v_lshlrev_b32 v15, 12, v15
    v_and_b32 v16, 1, v0
    v_lshl_add_u32 v15, v16, 4, v15
    v_add_u32 v16, {32*4096}, v15
    v_add_u32 v17, {64*4096}, v15
    buffer_load_dwordx4 {vr(ZR,4)}, v15, {srd(sWS)}, s{sT0} offen sc1
    buffer_load_dwordx4 {vr(ZR+4,4)}, v16, {srd(sWS)}, s{sT0} offen sc1
    s_mov_b32 exec_hi, 0
    buffer_load_dwordx4 {vr(ZR+8,4)}, v17, {srd(sWS)}, s{sT0} offen sc1
    s_mov_b32 exec_hi, -1
    s_mul_i32 s{sT0}, s{sW}, 3072
    s_add_u32 s{sT0}, s{sT0}, {131072}
    v_add_u32 v15, s{sT0}, v3
    s_waitcnt vmcnt(0)
    ds_write_b128 v15, {vr(ZR,4)}
    ds_write_b128 v15, {vr(ZR+4,4)} offset:1024
    ds_write_b128 v15, {vr(ZR+8,4)} offset:2048
    v_lshrrev_b32 v16, 2, v0
    v_and_b32 v17, 3, v0
    v_lshlrev_b32 v17, 3, v17
    v_add_u32 v17, s{sT0}, v17
    v_lshl_add_u32 v18, v16, 5, v17
    v_lshl_add_u32 v16, v2, 2, v16
    v_lshl_add_u32 v16, v16, 5, v17
    s_waitcnt lgkmcnt(0)
    """)
    for t in range(5):
        if t < 4: a(f"ds_read_b64_tr_b16 {vr(ZT+2*t,2)}, v16 offset:{32*(32*(t>>1)+4*(t&1))}")
        else: a(f"ds_read_b64_tr_b16 {vr(ZT+2*t,2)}, v18 offset:{32*64}")
    a("s_waitcnt lgkmcnt(0)")
    for t in range(5):
        ac = GA + 4*t
        unp(144, XR + 2*t); unp(148, ZT + 2*t); unp(152, B2R + 2*t)
        for h in range(2):
            a(f"v_pk_add_f32 {vr(156+2*h,2)}, {vr(144+2*h,2)}, {vr(STR,2)} op_sel_hi:[1,0] neg_lo:[0,1] neg_hi:[0,1]")
        for h in range(2):
            a(f"v_pk_mul_f32 {vr(156+2*h,2)}, {vr(156+2*h,2)}, {vr(STR,2)} op_sel:[0,1] op_sel_hi:[1,1]")
        for h in range(2):
            a(f"v_pk_fma_f32 {vr(144+2*h,2)}, {vr(156+2*h,2)}, {vr(148+2*h,2)}, {vr(144+2*h,2)}")
        for h in range(2):
            a(f"v_pk_add_f32 {vr(ac+2*h,2)}, {vr(ac+2*h,2)}, {vr(152+2*h,2)}")
        for h in range(2):
            a(f"v_pk_add_f32 {vr(ac+2*h,2)}, {vr(ac+2*h,2)}, {vr(144+2*h,2)}")
    a(f"""
    s_barrier
    s_mul_i32 s{sT0}, s{sW}, 15360
    s_add_u32 s{sT0}, s{sT0}, 65536
    v_add_u32 v15, s{sT0}, v3
    """)
    for mu in range(1, 4):
        for t in range(5): a(f"ds_read_b128 {vr(GA+(mu*5+t)*4,4)}, v15 offset:{(mu-1)*5120+1024*t}")
    for mu in range(1, 4):
        a(f"s_waitcnt lgkmcnt({5*(3-mu)})")
        for t in range(5):
            for h in range(2):
                a(f"v_pk_add_f32 {vr(GA+4*t+2*h,2)}, {vr(GA+4*t+2*h,2)}, {vr(GA+(mu*5+t)*4+2*h,2)}")
    for t in range(5):
        for h in range(2): a(f"v_cvt_pk_bf16_f32 v{XR+2*t+h}, v{GA+4*t+2*h}, v{GA+4*t+2*h+1}")
    a(f"""
    buffer_store_dwordx4 {vr(XR,4)}, v5, {srd(sOUT)}, s{sCJ} offen
    buffer_store_dwordx4 {vr(XR+4,4)}, v5, {srd(sOUT)}, s{sCJ} offen offset:64
    buffer_store_dwordx2 {vr(XR+8,2)}, v6, {srd(sOUT)}, s{sCJ} offen offset:128
    """)
    dbl = [k for k in opt if k.startswith("dbl:")]
    if dbl:
        _, i, j, mult = dbl[0].split(":"); i, j, mult = int(i), int(j), int(mult)
        a("s_waitcnt vmcnt(0)")
        stamp()
        a(f"""
    s_waitcnt lgkmcnt(0)
    s_sub_u32 s{sT0}, s{sTS+2*j}, s{sTS+2*i}
    s_mul_i32 s{sT0}, s{sT0}, {mult}
    s_min_u32 s{sT0}, s{sT0}, 100000
L_dbl:
    s_memrealtime s[{sT4}:{sT5}]
    s_waitcnt lgkmcnt(0)
    s_sub_u32 s{sT1}, s{sT4}, s{sTS+2*(nst[0]-1)}
    s_cmp_lt_u32 s{sT1}, s{sT0}
    s_cbranch_scc1 L_dbl
    """)
    elif stamps:
        a("s_waitcnt vmcnt(0)")
        stamp()
        a("s_waitcnt lgkmcnt(0)")
        for k in range(12):
            a(f"v_mov_b32 v{40+k}, s{sTS+2*k}" if k < nst[0] else f"v_mov_b32 v{40+k}, 0")
        a(f"""
    s_lshl_b32 s{sT0}, s2, 2
    s_add_u32 s{sT0}, s{sT0}, s{sW}
    s_lshl_b32 s{sT0}, s{sT0}, 6
    s_add_u32 s{sT0}, s{sT0}, {TS_OFF}
    s_mov_b64 exec, 1
    buffer_store_dwordx4 v[40:43], off, {srd(sWS)}, s{sT0}
    buffer_store_dwordx4 v[44:47], off, {srd(sWS)}, s{sT0} offset:16
    buffer_store_dwordx4 v[48:51], off, {srd(sWS)}, s{sT0} offset:32
    """)
    a("""
L_end:
    s_endpgm
.section .rodata,"a"
.p2align 6
""")
    a(kd(NAME, 512, accum=256))
    return a.text(dopad=True), a

if __name__ == "__main__":
    out = sys.argv[1] if len(sys.argv) > 1 else "k.s"
    opt = {k: 1 for k in sys.argv[2:]}
    t, a = gen(stamps=bool(opt.get("stamps")), opt=opt)
    open(out, "w").write(t)
    print("nops inserted:", a.nops, "lines", len(t.split("\n")))
```

```python
import sys, struct, math
from asm import *

NAME = "parallel_sum__ssm_conv_h3__dense_activation_gelu__prompt_kernel"
NONCE_OFF, FP_OFF, FA_OFF, FZ_OFF, FH_OFF = 0x0, 0x1080000, 0x1090000, 0x10a0000, 0x10b0000
H_OFF, W2T_OFF, KVT_OFF, Z_OFF, ST_OFF, TS_OFF, WS_REC = 0x10000, 0x700000, 0xA00000, 0xD00000, 0x1000000, 0x1010000, 0x1100000
OOB = 0x40000000
LDS_BYTES = 163840
SLOT, WP_O = 32768, 16384
RG = 3 * SLOT
OST, TILE_ST = 20480, 28672
W2ST = RG + TILE_ST
CONV_STRIDE = 21248
XCH = RG + 3 * CONV_STRIDE
XST = XCH + 512
XCNT, ZCNT, SCNT, HCNT, GCNT, GW, WW = [XCH + 1536 + o for o in (0, 4, 8, 12, 16, 32, 48)]
ZST = 81920
sQ, sK, sV, sSHK, sSSMK, sSSMD, sW1, sB1, sW2, sB2, sOUT, sWS = [4 + 4*i for i in range(12)]
srd = lambda b: f"s[{b}:{b+3}]"
(sW, sX, sI, sRB, sCJ, sNT, sTAU, sMB, sNI, sC, sT0, sT1, sT2, sT3, sCH, sXO, sNON, sSPIN, sL, sCNT) = range(52, 72)
(sWO, sM0, sNP, sLD, sT4, sT5) = range(72, 78)
sTS = 78

def vr(b, n): return f"v[{b}:{b+n-1}]" if n > 1 else f"v{b}"
f2u = lambda x: struct.unpack("<I", struct.pack("<f", x))[0]
MF = "v_mfma_f32_16x16x32_bf16"

def gen(stamps=False, opt=None):
    opt = opt or {}
    a = A()
    def stamp(k):
        if stamps:
            a(f"{'s_memtime' if opt.get('cyc') else 's_memrealtime'} s[{sTS+2*k}:{sTS+2*k+1}]")
    def unp(dst, srcr, n=2):
        for d in range(n):
            a(f"v_lshlrev_b32 v{dst+2*d}, 16, v{srcr+d}\nv_and_b32 v{dst+2*d+1}, 0xffff0000, v{srcr+d}")
    def rbf(r):
        a(f"v_cvt_pk_bf16_f32 v{r}, v{r}, v{r}\nv_and_b32 v{r}, 0xffff0000, v{r}")
    def flag_store(soff):
        a(f"""
    v_mov_b32 v19, s{sNON}
    s_mov_b64 exec, 1
    buffer_store_dword v19, off, {srd(sWS)}, s{soff} sc0 sc1
    s_mov_b64 exec, -1
    """)
    def poll(tag, loads, sleep=4):
        a(f"s_mov_b32 s{sSPIN}, 0\nL_poll{tag}:")
        for k, (vo, so) in enumerate(loads):
            a(f"buffer_load_dword v{16+k}, v{vo}, {srd(sWS)}, s{so} offen sc1")
        a("s_waitcnt vmcnt(0)")
        for k in range(len(loads)):
            if k == 0: a(f"v_cmp_eq_u32 vcc, s{sNON}, v16")
            else: a(f"v_cmp_eq_u32 s[{sT4}:{sT5}], s{sNON}, v{16+k}\ns_and_b64 vcc, vcc, s[{sT4}:{sT5}]")
        a(f"""
    s_cmp_eq_u64 vcc, -1
    s_cbranch_scc1 L_polld{tag}
    s_sleep {sleep}
    s_add_u32 s{sSPIN}, s{sSPIN}, 1
    s_cmp_lt_u32 s{sSPIN}, 0x8000
    s_cbranch_scc1 L_poll{tag}
L_polld{tag}:
    """)
    def lds_addr(addr, perwave):
        if perwave: a(f"s_lshl_b32 s{sT4}, s{sW}, 2\ns_add_u32 s{sT4}, s{sT4}, {addr}\nv_mov_b32 v18, s{sT4}")
        else: a(f"v_mov_b32 v18, {addr}")
    def lds_inc(addr, perwave=False, wait=True):
        lds_addr(addr, perwave)
        a(f"""
    v_mov_b32 v19, 1
    {'s_waitcnt lgkmcnt(0)' if wait else ''}
    s_mov_b64 exec, 1
    ds_add_u32 v18, v19
    s_mov_b64 exec, -1
    """)
    def lds_wait(tag, addr, n, perwave=False, sleep=0):
        lds_addr(addr, perwave)
        a(f"""
    s_mov_b32 s{sSPIN}, 0
L_lw{tag}:
    ds_read_b32 v19, v18
    s_add_u32 s{sSPIN}, s{sSPIN}, 1
    s_waitcnt lgkmcnt(0)
    v_readfirstlane_b32 s{sT4}, v19
    s_cmp_ge_u32 s{sT4}, {n}
    s_cbranch_scc1 L_lwd{tag}
    {'s_sleep %d' % sleep if sleep else ''}
    s_cmp_lt_u32 s{sSPIN}, 0x100000
    s_cbranch_scc1 L_lw{tag}
L_lwd{tag}:
    """)
    def tile_base(dst, t):
        a(f"s_sub_u32 s{dst}, s{t}, 1\ns_mul_i32 s{dst}, s{dst}, {TILE_ST}\ns_cmp_eq_u32 s{t}, 0\ns_cselect_b32 s{dst}, {RG}, s{dst}")
    def divmod10(q, r, tmp, off):
        a(f"v_add_u32 v{tmp}, {off}, v0\nv_mul_u32_u24 v{q}, 6554, v{tmp}\nv_lshrrev_b32 v{q}, 16, v{q}\nv_mul_u32_u24 v{r}, 10, v{q}\nv_sub_u32 v{r}, v{tmp}, v{r}")
    nonce = f"s_mul_i32 s{sNON}, s{sNON}, 1664525\ns_add_u32 s{sNON}, s{sNON}, 1013904223"

    a(f"; @launch {'kernel='+NAME+' ' if not opt.get('final') else ''}grid=(256,1,1) block=(512,1,1) lds={LDS_BYTES}")
    a('.amdgcn_target "amdgcn-amd-amdhsa--gfx950"\n.text')
    a(head(NAME))
    a(f"""
    s_cmp_ge_u32 s2, 256
    s_cbranch_scc1 L_end
    s_load_dwordx16 s[72:87], s[0:1], 0
    s_load_dwordx8 s[88:95], s[0:1], 64
    s_load_dwordx2 s[96:97], s[0:1], 104
    v_lshrrev_b32 v1, 6, v0
    v_lshrrev_b32 v15, 5, v0
    v_and_b32 v16, 31, v0
    v_and_b32 v0, 63, v0
    v_readfirstlane_b32 s{sW}, v1
    v_and_b32 v1, 15, v0
    v_lshrrev_b32 v2, 4, v0
    v_lshlrev_b32 v3, 4, v0
    s_and_b32 s{sX}, s2, 7
    s_lshr_b32 s{sI}, s2, 3
    """)
    sizes = {sQ: 2621440, sK: 2621440, sV: 2621440, sSHK: 5120, sSSMK: 2621440, sSSMD: 1280, sW1: 2211840, sB1: 3456,
             sW2: 2211840, sB2: 1280, sOUT: 2621440, sWS: WS_REC}
    for b, n in sizes.items():
        a(f"s_mov_b32 s{b+2}, {n}\ns_mov_b32 s{b+3}, 0x20000")
    if opt.get("mapP"): a(f"""
    ; GEMM1 tile (i < 28): rb = 2x + i/14, cj = i%14 ; GEMM2 tile: mb = 4x + i/8, ni = i%8
    s_cmp_ge_u32 s{sI}, 14
    s_cselect_b32 s{sT0}, 1, 0
    s_cselect_b32 s{sT1}, 14, 0
    s_sub_u32 s{sCJ}, s{sI}, s{sT1}
    s_lshl_b32 s{sRB}, s{sX}, 1
    s_add_u32 s{sRB}, s{sRB}, s{sT0}
    s_lshl_b32 s{sMB}, s{sX}, 2
    s_lshr_b32 s{sT2}, s{sI}, 3
    s_add_u32 s{sMB}, s{sMB}, s{sT2}
    s_and_b32 s{sNI}, s{sI}, 7
    """)
    else: a(f"""
    ; GEMM1 tile (i < 28): rb = 4(x>>1) + i/7, cj = 7(x&1) + i%7 ; GEMM2 tile: mb = 8(x>>1) + i/4, ni = 4(x&1) + i%4
    s_mul_i32 s{sT2}, s{sI}, 37
    s_lshr_b32 s{sT2}, s{sT2}, 8
    s_lshr_b32 s{sT0}, s{sX}, 1
    s_lshl_b32 s{sRB}, s{sT0}, 2
    s_add_u32 s{sRB}, s{sRB}, s{sT2}
    s_min_u32 s{sRB}, s{sRB}, 15
    s_and_b32 s{sT1}, s{sX}, 1
    s_sub_u32 s{sCJ}, s{sT1}, s{sT2}
    s_mul_i32 s{sCJ}, s{sCJ}, 7
    s_add_u32 s{sCJ}, s{sCJ}, s{sI}
    s_lshl_b32 s{sMB}, s{sT0}, 3
    s_lshr_b32 s{sT2}, s{sI}, 2
    s_add_u32 s{sMB}, s{sMB}, s{sT2}
    s_lshl_b32 s{sNI}, s{sT1}, 2
    s_and_b32 s{sT2}, s{sI}, 3
    s_add_u32 s{sNI}, s{sNI}, s{sT2}
    """)
    a(f"""
    s_mul_i32 s{sTAU}, s{sX}, 28
    s_add_u32 s{sTAU}, s{sTAU}, s{sI}
    s_lshl_b32 s{sT0}, s{sX}, 2
    s_add_u32 s{sT0}, s{sT0}, s{sI}
    s_mul_i32 s{sT0}, s{sT0}, 3
    s_add_u32 s{sT0}, s{sT0}, 140
    s_cmp_lt_u32 s{sI}, 28
    s_cselect_b32 s{sTAU}, s{sTAU}, s{sT0}
    s_cselect_b32 s{sNT}, 1, 3
    v_mov_b32 v20, {OOB}
    v_lshrrev_b32 v21, 3, v0
    v_and_b32 v22, 7, v0
    s_cmp_ge_u32 s{sW}, 4
    s_waitcnt lgkmcnt(0)
    """)
    src = {sQ: 72, sK: 74, sV: 76, sSHK: 78, sSSMK: 80, sSSMD: 82, sW1: 86, sB1: 88, sW2: 90, sB2: 92, sOUT: 94, sWS: 96}
    for b, s in src.items():
        a(f"s_mov_b64 s[{b}:{b+1}], s[{s}:{s+1}]")
    a(f"s_load_dword s{sNON}, s[{sWS}:{sWS+1}], {NONCE_OFF}")
    stamp(0)
    a("s_cbranch_scc1 L_role_L")
    if not opt.get("noprio"): a("s_setprio 1")
    BX, BW = 4, 6
    FS0, FS1, ACC, CS, ONES, B1R = 104, 144, 184, 248, 100, 84
    SWT, SW, KR, VR_, WPK, KU, U, PK = 144, 24, 28, 40, 48, 56, 80, 56
    a(f"""
    v_mul_u32_u24 v23, 1280, v21
    v_lshl_add_u32 v23, v22, 4, v23
    v_cmp_gt_u32 vcc, 24, v0
    v_cndmask_b32 v17, v20, v23, vcc
    v_lshlrev_b32 v14, 4, v16
    s_mul_i32 s{sXO}, s{sW}, 5120
    s_mul_i32 s{sL}, s{sW}, {16*1280}
    s_mov_b32 s{sC}, 0
L_stg:
    """)
    tile_base(sM0, sC)
    a(f"""
    s_add_u32 s{sM0}, s{sM0}, s{sXO}
    s_add_u32 s{sT0}, s{sTAU}, s{sC}
    s_and_b32 s{sT1}, s{sT0}, 31
    s_mul_i32 s{sT1}, s{sT1}, {64*1280}
    s_add_u32 s{sT1}, s{sT1}, s{sL}
    s_cmp_eq_u32 s{sT1}, 0
    s_cselect_b32 s{sT3}, 3840, 0
    s_lshr_b32 s{sT0}, s{sT0}, 5
    s_lshl_b32 s{sT2}, s{sT0}, 7
    s_add_u32 s{sT1}, s{sT1}, s{sT2}
    v_subrev_u32 v18, s{sT3}, v23
    v_cmp_gt_i32 vcc, 0, v18
    s_add_u32 s{sT2}, s{sT1}, s{sT3}
    s_sub_u32 s{sT2}, s{sT2}, 3840
    v_cndmask_b32 v18, v18, v20, vcc
    s_mov_b32 m0, s{sM0}
    s_lshl_b32 s{sT0}, s{sT0}, 9
    buffer_load_dwordx4 v18, {srd(sK)}, s{sT2} offen lds
    s_add_u32 s{sT2}, s{sT1}, {10240-3840}
    s_add_u32 m0, s{sM0}, 1024
    s_add_u32 s{sT3}, s{sT1}, {20480-3840}
    buffer_load_dwordx4 v23, {srd(sK)}, s{sT2} offen lds
    s_add_u32 m0, s{sM0}, 2048
    s_add_u32 s{sT2}, s{sT1}, 10240
    buffer_load_dwordx4 v17, {srd(sK)}, s{sT3} offen lds
    s_add_u32 m0, s{sM0}, 3072
    s_add_u32 s{sC}, s{sC}, 1
    buffer_load_dwordx4 v23, {srd(sV)}, s{sT1} offen lds
    s_add_u32 m0, s{sM0}, 4096
    s_cmp_eq_u32 s{sC}, 2
    buffer_load_dwordx4 v23, {srd(sV)}, s{sT2} offen lds
    s_cbranch_scc1 L_stg_b
    s_cmp_eq_u32 s{sC}, 3
    s_cbranch_scc1 L_stg_c
    buffer_load_dwordx4 {vr(SWT,4)}, v14, {srd(sSHK)}, s{sT0} offen
    s_cmp_eq_u32 s{sNT}, 1
    s_cbranch_scc1 L_stg_done
    s_branch L_stg
L_stg_b:
    buffer_load_dwordx4 {vr(SWT+4,4)}, v14, {srd(sSHK)}, s{sT0} offen
    s_branch L_stg
L_stg_c:
    buffer_load_dwordx4 {vr(SWT+8,4)}, v14, {srd(sSHK)}, s{sT0} offen
L_stg_done:
    v_and_b32 v21, 7, v1
    v_xor_b32 v21, v21, v2
    v_lshlrev_b32 v21, 4, v21
    v_lshl_add_u32 v21, v1, 7, v21
    s_lshl_b32 s{sT0}, s{sW}, 12
    v_add_u32 v{BX}, s{sT0}, v21
    v_xor_b32 v{BX+1}, 64, v{BX}
    v_lshrrev_b32 v21, 2, v0
    v_and_b32 v22, 7, v21
    s_lshl_b32 s{sT0}, s{sW}, 1
    v_xor_b32 v22, s{sT0}, v22
    v_lshlrev_b32 v22, 5, v22
    v_and_b32 v21, 3, v21
    v_lshl_add_u32 v21, v2, 3, v21
    v_lshl_add_u32 v22, v21, 8, v22
    v_and_b32 v21, 3, v0
    v_lshl_add_u32 v22, v21, 3, v22
    v_add_u32 v{BW}, {WP_O}, v22
    v_and_b32 v14, 1, v15
    v_lshlrev_b32 v14, 10, v14
    v_lshl_add_u32 v14, v16, 2, v14
    v_add_u32 v14, s{sXO}, v14
    v_sub_u32 v17, 7, v15
    v_xor_b32 v17, v17, v16
    v_and_b32 v17, 7, v17
    v_lshlrev_b32 v17, 4, v17
    v_lshl_add_u32 v17, v16, 8, v17
    """)
    for T in range(1, 8): a(f"v_xor_b32 v{BW+T}, {32*T}, v{BW}")
    for r in range(ACC, ACC+72): a(f"v_mov_b32 v{r}, 0")
    for r in range(4): a(f"v_mov_b32 v{ONES+r}, 0x3f803f80")
    a(f"s_mov_b32 s{sC}, 0\ns_waitcnt vmcnt(0)")
    stamp(1)
    a("L_kv:")
    tile_base(sM0, sC)
    a(f"v_add_u32 v21, s{sM0}, v14\nv_add_u32 v22, 1024, v21\nv_add_u32 v23, 3072, v21")
    for q in range(4): a(f"ds_read2_b32 {vr(KR+2*q,2)}, v21 offset0:{64*q} offset1:{64*q+32}")
    a(f"ds_read2_b32 {vr(KR+8,2)}, v22 offset0:0 offset1:32\nds_read_b32 v{KR+10}, v22 offset:256")
    for q in range(4): a(f"ds_read2_b32 {vr(VR_+2*q,2)}, v23 offset0:{64*q} offset1:{64*q+32}")
    for j in range(4):
        for c in range(2):
            r = SWT + 2*c + (j >> 1)
            if j & 1: a(f"v_and_b32 v{WPK+2*j+c}, 0xffff0000, v{r}")
            else: a(f"v_lshlrev_b32 v{WPK+2*j+c}, 16, v{r}")
    a(f"v_add_u32 v21, s{sM0}, v17\ns_waitcnt lgkmcnt(4)")
    unp(KU, KR, 11)
    for s in range(8): a(f"v_pk_mul_f32 {vr(U+2*s,2)}, {vr(KU+2*(s+3),2)}, {vr(WPK,2)}")
    for j in range(1, 4):
        for s in range(8): a(f"v_pk_fma_f32 {vr(U+2*s,2)}, {vr(KU+2*(s+3-j),2)}, {vr(WPK+2*j,2)}, {vr(U+2*s,2)}")
    a("s_waitcnt lgkmcnt(0)")
    unp(KU+8, VR_, 8)
    for s in range(8): a(f"v_pk_mul_f32 {vr(U+2*s,2)}, {vr(U+2*s,2)}, {vr(KU+8+2*s,2)}")
    for c in range(2):
        for d in range(4):
            a(f"v_cvt_pk_bf16_f32 v{PK+4*c+d}, v{U+2*(7-2*d)+c}, v{U+2*(6-2*d)+c}")
        a(f"ds_write_b128 v21, {vr(PK+4*c,4)} offset:{OST+128*c}")
    a(f"""
    s_add_u32 s{sC}, s{sC}, 1
    s_cmp_ge_u32 s{sC}, s{sNT}
    s_cbranch_scc1 L_kv_done
    """)
    for r in range(8): a(f"v_mov_b32 v{SWT+r}, v{SWT+4+r}")
    a(f"""
    s_branch L_kv
L_kv_done:
    s_lshl_b32 s{sT0}, s{sCJ}, 8
    v_lshlrev_b32 v17, 3, v2
    s_cmp_eq_u32 s{sNT}, 1
    s_waitcnt lgkmcnt(0)
    s_barrier
    s_cbranch_scc1 L_c_busy
    s_barrier
    {nonce}
    """)
    lds_inc(XCNT)
    lds_inc(GW, perwave=True, wait=False)
    lds_wait("I", XCNT, 5, sleep=2)
    a("s_branch L_g2_pro\nL_c_busy:")
    def reads(sig):
        F = FS1 if sig else FS0
        l = [f"ds_read_b128 {vr(F+4*mt,4)}, v{BX+sig} offset:{2048*mt}" for mt in range(2)]
        for T in range(8):
            for j in range(2):
                l.append(f"ds_read_b64_tr_b16 {vr(F+8+4*T+2*j,2)}, v{BW+T} offset:{8192*sig+1024*j}")
        return l
    r0 = reads(0)
    for x in r0[:12]: a(x)
    for P in range(4):
        a(f"s_xor_b32 s{sT1}, s{sW}, {P}\ns_lshl_b32 s{sT1}, s{sT1}, 6\ns_add_u32 s{sT1}, s{sT1}, s{sT0}")
        for h in range(2): a(f"buffer_load_dwordx2 {vr(B1R+4*P+2*h,2)}, v17, {srd(sB1)}, s{sT1} offen offset:{32*h}")
        if P == 0:
            a("s_waitcnt lgkmcnt(4)")
            for x in r0[12:]: a(x)
    a(nonce)
    stamp(2)
    a(f"s_mov_b32 s{sC}, 0\ns_mov_b32 s{sNP}, 1\ns_mov_b32 s{sT0}, {SLOT}\nL_g1:")
    def step(sig, items):
        F = FS1 if sig else FS0
        ms = [(vr(ACC+(mt*8+T)*4, 4), vr(F+8+4*T, 4), vr(F+4*mt, 4)) for T in range(8) for mt in range(2)]
        ms += [(vr(CS+4*k, 4), vr(F+8+4*k, 4), vr(ONES, 4)) for k in range(2)]
        for k, (ac, A_, B_) in enumerate(ms):
            a(f"{MF} {ac}, {A_}, {B_}, {ac}")
            for _ in range(2):
                if items: a(items.pop(0))
        assert not items
    def withwait(l): return l[:12] + ["s_waitcnt lgkmcnt(4)"] + l[12:]
    a("s_waitcnt lgkmcnt(0)")
    step(0, withwait(reads(1)) + [f"v_add_u32 v{r}, s{sT0}, v{r}" for r in range(BX, BX+10)] + [f"s_cmp_ge_u32 s{sC}, 8"])
    a("""
    s_waitcnt lgkmcnt(0)
    s_cbranch_scc1 L_g1_nobar
    s_barrier
L_g1_nobar:
    """)
    step(1, withwait(reads(0)) + [f"s_add_u32 s{sNP}, s{sNP}, 1", f"s_cmp_eq_u32 s{sNP}, 3", f"s_cselect_b32 s{sNP}, 0, s{sNP}", f"s_mov_b32 s{sT0}, {SLOT}",
           f"s_cselect_b32 s{sT0}, {-2*SLOT}, s{sT0}", f"s_add_u32 s{sC}, s{sC}, 1", f"s_cmp_lt_u32 s{sC}, 10"])
    a("s_cbranch_scc1 L_g1")
    stamp(3)
    CSR, MN, NM = 24, 56, 60
    a(f"""
    s_lshl_b32 s{sT0}, s{sW}, 7
    s_add_u32 s{sT1}, s{sT0}, {XCH}
    v_add_u32 v17, s{sT1}, v0
    v_lshl_add_u32 v16, v2, 4, s{sT0}
    s_mov_b32 exec_lo, 0x10001
    s_mov_b32 exec_hi, 0x10001
    ds_write_b128 v17, {vr(CS,4)}
    ds_write_b128 v17, {vr(CS+4,4)} offset:64
    s_mov_b64 exec, -1
    """)
    lds_inc(XCNT)
    a(f"""
    s_lshl_b32 s{sT0}, s{sRB}, 1
    s_lshr_b32 s{sT1}, s{sW}, 1
    s_add_u32 s{sT0}, s{sT0}, s{sT1}
    s_mul_i32 s{sT0}, s{sT0}, {54*4096}
    s_and_b32 s{sT1}, s{sW}, 1
    s_lshl_b32 s{sT1}, s{sT1}, 11
    s_add_u32 s{sT0}, s{sT0}, s{sT1}
    s_add_u32 s{sXO}, s{sT0}, {H_OFF}
    s_lshl_b32 s{sL}, s{sCJ}, 2
    s_lshl_b32 s{sT0}, s{sW}, 8
    s_add_u32 s{sT0}, s{sT0}, {XST}
    v_lshl_add_u32 v17, v1, 3, s{sT0}
    """)
    for P in range(4): a(f"v_xor_b32 v{8+P}, {128*P}, v16\nv_add_u32 v{8+P}, {XCH}, v{8+P}")
    k0 = -2.0 * math.log2(math.e) * math.sqrt(2.0/math.pi)
    C0, C1, ONE, B1F, TT = 64, 66, 68, 70, 74
    for q in range(2): a(f"v_mov_b32 v{C0+q}, {f2u(k0):#x}\nv_mov_b32 v{C1+q}, {f2u(k0*0.044715):#x}\nv_mov_b32 v{ONE+q}, 1.0")
    lds_wait("C", XCNT, 5)
    for mt in range(2): a(f"ds_read_b64 {vr(MN+2*mt,2)}, v17 offset:{128*mt}")
    for T in range(8): a(f"ds_read_b128 {vr(CSR+4*T,4)}, v{8+(T>>1)} offset:{64*(T&1)}")
    a(f"""
    s_waitcnt vmcnt(0) lgkmcnt(8)
    v_mul_f32 v{NM}, -v{MN}, v{MN+1}
    v_mul_f32 v{NM+2}, -v{MN+2}, v{MN+3}
    v_mov_b32 v{MN}, v{MN+1}
    v_mov_b32 v{MN+2}, v{MN+3}
    v_mov_b32 v{NM+1}, v{NM}
    v_mov_b32 v{NM+3}, v{NM+2}
    s_waitcnt lgkmcnt(0)
    """)
    stamp(4)
    HP = 104
    for T in range(8):
        if T & 1:
            a(f"""
    s_xor_b32 s{sT1}, s{sW}, {T>>1}
    s_add_u32 s{sT1}, s{sT1}, s{sL}
    s_lshl_b32 s{sT2}, s{sT1}, 12
    s_add_u32 s{sT2}, s{sT2}, s{sXO}
    s_cmp_lt_u32 s{sT1}, 54
    s_cselect_b32 s{sT2}, s{sT2}, {OOB}
    """)
        unp(B1F, B1R + 2*T)
        for mt in range(2):
            ac = ACC + (mt*8+T)*4
            for h in range(2):
                a(f"v_pk_fma_f32 {vr(TT+2*h,2)}, {vr(CSR+4*T+2*h,2)}, {vr(NM+2*mt,2)}, {vr(B1F+2*h,2)}")
            for h in range(2):
                a(f"v_pk_fma_f32 {vr(ac+2*h,2)}, {vr(ac+2*h,2)}, {vr(MN+2*mt,2)}, {vr(TT+2*h,2)}")
            for h in range(2): a(f"v_pk_mul_f32 {vr(TT+2*h,2)}, {vr(ac+2*h,2)}, {vr(ac+2*h,2)}")
            for h in range(2): a(f"v_pk_fma_f32 {vr(TT+2*h,2)}, {vr(TT+2*h,2)}, {vr(C1,2)}, {vr(C0,2)}")
            for h in range(2): a(f"v_pk_mul_f32 {vr(TT+2*h,2)}, {vr(TT+2*h,2)}, {vr(ac+2*h,2)}")
            for r in range(4): a(f"v_exp_f32 v{TT+r}, v{TT+r}")
            for h in range(2): a(f"v_pk_add_f32 {vr(TT+2*h,2)}, {vr(TT+2*h,2)}, {vr(ONE,2)}")
            for r in range(4): a(f"v_rcp_f32 v{TT+r}, v{TT+r}")
            for h in range(2): a(f"v_pk_mul_f32 {vr(ac+2*h,2)}, {vr(ac+2*h,2)}, {vr(TT+2*h,2)}")
            for h in range(2): a(f"v_cvt_pk_bf16_f32 v{HP+(mt*8+T)*2+h}, v{ac+2*h}, v{ac+2*h+1}")
            if T & 1:
                a(f"buffer_store_dwordx4 {vr(HP+(mt*8+T-1)*2,4)}, v3, {srd(sWS)}, s{sT2} offen offset:{1024*mt} sc0 sc1")
    lds_inc(GW, perwave=True, wait=False)
    a("L_g2_pro:")
    def h_again():
        a(f"s_cmp_eq_u32 s{sNT}, 1\ns_cbranch_scc0 L_noagain")
        for P in range(4):
            a(f"""
    s_xor_b32 s{sT1}, s{sW}, {P}
    s_add_u32 s{sT1}, s{sT1}, s{sC}
    s_lshl_b32 s{sT3}, s{sT1}, 12
    s_add_u32 s{sT3}, s{sT3}, s{sXO}
    s_cmp_lt_u32 s{sT1}, 54
    s_cselect_b32 s{sT3}, s{sT3}, {OOB}
    """)
            for mt in range(2): a(f"buffer_store_dwordx4 {vr(HP+(mt*8+2*P)*2,4)}, v3, {srd(sWS)}, s{sT3} offen offset:{1024*mt}")
        a("L_noagain:")
    if not opt.get("noprio"): a("s_setprio 0")
    stamp(5)
    GA, HF, WR, HD, WD = 20, 100, 136, 2, 6
    a(f"""
    v_lshlrev_b32 v12, 12, v2
    v_lshl_add_u32 v12, v1, 7, v12
    s_lshl_b32 s{sT2}, s{sL}, 12
    s_add_u32 s{sT2}, s{sT2}, s{sXO}
    s_sub_u32 s{sT1}, 54, s{sL}
    v_cmp_gt_u32 vcc, s{sT1}, v2
    v_mov_b32 v13, {OOB}
    v_cndmask_b32 v12, v13, v12, vcc
    s_mov_b32 s{sC}, s{sL}
    s_sub_u32 s{sL}, 3, s{sW}
    s_mul_i32 s{sT0}, s{sNI}, 54
    s_add_u32 s{sT0}, s{sT0}, s{sL}
    s_mul_i32 s{sWO}, s{sT0}, 5120
    s_add_u32 s{sWO}, s{sWO}, {W2T_OFF}
    v_add_u32 v4, 4096, v3
    s_lshl_b32 s{sT0}, s{sRB}, 4
    s_add_u32 s{sT0}, s{sT0}, s{sCJ}
    s_lshl_b32 s{sT0}, s{sT0}, 2
    s_add_u32 s{sT0}, s{sT0}, s{sW}
    s_lshl_b32 s{sT0}, s{sT0}, 7
    s_add_u32 s{sT0}, s{sT0}, {FH_OFF}
    s_cmp_eq_u32 s{sNT}, 1
    s_cselect_b32 s{sT0}, s{sT0}, {OOB}
    s_cselect_b32 s{sT2}, s{sT2}, {OOB}
    """)
    wslot = [0, 1, 2, 3, 4, 5, 2, 3, 4, 5, 0, 1, 2, 3]
    def wload(j):
        if j == 13: a(f"s_cmp_ge_u32 s{sW}, 2\ns_cselect_b32 s{sWO}, s{sWO}, {OOB}")
        for t in range(5):
            a(f"buffer_load_dwordx4 {vr(WR+20*wslot[j]+4*t,4)}, v{3 if t<4 else 4}, {srd(sWS)}, s{sWO} offen offset:{1024*(t%4)} sc1")
        if j < 13: a(f"s_add_u32 s{sWO}, s{sWO}, {(5 if j == 5 else 1)*4*5120}")
    wload(0); wload(1)
    a("s_waitcnt vmcnt(10)")
    flag_store(sT0)
    if opt.get("htouch"): a(f"buffer_load_dword v14, v12, {srd(sWS)}, s{sT2} offen sc1")
    if opt.get("hagain"): h_again()
    for j in range(2, WD): wload(j)
    a(f"""
    s_mul_i32 s{sT1}, s{sMB}, 54
    s_add_u32 s{sT1}, s{sT1}, s{sL}
    s_lshl_b32 s{sXO}, s{sT1}, 12
    s_add_u32 s{sXO}, s{sXO}, {H_OFF}
    s_lshr_b32 s{sT0}, s{sMB}, 1
    s_lshl_b32 s{sT0}, s{sT0}, 13
    s_and_b32 s{sT1}, s{sMB}, 1
    s_lshl_b32 s{sT1}, s{sT1}, 8
    s_add_u32 s{sT0}, s{sT0}, s{sT1}
    s_add_u32 s{sT0}, s{sT0}, {FH_OFF}
    v_min_u32 v13, 27, v0
    v_lshrrev_b32 v15, 1, v13
    v_and_b32 v13, 1, v13
    v_lshlrev_b32 v13, 7, v13
    v_lshl_add_u32 v13, v15, 9, v13
    s_mul_i32 s{sT1}, s{sW}, 20480
    v_add_u32 v7, s{sT1}, v3
    s_lshl_b32 s{sT2}, s{sMB}, 6
    s_lshl_b32 s{sT1}, s{sW}, 4
    s_add_u32 s{sT2}, s{sT2}, s{sT1}
    v_add_u32 v15, s{sT2}, v1
    v_mul_u32_u24 v15, 1280, v15
    s_mul_i32 s{sCJ}, s{sNI}, 160
    v_lshl_add_u32 v5, v2, 4, v15
    v_lshl_add_u32 v6, v2, 3, v15
    """)
    for mu in range(4):
        a(f"s_xor_b32 s{sT1}, s{sW}, {mu}\ns_lshl_b32 s{sT1}, s{sT1}, 10\nv_add_u32 v{8+mu}, s{sT1}, v3")
    stamp(6)
    poll("H", [(13, sT0)], sleep=2)
    def hload(j):
        l = []
        if j == 13: l.append(f"s_cmp_ge_u32 s{sW}, 2\ns_cselect_b32 s{sXO}, s{sXO}, {OOB}")
        for mu in range(4):
            l.append(f"buffer_load_dwordx4 {vr(HF+16*(j%HD)+4*mu,4)}, v{8+mu}, {srd(sWS)}, s{sXO} offen sc1")
        if j < 13: l.append(f"s_add_u32 s{sXO}, s{sXO}, 16384")
        return l
    fifo = []
    for j in range(HD):
        for x in hload(j): a(x)
        fifo += [("h", j)] * 4
    lds_inc(HCNT, wait=False)
    stamp(7)
    for j in range(14):
        need = [i for i, e in enumerate(fifo) if e in (("h", j), ("w", j))]
        a(f"s_waitcnt vmcnt({len(fifo)-1-max(need)})" + (" lgkmcnt(0)" if j == 6 else ""))
        if j == 6: lds_inc(GCNT, wait=False)
        if j == 13: a(f"s_cmp_lt_u32 s{sW}, 2\ns_cbranch_scc1 L_g2_done")
        for mu in range(4):
            for t in range(5):
                ac = vr(GA + (mu*5+t)*4, 4)
                a(f"{MF} {ac}, {vr(WR+20*wslot[j]+4*t,4)}, {vr(HF+16*(j%HD)+4*mu,4)}, {'0' if j==0 else ac}")
                if t == 0 and mu > 0 and j + HD < 14:
                    if mu == 1:
                        hl = hload(j + HD)
                        if j + HD == 13: a(hl.pop(0))
                    a(hl.pop(0)); fifo.append(("h", j+HD))
        if j + HD < 14:
            for x in hl: a(x)
            fifo.append(("h", j+HD))
        if 2 <= j < 6:
            if j == 2: lds_wait("W", WW, 1, perwave=True)
            if j == 5: a("s_waitcnt lgkmcnt(10)")
            for t in range(5): a(f"ds_read_b128 {vr(WR+20*j+4*t,4)}, v7 offset:{5120*(j-2)+1024*t}")
        elif j < 8:
            jj = 10 + j if j < 2 else 6 + j
            wload(jj); fifo += [("w", jj)] * 5
    a("L_g2_done:")
    stamp(8)
    for mu in range(1, 4):
        a(f"s_xor_b32 s{sT0}, s{sW}, {mu}\ns_mul_i32 s{sT0}, s{sT0}, 15360\ns_add_u32 s{sT0}, s{sT0}, {(mu-1)*5120}\nv_add_u32 v{8+mu}, s{sT0}, v3")
    lds_wait("G", GCNT, 4)
    for mu in range(1, 4):
        for t in range(5): a(f"ds_write_b128 v{8+mu}, {vr(GA+(mu*5+t)*4,4)} offset:{1024*t}")
    a(f"""
    s_mul_i32 s{sT0}, s{sW}, 15360
    v_add_u32 v15, s{sT0}, v3
    s_mul_i32 s{sT0}, s{sW}, 5120
    s_add_u32 s{sT0}, s{sT0}, {RG}
    v_add_u32 v16, s{sT0}, v3
    s_waitcnt lgkmcnt(0)
    s_barrier
    """)
    stamp(9)
    for t in range(5): a(f"ds_read_b128 {vr(GA+80+4*t,4)}, v16 offset:{1024*t}")
    for mu in range(1, 3):
        for t in range(5): a(f"ds_read_b128 {vr(GA+(mu*5+t)*4,4)}, v15 offset:{(mu-1)*5120+1024*t}")
    for k, mu in enumerate((4, 1, 2, 3)):
        a(f"s_waitcnt lgkmcnt({(10, 10, 5, 0)[k]})")
        if k == 0:
            for t in range(5): a(f"ds_read_b128 {vr(GA+(15+t)*4,4)}, v15 offset:{2*5120+1024*t}")
        for t in range(5):
            for h in range(2):
                a(f"v_pk_add_f32 {vr(GA+4*t+2*h,2)}, {vr(GA+4*t+2*h,2)}, {vr(GA+(mu*5+t)*4+2*h,2)}")
    XR = 124
    for t in range(5):
        for h in range(2): a(f"v_cvt_pk_bf16_f32 v{XR+2*t+h}, v{GA+4*t+2*h}, v{GA+4*t+2*h+1}")
    a(f"""
    buffer_store_dwordx4 {vr(XR,4)}, v5, {srd(sOUT)}, s{sCJ} offen
    buffer_store_dwordx4 {vr(XR+4,4)}, v5, {srd(sOUT)}, s{sCJ} offen offset:64
    buffer_store_dwordx2 {vr(XR+8,2)}, v6, {srd(sOUT)}, s{sCJ} offen offset:128
    s_branch L_fin
    """)
    a(f"""
L_role_L:
    s_sub_u32 s{sW}, s{sW}, 4
    s_cmp_ge_u32 s{sW}, 2
    s_cbranch_scc1 L_aux
    s_cmp_eq_u32 s{sNT}, 1
    s_cbranch_scc1 L_loader
    s_waitcnt lgkmcnt(0)
    s_barrier
    s_barrier
    s_branch L_g1_over
L_loader:
    s_lshl_b32 s{sT0}, s{sRB}, 7
    s_lshl_b32 s{sT1}, s{sW}, 6
    s_add_u32 s{sT0}, s{sT0}, s{sT1}
    v_xor_b32 v22, v22, v21
    v_add_u32 v21, s{sT0}, v21
    v_mul_u32_u24 v21, 1280, v21
    v_lshl_add_u32 v24, v22, 4, v21
    s_lshl_b32 s{sT0}, s{sCJ}, 8
    s_mul_i32 s{sT1}, s{sW}, {32*3456}
    s_add_u32 s{sT0}, s{sT0}, s{sT1}
    s_cmp_eq_u32 s{sCJ}, 13
    s_cselect_b32 s{sT1}, 8, 16
    v_lshlrev_b32 v21, 1, v2
    v_xor_b32 v21, v21, v1
    v_mul_u32_u24 v22, 3456, v2
    v_add_u32 v22, s{sT0}, v22
    v_lshl_add_u32 v32, v21, 4, v22
    v_cmp_gt_u32 vcc, s{sT1}, v21
    v_xor_b32 v21, 8, v21
    v_add_u32 v22, {8*3456}, v22
    v_cndmask_b32 v32, v20, v32, vcc
    v_lshl_add_u32 v34, v21, 4, v22
    v_cmp_gt_u32 vcc, s{sT1}, v21
    s_mov_b32 s{sLD}, 0
    s_lshl_b32 s{sNP}, s{sW}, 13
    v_cndmask_b32 v34, v20, v34, vcc
    """)
    for j in range(1, 8):
        a(f"v_add_u32 v{24+j}, {10240*j}, v24")
        if j != 2: a(f"v_add_u32 v{32+j}, {3456*(4*j - (8 if j & 2 else 0))}, v{34 if j & 2 else 32}")
    if opt.get("rot"):
        a(f"""
    s_mul_i32 s{sT1}, s{sRB}, 3
    s_add_u32 s{sLD}, s{sCJ}, s{sT1}
    s_mul_i32 s{sT1}, s{sLD}, 26
    s_lshr_b32 s{sT1}, s{sT1}, 8
    s_mul_i32 s{sT1}, s{sT1}, 10
    s_sub_u32 s{sLD}, s{sLD}, s{sT1}
    """)
    a(f"""
    s_mov_b32 s{sC}, 0
L_ld:
    s_lshl_b32 s{sT0}, s{sLD}, 7
    s_mul_i32 s{sT1}, s{sLD}, {64*3456}
    """)
    for j in range(8):
        a(f"s_add_u32 m0, s{sNP}, {1024*j}\nbuffer_load_dwordx4 v{24+j}, {srd(sQ)}, s{sT0} offen lds")
        a(f"s_add_u32 m0, s{sNP}, {WP_O+1024*j}\nbuffer_load_dwordx4 v{32+j}, {srd(sW1)}, s{sT1} offen lds")
    a(f"""
    s_add_u32 s{sLD}, s{sLD}, 1
    s_cmp_eq_u32 s{sLD}, 10
    s_cselect_b32 s{sLD}, 0, s{sLD}
    s_add_u32 s{sNP}, s{sNP}, {SLOT}
    s_cmp_ge_u32 s{sNP}, {3*SLOT}
    s_cselect_b32 s{sT0}, {3*SLOT}, 0
    s_sub_u32 s{sNP}, s{sNP}, s{sT0}
    s_add_u32 s{sC}, s{sC}, 1
    s_cmp_eq_u32 s{sC}, 1
    s_cbranch_scc1 L_ld
    s_cmp_eq_u32 s{sC}, 10
    s_cbranch_scc1 L_ld_done
    s_waitcnt vmcnt(16)
    s_barrier
    s_branch L_ld
L_ld_done:
    s_waitcnt vmcnt(0) lgkmcnt(0)
    s_barrier
    s_branch L_g1_over
    """)
    XS, W2R = 24, 48
    a(f"""
L_aux:
    s_and_b32 s{sLD}, s{sW}, 1
    v_mov_b32 v23, {XCH+1536}
    v_lshl_add_u32 v23, v1, 2, v23
    v_mov_b32 v24, 0
    ds_write_b32 v23, v24
    s_lshl_b32 s{sT0}, s{sLD}, 5
    v_add_u32 v21, s{sT0}, v21
    v_lshrrev_b32 v23, 1, v21
    v_xor_b32 v23, v23, v22
    v_and_b32 v23, 7, v23
    v_lshlrev_b32 v23, 4, v23
    v_lshl_add_u32 v12, v21, 7, v23
    v_xor_b32 v13, 64, v12
    v_lshlrev_b32 v4, 12, v21
    v_lshl_add_u32 v4, v22, 4, v4
    v_add_u32 v5, {8*4096}, v4
    v_add_u32 v6, {16*4096}, v4
    v_add_u32 v7, {24*4096}, v4
    v_mul_u32_u24 v14, 1280, v2
    v_lshl_add_u32 v14, v1, 4, v14
    """)
    for j in range(5):
        divmod10(22, 23, 21, 64*j)
        a(f"v_mul_u32_u24 v22, 1280, v22\nv_lshl_add_u32 v{104+j}, v23, 4, v22")
    a(f"""
    s_lshl_b32 s{sT0}, s{sX}, 5
    s_add_u32 s{sT0}, s{sT0}, s{sI}
    s_lshl_b32 s{sT0}, s{sT0}, 1
    s_add_u32 s{sL}, s{sT0}, s{sLD}
    s_lshl_b32 s{sWO}, s{sLD}, 5
    s_add_u32 s{sWO}, s{sWO}, s{sI}
    s_mul_i32 s{sXO}, s{sLD}, 5120
    s_add_u32 s{sXO}, s{sXO}, {W2ST}
    s_mul_i32 s{sT0}, s{sL}, 5120
    s_mul_i32 s{sT2}, s{sWO}, {32*1280}
    s_mul_i32 s{sT3}, s{sX}, 160
    s_add_u32 s{sT2}, s{sT2}, s{sT3}
    s_waitcnt lgkmcnt(0)
    s_barrier
    """)
    for j in range(5): a(f"buffer_load_dwordx4 {vr(XS+4*j,4)}, v14, {srd(sQ)}, s{sT0} offen offset:{256*j}")
    for j in range(5): a(f"s_add_u32 m0, s{sXO}, {1024*j}\nbuffer_load_dwordx4 v{104+j}, {srd(sW2)}, s{sT2} offen lds")
    a(f"s_mov_b32 s{sC}, 0\nL_rb:")
    tile_base(sM0, sC)
    a(f"v_add_u32 v21, s{sM0}, v12\nv_add_u32 v22, s{sM0}, v13")
    for q in range(4): a(f"ds_read_b128 {vr(72+4*q,4)}, v{22 if q & 1 else 21} offset:{OST+1024*q}")
    a(f"""
    s_add_u32 s{sT0}, s{sTAU}, s{sC}
    s_and_b32 s{sT1}, s{sT0}, 31
    s_lshr_b32 s{sT0}, s{sT0}, 5
    s_lshl_b32 s{sT0}, s{sT0}, 18
    s_lshl_b32 s{sT1}, s{sT1}, 7
    s_sub_u32 s{sT0}, s{sT0}, s{sT1}
    s_add_u32 s{sT0}, s{sT0}, {KVT_OFF + 1984*2}
    s_add_u32 s{sC}, s{sC}, 1
    s_waitcnt lgkmcnt(0)
    """)
    for q in range(4): a(f"buffer_store_dwordx4 {vr(72+4*q,4)}, v{4+q}, {srd(sWS)}, s{sT0} offen sc0 sc1")
    a(f"""
    s_cmp_lt_u32 s{sC}, s{sNT}
    s_cbranch_scc1 L_rb
    s_cmp_eq_u32 s{sNT}, 1
    s_cbranch_scc0 L_aux_nb1
    s_barrier
    s_barrier
L_aux_nb1:
    v_lshrrev_b32 v21, 2, v0                  ; 4g + ((l>>2)&3)
    v_mul_u32_u24 v21, 160, v21
    v_add_u32 v21, s{sXO}, v21
    v_and_b32 v22, 3, v0
    v_lshl_add_u32 v23, v22, 3, v21
    v_lshl_add_u32 v21, v22, 4, v21
    v_add_u32 v22, 4096, v3
    v_mov_b32 v14, 0x3f803f80
    s_waitcnt vmcnt(4)
    """)
    for t in range(5):
        for j in range(2):
            if t < 4: a(f"ds_read_b64_tr_b16 {vr(W2R+4*t+2*j,2)}, v21 offset:{2560*j + 8*(t&1) + 64*(t>>1)}")
            else: a(f"ds_read_b64_tr_b16 {vr(W2R+4*t+2*j,2)}, v23 offset:{2560*j + 128}")
    for j in range(5):
        for d in range(4):
            k = (4*j+d) & 1
            first = 4*j+d < 2
            a(f"v_dot2_f32_bf16 v{44+k}, v{XS+4*j+d}, v14, {'0' if first else 'v%d'%(44+k)}")
            a(f"v_dot2_f32_bf16 v{46+k}, v{XS+4*j+d}, v{XS+4*j+d}, {'0' if first else 'v%d'%(46+k)}")
    a(f"""
    s_mul_i32 s{sT3}, s{sX}, 54
    s_add_u32 s{sT3}, s{sT3}, s{sWO}
    s_mul_i32 s{sT3}, s{sT3}, 5120
    s_add_u32 s{sT3}, s{sT3}, {W2T_OFF}
    s_cmp_ge_u32 s{sWO}, 54
    s_cselect_b32 s{sT3}, {OOB}, s{sT3}
    s_waitcnt lgkmcnt(0)
    """)
    for t in range(5):
        a(f"buffer_store_dwordx4 {vr(W2R+4*t,4)}, v{3 if t<4 else 22}, {srd(sWS)}, s{sT3} offen offset:{1024*(t%4)} sc0 sc1")
    a(f"""
    s_cmp_eq_u32 s{sNT}, 1
    s_cbranch_scc0 L_aux_nb2
    s_barrier
L_aux_nb2:
    s_mov_b32 s{sT0}, 0x3acccccd
    s_mov_b32 s{sT1}, 0x3727c5ac
    v_add_f32 v44, v44, v45
    v_add_f32 v45, v46, v47
    """)
    for st in (1, 2, 4, 8):
        for r in (44, 45): a(f"v_add_f32_dpp v{r}, v{r}, v{r} row_shr:{st} row_mask:0xf bank_mask:0xf bound_ctrl:1")
    a(f"""
    v_mul_f32 v44, s{sT0}, v44
    v_mul_f32 v45, s{sT0}, v45
    v_fma_f32 v45, -v44, v44, v45
    v_max_f32 v45, 0, v45
    """)
    rbf(45); a(f"v_add_f32 v45, s{sT1}, v45"); rbf(45); a("v_sqrt_f32 v45, v45"); rbf(44); rbf(45)
    a(f"""
    v_rcp_f32 v45, v45
    s_lshl_b32 s{sT0}, s{sL}, 5
    s_add_u32 s{sT0}, s{sT0}, {ST_OFF}
    v_lshlrev_b32 v21, 3, v2
    s_mov_b32 exec_lo, 0x80008000
    s_mov_b32 exec_hi, 0x80008000
    buffer_store_dwordx2 v[44:45], v21, {srd(sWS)}, s{sT0} offen sc0 sc1
    s_mov_b64 exec, -1
    s_lshl_b32 s{sT0}, s{sTAU}, 7
    s_add_u32 s{sT0}, s{sT0}, {FP_OFF}
    s_lshl_b32 s{sT1}, s{sL}, 6
    s_andn2_b32 s{sT1}, s{sT1}, 127
    s_add_u32 s{sT1}, s{sT1}, {FA_OFF}
    s_cmp_eq_u32 s{sW}, 3
    s_cselect_b32 s{sT0}, s{sT1}, s{sT0}
    s_cselect_b32 s{sT1}, 1, s{sNT}
    s_bfm_b32 s{sT1}, s{sT1}, 0
    v_lshlrev_b32 v21, 7, v0
    s_cmp_eq_u32 s{sNT}, 1
    s_cbranch_scc0 L_aux_nb3
    s_barrier
    s_barrier
L_aux_nb3:
    {nonce}
    v_mov_b32 v19, s{sNON}
    s_waitcnt vmcnt(0)
    s_barrier
    s_mov_b32 exec_lo, s{sT1}
    s_mov_b32 exec_hi, 0
    buffer_store_dword v19, v21, {srd(sWS)}, s{sT0} offen sc0 sc1
    s_mov_b64 exec, -1
    s_cmp_eq_u32 s{sNT}, 1
    s_cbranch_scc0 L_aux_over
    s_barrier
    s_barrier
    s_branch L_aux_over
L_g1_over:
    {nonce}
L_aux_over:
    """)
    stamp(1)
    KVR, K0R, DR = 20, 36, 38
    a(f"""
    s_mul_i32 s{sT0}, s{sI}, 5
    s_lshr_b32 s{sT0}, s{sT0}, 1
    s_mul_i32 s{sCH}, s{sX}, 80
    s_add_u32 s{sCH}, s{sCH}, s{sT0}
    s_and_b32 s{sCNT}, s{sI}, 1
    s_add_u32 s{sCNT}, s{sCNT}, 2
    v_and_b32 v12, 31, v0
    v_lshlrev_b32 v12, 7, v12
    v_add_u32 v16, 1, v1
    v_and_b32 v17, 3, v16
    v_mul_u32_u24 v17, 4160, v17
    v_and_b32 v16, 28, v16
    v_lshl_add_u32 v17, v16, 1, v17
    v_lshl_add_u32 v5, v2, 4, v17
    v_lshlrev_b32 v16, 5, v1
    s_lshl_b32 s{sT0}, s{sW}, 12
    s_add_u32 s{sT0}, s{sT0}, {ZST}
    v_lshl_add_u32 v8, v2, 3, v16
    v_add_u32 v8, s{sT0}, v8
    v_add_u32 v9, s{sT0}, v3
    v_sub_u32 v16, {16640+480}, v16
    v_lshl_add_u32 v6, v2, 4, v16
    v_lshlrev_b32 v17, 3, v2
    v_sub_u32 v7, v16, v17
    v_add_u32 v7, 24, v7
    s_cmp_eq_u32 s{sW}, 3
    s_cbranch_scc1 L_w3
    s_cmp_ge_u32 s{sW}, s{sCNT}
    s_cbranch_scc1 L_staged
    s_add_u32 s{sCH}, s{sCH}, s{sW}
    s_mul_i32 s{sM0}, s{sW}, {CONV_STRIDE}
    s_add_u32 s{sM0}, s{sM0}, {RG}
    s_lshl_b32 s{sT0}, s{sCH}, 12
    s_lshr_b32 s{sT1}, s{sCH}, 6
    s_lshl_b32 s{sT1}, s{sT1}, 12
    s_add_u32 s{sT1}, s{sT1}, {FP_OFF}
    """)
    poll("K", [(12, sT1)])
    a(f"s_add_u32 s{sT1}, s{sT0}, {KVT_OFF}")
    for j in range(4): a(f"buffer_load_dwordx4 {vr(KVR+4*j,4)}, v3, {srd(sWS)}, s{sT1} offen offset:{1024*j} sc1")
    a(f"buffer_load_dwordx2 {vr(K0R,2)}, off, {srd(sSSMK)}, s{sT0}")
    a(f"s_lshl_b32 s{sT1}, s{sCH}, 1\nbuffer_load_ushort v{DR}, off, {srd(sSSMD)}, s{sT1}")
    for cp in range(4):
        a(f"s_add_u32 m0, s{sM0}, {cp*4160+32}\ns_add_u32 s{sT1}, s{sT0}, {2*cp}")
        for j in range(4): a(f"buffer_load_dwordx4 v3, {srd(sSSMK)}, s{sT1} offen offset:{1024*j} lds")
    a(f"""
    s_add_u32 s{sT0}, s{sM0}, 16640
    v_add_u32 v15, s{sT0}, v3
    v_add_u32 v5, s{sM0}, v5
    v_add_u32 v6, s{sM0}, v6
    v_add_u32 v7, s{sM0}, v7
    v_mov_b32 v40, 0
    v_mov_b32 v41, 0
    v_mov_b32 v42, 0
    v_mov_b32 v43, 0
    s_mov_b64 exec, 0x3fffffff
    ds_write_b128 v15, v[40:43] offset:4096
    s_mov_b64 exec, -1
    v_lshrrev_b32 v16, 1, v0
    v_lshlrev_b32 v17, 4, v16
    v_sub_u32 v17, 48, v17
    v_and_b32 v18, 1, v0
    v_mul_u32_u24 v16, 4160, v16
    v_lshl_add_u32 v16, v18, 4, v16
    v_add_u32 v16, s{sM0}, v16
    v_cmp_eq_u32 vcc, 1, v18
    s_waitcnt vmcnt(16)
    """)
    for j in range(4): a(f"ds_write_b128 v15, {vr(KVR+4*j,4)} offset:{1024*j}")
    a(f"""
    v_lshlrev_b64 v[42:43], v17, {vr(K0R,2)}
    v_lshlrev_b64 v[42:43], 16, v[42:43]
    v_lshlrev_b32 v{DR}, 16, v{DR}
    v_cndmask_b32 v42, 0, v42, vcc
    v_cndmask_b32 v43, 0, v43, vcc
    v_mov_b32 v{DR+1}, v{DR}
    s_mov_b64 exec, 0xff
    ds_write_b128 v16, v[40:43]
    s_mov_b64 exec, -1
    s_waitcnt vmcnt(0)
    """)
    lds_inc(SCNT)
    a(f"""
    s_branch L_staged
L_w3:
    v_lshlrev_b32 v13, 7, v1
    s_lshl_b32 s{sT1}, s{sNI}, 12
    s_add_u32 s{sT1}, s{sT1}, {FA_OFF}
    s_lshl_b32 s{sT2}, s{sRB}, 11
    s_add_u32 s{sT2}, s{sT2}, {FA_OFF}
    s_lshl_b32 s{sT0}, s{sCH}, 1
    v_lshlrev_b32 v14, 1, v0
    buffer_load_ushort v{DR}, v14, {srd(sSSMD)}, s{sT0} offen
    """)
    poll("P", [(12, sT1), (13, sT2)])
    a(f"""
    s_lshl_b32 s{sT0}, s{sRB}, 10
    s_add_u32 s{sT0}, s{sT0}, {ST_OFF}
    buffer_load_dwordx4 v[20:23], v3, {srd(sWS)}, s{sT0} offen sc1
    v_add_u32 v13, {XST}, v3
    v_lshlrev_b32 v{DR}, 16, v{DR}
    s_waitcnt vmcnt(0)
    ds_write_b128 v13, v[20:23]
    """)
    lds_inc(XCNT)
    a(f"""
    s_cmp_lg_u32 s2, 0
    s_cbranch_scc1 L_staged
    v_lshlrev_b32 v13, 7, v0
    s_mov_b32 s{sT0}, {FA_OFF}
    s_mov_b32 s{sT1}, {FA_OFF+8192}
    s_mov_b32 s{sT2}, {FA_OFF+16384}
    s_mov_b32 s{sT3}, {FA_OFF+24576}
    """)
    poll("N", [(13, sT0), (13, sT1), (13, sT2), (13, sT3)])
    a(f"s_mov_b32 s{sT0}, {NONCE_OFF}")
    flag_store(sT0)
    a("L_staged:")
    stamp(2)
    lds_wait("X", XCNT, 5, sleep=1)
    a(f"""
    s_mul_i32 s{sT0}, s{sNI}, 54
    s_sub_u32 s{sT0}, s{sT0}, s{sW}
    s_add_u32 s{sT0}, s{sT0}, 27
    s_mul_i32 s{sT0}, s{sT0}, 5120
    s_add_u32 s{sT0}, s{sT0}, {W2T_OFF}
    s_mul_i32 s{sT1}, s{sW}, 20480
    v_add_u32 v4, 4096, v3
    """)
    for j in range(4):
        a(f"s_add_u32 m0, s{sT1}, {5120*j}")
        for t in range(4): a(f"buffer_load_dwordx4 v3, {srd(sWS)}, s{sT0} offen offset:{1024*t} sc1 lds")
        a(f"s_add_u32 m0, s{sT1}, {5120*j+4096}\nbuffer_load_dwordx4 v4, {srd(sWS)}, s{sT0} offen sc1 lds\ns_add_u32 s{sT0}, s{sT0}, 20480")
    if opt.get("wtouch"):
        a(f"""
    s_and_b32 s{sT1}, s{sMB}, 3
    s_mul_i32 s{sT2}, s{sT1}, 20480
    s_add_u32 s{sT0}, s{sT0}, s{sT2}
    s_lshl_b32 s{sT1}, s{sT1}, 2
    s_sub_u32 s{sT1}, s{sT1}, s{sW}
    s_cmp_le_i32 s{sT1}, 10
    s_cselect_b32 s{sT0}, s{sT0}, {OOB}
    {'v_min_u32 v13, 39, v0' if opt.get("mapP") else f's_lshr_b32 s{sT1}, s{sMB}, 2'}
    """)
        if not opt.get("mapP"): a(f"s_and_b32 s{sT1}, s{sT1}, 1\ns_mul_i32 s{sT1}, s{sT1}, 20\nv_min_u32 v13, 19, v0\nv_add_u32 v13, s{sT1}, v13")
        a(f"v_lshlrev_b32 v13, 7, v13\nbuffer_load_dword v14, v13, {srd(sWS)}, s{sT0} offen sc1")
    stamp(3)
    a(f"s_mov_b32 s{sNP}, 0\ns_cmp_eq_u32 s{sW}, 3\ns_cbranch_scc1 L_convY\ns_cmp_lt_u32 s{sW}, s{sCNT}\ns_cbranch_scc1 L_convX\ns_waitcnt vmcnt(0)")
    lds_inc(WW, perwave=True, wait=False)
    a("s_branch L_conv_done\nL_convX:")
    CA, CB, CACC, UR = (40, 104), (72, 136), 168, 104
    def creads(par, off, ai, bi):
        A_, B_ = CA[par], CB[par]
        l = []
        for i in range(8):
            if i in bi: l.append(f"ds_read_b128 {vr(B_+4*i,4)}, v11 offset:{off+512*i}")
            if i in ai:
                l.append(f"ds_read_b64 {vr(A_+4*i,2)}, v10 offset:{off+512*i}")
                l.append(f"ds_read_b64 {vr(A_+4*i+2,2)}, v10 offset:{off+512*i+8}")
        return l
    def conv_loop(tag, ds, ai, bi):
        order = sorted(set(ai) | set(bi))
        first = creads(0, 0, ai, bi)
        for x in first[:12]: a(x)
        a("s_waitcnt lgkmcnt(3)")
        for x in first[12:]: a(x)
        for d in ds:
            for r in range(4): a(f"v_mov_b32 v{CACC+4*(7-d)+r}, 0")
        if tag == "X":
            lds_wait("GX", GW, 1, perwave=True, sleep=1)
            if not opt.get("noprio"): a("s_setprio 2")
            stamp(4)
        a(f"s_mov_b32 s{sC}, 0\nL_cv{tag}:")
        for par in range(2):
            A_, B_ = CA[par], CB[par]
            nxt = creads(par ^ 1, 64*(par+1), ai, bi)
            nxt = nxt[:12] + ["s_waitcnt lgkmcnt(3)"] + nxt[12:]
            if par == 1: nxt += ["v_add_u32 v10, 128, v10", "v_add_u32 v11, 128, v11", f"s_add_u32 s{sC}, s{sC}, 1", f"s_cmp_lt_u32 s{sC}, 4"]
            ms = [(ip, ip - d) for ip in range(8) for d in reversed(ds) if ip - d >= 0]
            a("s_waitcnt lgkmcnt(0)")
            for k, (ip, i) in enumerate(ms):
                ac = vr(CACC + 4*(7-(ip-i)), 4)
                a(f"{MF} {ac}, {vr(A_+4*i,4)}, {vr(B_+4*ip,4)}, {ac}")
                left = len(ms) - k
                for _ in range(max(2, -(-len(nxt) // left))):
                    if nxt: a(nxt.pop(0))
            assert not nxt
        a(f"s_cbranch_scc0 L_cvd{tag}\ns_or_b32 s{sT1}, s{sC}, s{sNP}\ns_cmp_lg_u32 s{sT1}, 2\ns_cbranch_scc1 L_cv{tag}\ns_waitcnt vmcnt(0)\ns_mov_b32 s{sNP}, 8")
        lds_inc(WW, perwave=True, wait=False)
        a(f"s_branch L_cv{tag}\nL_cvd{tag}:\ns_waitcnt lgkmcnt(0)")
    def z_tiles(tiles, ubase, dreg, slot0):
        for k, jt in enumerate(tiles): a(f"ds_read_b64 {vr(UR+2*k,2)}, v{ubase} offset:{512*(7-jt)}")
        a("s_waitcnt lgkmcnt(0)")
        for k, jt in enumerate(tiles):
            ac = CACC + 4*jt; u = UR + 2*k
            a(f"""
    v_and_b32 v40, 0xffff0000, v{u+1}
    v_lshlrev_b32 v41, 16, v{u+1}
    v_and_b32 v42, 0xffff0000, v{u}
    v_lshlrev_b32 v43, 16, v{u}
    v_pk_fma_f32 {vr(ac,2)}, v[40:41], {vr(dreg,2)}, {vr(ac,2)}
    v_pk_fma_f32 {vr(ac+2,2)}, v[42:43], {vr(dreg,2)}, {vr(ac+2,2)}
    v_cvt_pk_bf16_f32 v{u}, v{ac}, v{ac+1}
    v_cvt_pk_bf16_f32 v{u+1}, v{ac+2}, v{ac+3}
    ds_write_b64 v8, {vr(u,2)} offset:{512*(slot0+k)}
    """)
    a("v_mov_b32 v10, v5\nv_mov_b32 v11, v6")
    conv_loop("X", [0, 1, 3, 4, 6, 7], range(8), range(8))
    stamp(5)
    z_tiles([0, 1, 3, 4, 6, 7], 7, DR, 0)
    a(f"""
    s_lshl_b32 s{sT0}, s{sCH}, 12
    s_add_u32 s{sT0}, s{sT0}, {Z_OFF}
    s_waitcnt lgkmcnt(0)
    """)
    for j in range(3): a(f"ds_read_b128 {vr(60+4*j,4)}, v9 offset:{1024*j}")
    for j in range(3):
        a(f"s_waitcnt lgkmcnt({2-j})\nbuffer_store_dwordx4 {vr(60+4*j,4)}, v3, {srd(sWS)}, s{sT0} offen offset:{1536*j} sc0 sc1")
    a("s_branch L_conv_sig\nL_convY:")
    lds_wait("S", SCNT, f"s{sCNT}", sleep=1)
    lds_wait("GY", GW, 1, perwave=True, sleep=1)
    if not opt.get("noprio"): a("s_setprio 2")
    stamp(4)
    a(f"""
    s_mov_b32 s{sLD}, 0
    s_mov_b32 s{sM0}, {RG}
    v_lshrrev_b32 v13, 5, v0
    v_mul_u32_u24 v13, 1024, v13
    v_add_u32 v13, v13, v3
L_cy:
    v_add_u32 v10, s{sM0}, v5
    v_add_u32 v11, s{sM0}, v6
    v_add_u32 v12, s{sM0}, v7
    v_readlane_b32 s{sT0}, v{DR}, s{sLD}
    """)
    conv_loop("Y", [2, 5], range(6), range(2, 8))
    a(f"v_mov_b32 v44, s{sT0}\nv_mov_b32 v45, s{sT0}")
    z_tiles([2, 5], 12, 44, 0)
    a(f"""
    s_add_u32 s{sT0}, s{sCH}, s{sLD}
    s_lshl_b32 s{sT0}, s{sT0}, 12
    s_add_u32 s{sT0}, s{sT0}, {Z_OFF+1024}
    s_waitcnt lgkmcnt(0)
    ds_read_b128 v[60:63], v9
    s_add_u32 s{sM0}, s{sM0}, {CONV_STRIDE}
    s_add_u32 s{sLD}, s{sLD}, 1
    s_cmp_lt_u32 s{sLD}, s{sCNT}
    s_waitcnt lgkmcnt(0)
    buffer_store_dwordx4 v[60:63], v13, {srd(sWS)}, s{sT0} offen sc0 sc1
    s_cbranch_scc1 L_cy
    """)
    stamp(5)
    a(f"""
L_conv_sig:
    {'s_setprio 0' if not opt.get("noprio") else ''}
    s_lshl_b32 s{sT0}, s{sX}, 5
    s_add_u32 s{sT0}, s{sT0}, s{sI}
    s_lshl_b32 s{sT0}, s{sT0}, 7
    s_add_u32 s{sT0}, s{sT0}, {FZ_OFF}
    v_mov_b32 v16, {ZCNT}
    v_mov_b32 v17, 1
    s_waitcnt vmcnt(0)
    s_mov_b64 exec, 1
    ds_add_rtn_u32 v17, v16, v17
    s_waitcnt lgkmcnt(0)
    s_mov_b64 exec, -1
    v_readfirstlane_b32 s{sT1}, v17
    s_cmp_lg_u32 s{sT1}, s{sCNT}
    s_cbranch_scc1 L_conv_done
    """)
    flag_store(sT0)
    a(f"L_conv_done:\ns_add_u32 s{sCNT}, s{sCNT}, 1")
    stamp(6)
    lds_wait("Z", ZCNT, f"s{sCNT}", sleep=2)
    XR, B2R, STR, ZR, ZT, PR = 20, 30, 40, 44, 56, 68
    a(f"""
    s_lshl_b32 s{sT0}, s{sMB}, 6
    s_lshl_b32 s{sT1}, s{sW}, 4
    s_add_u32 s{sL}, s{sT0}, s{sT1}
    s_mul_i32 s{sT0}, s{sL}, 1280
    s_mul_i32 s{sT2}, s{sNI}, 160
    s_add_u32 s{sT0}, s{sT0}, s{sT2}
    s_mul_i32 s{sM0}, s{sW}, 5120
    s_add_u32 s{sM0}, s{sM0}, {RG}
    """)
    for j in range(3):
        divmod10(22, 23, 21, 64*j)
        a(f"""
    v_mul_u32_u24 v22, 1280, v22
    v_lshl_add_u32 v22, v23, 4, v22
    s_add_u32 m0, s{sM0}, {2560+1024*j}
    {'s_mov_b32 exec_hi, 0' if j == 2 else ''}
    buffer_load_dwordx4 v22, {srd(sQ)}, s{sT0} offen lds
    """)
    a(f"""
    s_mov_b32 exec_hi, -1
    v_lshlrev_b32 v17, 4, v2
    v_lshlrev_b32 v18, 3, v2
    v_lshlrev_b32 v12, 3, v1
    s_lshl_b32 s{sT1}, s{sL}, 3
    s_add_u32 s{sT1}, s{sT1}, {ST_OFF}
    buffer_load_dwordx4 {vr(B2R,4)}, v17, {srd(sB2)}, s{sT2} offen
    buffer_load_dwordx4 {vr(B2R+4,4)}, v17, {srd(sB2)}, s{sT2} offen offset:64
    buffer_load_dwordx2 {vr(B2R+8,2)}, v18, {srd(sB2)}, s{sT2} offen offset:128
    s_lshl_b32 s{sT0}, s{sNI}, 12
    s_add_u32 s{sT0}, s{sT0}, {FZ_OFF}
    v_and_b32 v14, 31, v0
    v_lshlrev_b32 v14, 7, v14
    """)
    lds_wait("H", HCNT, 4, sleep=2)
    a(f"buffer_load_dwordx2 {vr(STR,2)}, v12, {srd(sWS)}, s{sT1} offen sc1")
    poll("Z", [(14, sT0)])
    stamp(7)
    a(f"""
    s_mul_i32 s{sT0}, s{sNI}, {80*4096}
    s_lshl_b32 s{sT1}, s{sL}, 1
    s_add_u32 s{sT0}, s{sT0}, s{sT1}
    s_add_u32 s{sT0}, s{sT0}, {Z_OFF}
    v_lshrrev_b32 v15, 1, v0
    v_lshlrev_b32 v15, 12, v15
    v_and_b32 v16, 1, v0
    v_lshl_add_u32 v15, v16, 4, v15
    v_add_u32 v16, {32*4096}, v15
    v_add_u32 v17, {64*4096}, v15
    buffer_load_dwordx4 {vr(ZR,4)}, v15, {srd(sWS)}, s{sT0} offen sc1
    buffer_load_dwordx4 {vr(ZR+4,4)}, v16, {srd(sWS)}, s{sT0} offen sc1
    s_mov_b32 exec_hi, 0
    buffer_load_dwordx4 {vr(ZR+8,4)}, v17, {srd(sWS)}, s{sT0} offen sc1
    s_mov_b32 exec_hi, -1
    v_add_u32 v15, s{sM0}, v3
    v_mul_u32_u24 v16, 160, v1
    v_add_u32 v16, s{sM0}, v16
    v_lshl_add_u32 v17, v2, 4, v16
    v_lshl_add_u32 v16, v2, 3, v16
    ds_read_b128 {vr(XR,4)}, v17 offset:2560
    ds_read_b128 {vr(XR+4,4)}, v17 offset:{2560+64}
    ds_read_b64 {vr(XR+8,2)}, v16 offset:{2560+128}
    v_lshrrev_b32 v16, 2, v0
    v_and_b32 v17, 3, v0
    v_lshlrev_b32 v17, 3, v17
    v_add_u32 v17, s{sM0}, v17
    v_lshl_add_u32 v18, v16, 5, v17
    v_lshl_add_u32 v16, v2, 2, v16
    v_lshl_add_u32 v16, v16, 5, v17
    v_mov_b32 v{STR+2}, v{STR+1}
    v_mov_b32 v{STR+3}, v{STR+1}
    v_mov_b32 v{STR+1}, v{STR}
    s_waitcnt lgkmcnt(0)
    """)
    for t in range(5):
        x = PR + 4*t; xn = 104 + 4*t
        unp(x, XR + 2*t); unp(96, B2R + 2*t)
        for h in range(2): a(f"v_pk_add_f32 {vr(xn+2*h,2)}, {vr(x+2*h,2)}, {vr(STR,2)} neg_lo:[0,1] neg_hi:[0,1]")
        for h in range(2): a(f"v_pk_add_f32 {vr(x+2*h,2)}, {vr(x+2*h,2)}, {vr(96+2*h,2)}")
        for h in range(2): a(f"v_pk_mul_f32 {vr(xn+2*h,2)}, {vr(xn+2*h,2)}, {vr(STR+2,2)}")
    a(f"""
    s_waitcnt vmcnt(0)
    ds_write_b128 v15, {vr(ZR,4)}
    ds_write_b128 v15, {vr(ZR+4,4)} offset:1024
    s_mov_b32 exec_hi, 0
    ds_write_b128 v15, {vr(ZR+8,4)} offset:2048
    s_mov_b32 exec_hi, -1
    s_waitcnt lgkmcnt(0)
    """)
    for t in range(5):
        if t < 4: a(f"ds_read_b64_tr_b16 {vr(ZT+2*t,2)}, v16 offset:{32*(32*(t>>1)+4*(t&1))}")
        else: a(f"ds_read_b64_tr_b16 {vr(ZT+2*t,2)}, v18 offset:{32*64}")
    a("s_waitcnt lgkmcnt(0)")
    for t in range(5):
        x = PR + 4*t; xn = 104 + 4*t
        unp(92, ZT + 2*t)
        for h in range(2): a(f"v_pk_fma_f32 {vr(x+2*h,2)}, {vr(xn+2*h,2)}, {vr(92+2*h,2)}, {vr(x+2*h,2)}")
        a(f"ds_write_b128 v15, {vr(x,4)} offset:{1024*t}")
    a("s_waitcnt lgkmcnt(0)")
    stamp(8)
    a(f"s_barrier\ns_add_u32 s{sW}, s{sW}, 4")
    stamp(9)
    a("L_fin:")
    dbl = [k for k in opt if k.startswith("dbl:")]
    if dbl:
        _, i, j, mult = dbl[0].split(":"); i, j, mult = int(i), int(j), int(mult)
        a("s_waitcnt vmcnt(0)")
        stamp(10)
        a(f"""
    s_waitcnt lgkmcnt(0)
    s_cmp_ge_u32 s{sW}, 4
    s_cbranch_scc1 L_end
    s_cmp_lg_u32 s{sNT}, 1
    s_cbranch_scc1 L_end
    s_sub_u32 s{sT0}, s{sTS+2*j}, s{sTS+2*i}
    s_mul_i32 s{sT0}, s{sT0}, {mult}
    s_min_u32 s{sT0}, s{sT0}, 100000
L_dbl:
    s_memrealtime s[{sT4}:{sT5}]
    s_waitcnt lgkmcnt(0)
    s_sub_u32 s{sT1}, s{sT4}, s{sTS+20}
    s_cmp_lt_u32 s{sT1}, s{sT0}
    s_cbranch_scc1 L_dbl
    """)
    elif stamps:
        a("s_waitcnt vmcnt(0)")
        stamp(10)
        a("s_waitcnt lgkmcnt(0)")
        for k in range(12):
            a(f"v_mov_b32 v{40+k}, s{sTS+2*k}" if k < 11 else f"v_mov_b32 v{40+k}, 0")
        a(f"""
    s_lshl_b32 s{sT0}, s2, 3
    s_add_u32 s{sT0}, s{sT0}, s{sW}
    s_lshl_b32 s{sT0}, s{sT0}, 6
    s_add_u32 s{sT0}, s{sT0}, {TS_OFF}
    s_mov_b64 exec, 1
    buffer_store_dwordx4 v[40:43], off, {srd(sWS)}, s{sT0}
    buffer_store_dwordx4 v[44:47], off, {srd(sWS)}, s{sT0} offset:16
    buffer_store_dwordx4 v[48:51], off, {srd(sWS)}, s{sT0} offset:32
    """)
    a("""
L_end:
    s_endpgm
.section .rodata,"a"
.p2align 6
""")
    a(kd(NAME, 256, accum=256))
    return a.text(dopad=True), a

if __name__ == "__main__":
    out = sys.argv[1] if len(sys.argv) > 1 else "k.s"
    opt = {k: 1 for k in sys.argv[2:]}
    t, a = gen(stamps=bool(opt.get("stamps")), opt=opt)
    open(out, "w").write(t)
    print("nops inserted:", a.nops, "lines", len(t.split("\n")))
```

```python
import sys, struct, math
from asm import *

NAME = "parallel_sum__ssm_conv_h3__dense_activation_gelu__prompt_kernel"
NONCE_OFF, FP_OFF, FA_OFF, FZ_OFF, FH_OFF = 0x0, 0x1080000, 0x1090000, 0x10a0000, 0x10b0000
H_OFF, W2T_OFF, KVT_OFF, Z_OFF, ST_OFF, TS_OFF, WS_REC = 0x10000, 0x700000, 0xA00000, 0xD00000, 0x1000000, 0x1010000, 0x1100000
OOB = 0x40000000
LDS_BYTES = 163840
SLOT, WP_O = 32768, 16384
RG = 3 * SLOT
OST, TILE_ST = 20480, 28672
W2ST = RG + TILE_ST
CONV_STRIDE = 21248
XCH = RG + 3 * CONV_STRIDE
XST = XCH + 512
XCNT, ZCNT, SCNT, HCNT, GCNT, ACNT, GW, WW = [XCH + 1536 + o for o in (0, 4, 8, 12, 16, 20, 32, 48)]
ZST = 81920
sQ, sK, sV, sSHK, sSSMK, sSSMD, sW1, sB1, sW2, sB2, sOUT, sWS = [4 + 4*i for i in range(12)]
srd = lambda b: f"s[{b}:{b+3}]"
(sW, sX, sI, sRB, sCJ, sNT, sTAU, sMB, sNI, sC, sT0, sT1, sT2, sT3, sCH, sXO, sNON, sSPIN, sL, sCNT) = range(52, 72)
(sWO, sM0, sNP, sLD, sT4, sT5) = range(72, 78)
sTS = 78

def vr(b, n): return f"v[{b}:{b+n-1}]" if n > 1 else f"v{b}"
f2u = lambda x: struct.unpack("<I", struct.pack("<f", x))[0]
MF = "v_mfma_f32_16x16x32_bf16"

def gen(stamps=False, opt=None):
    opt = opt or {}
    a = A()
    def stamp(k):
        if stamps:
            a(f"{'s_memtime' if opt.get('cyc') else 's_memrealtime'} s[{sTS+2*k}:{sTS+2*k+1}]")
    def unp(dst, srcr, n=2):
        for d in range(n):
            a(f"v_lshlrev_b32 v{dst+2*d}, 16, v{srcr+d}\nv_and_b32 v{dst+2*d+1}, 0xffff0000, v{srcr+d}")
    def rbf(r):
        a(f"v_cvt_pk_bf16_f32 v{r}, v{r}, v{r}\nv_and_b32 v{r}, 0xffff0000, v{r}")
    def flag_store(soff):
        a(f"""
    v_mov_b32 v19, s{sNON}
    s_mov_b64 exec, 1
    buffer_store_dword v19, off, {srd(sWS)}, s{soff} sc0 sc1
    s_mov_b64 exec, -1
    """)
    def poll(tag, loads, sleep=4):
        a(f"s_mov_b32 s{sSPIN}, 0\nL_poll{tag}:")
        for k, (vo, so) in enumerate(loads):
            a(f"buffer_load_dword v{16+k}, v{vo}, {srd(sWS)}, s{so} offen sc1")
        a("s_waitcnt vmcnt(0)")
        for k in range(len(loads)):
            if k == 0: a(f"v_cmp_eq_u32 vcc, s{sNON}, v16")
            else: a(f"v_cmp_eq_u32 s[{sT4}:{sT5}], s{sNON}, v{16+k}\ns_and_b64 vcc, vcc, s[{sT4}:{sT5}]")
        a(f"""
    s_cmp_eq_u64 vcc, -1
    s_cbranch_scc1 L_polld{tag}
    s_sleep {sleep}
    s_add_u32 s{sSPIN}, s{sSPIN}, 1
    s_cmp_lt_u32 s{sSPIN}, 0x8000
    s_cbranch_scc1 L_poll{tag}
L_polld{tag}:
    """)
    def lds_addr(addr, perwave):
        if perwave: a(f"s_lshl_b32 s{sT4}, s{sW}, 2\ns_add_u32 s{sT4}, s{sT4}, {addr}\nv_mov_b32 v18, s{sT4}")
        else: a(f"v_mov_b32 v18, {addr}")
    def lds_inc(addr, perwave=False, wait=True):
        lds_addr(addr, perwave)
        a(f"""
    v_mov_b32 v19, 1
    {'s_waitcnt lgkmcnt(0)' if wait else ''}
    s_mov_b64 exec, 1
    ds_add_u32 v18, v19
    s_mov_b64 exec, -1
    """)
    def lds_wait(tag, addr, n, perwave=False, sleep=0):
        lds_addr(addr, perwave)
        a(f"""
    s_mov_b32 s{sSPIN}, 0
L_lw{tag}:
    ds_read_b32 v19, v18
    s_add_u32 s{sSPIN}, s{sSPIN}, 1
    s_waitcnt lgkmcnt(0)
    v_readfirstlane_b32 s{sT4}, v19
    s_cmp_ge_u32 s{sT4}, {n}
    s_cbranch_scc1 L_lwd{tag}
    {'s_sleep %d' % sleep if sleep else ''}
    s_cmp_lt_u32 s{sSPIN}, 0x100000
    s_cbranch_scc1 L_lw{tag}
L_lwd{tag}:
    """)
    def tile_base(dst, t):
        a(f"s_sub_u32 s{dst}, s{t}, 1\ns_mul_i32 s{dst}, s{dst}, {TILE_ST}\ns_cmp_eq_u32 s{t}, 0\ns_cselect_b32 s{dst}, {RG}, s{dst}")
    def divmod10(q, r, tmp, off):
        a(f"v_add_u32 v{tmp}, {off}, v0\nv_mul_u32_u24 v{q}, 6554, v{tmp}\nv_lshrrev_b32 v{q}, 16, v{q}\nv_mul_u32_u24 v{r}, 10, v{q}\nv_sub_u32 v{r}, v{tmp}, v{r}")
    nonce = f"s_mul_i32 s{sNON}, s{sNON}, 1664525\ns_add_u32 s{sNON}, s{sNON}, 1013904223"

    a(f"; @launch {'kernel='+NAME+' ' if not opt.get('final') else ''}grid=(256,1,1) block=(512,1,1) lds={LDS_BYTES}")
    a('.amdgcn_target "amdgcn-amd-amdhsa--gfx950"\n.text')
    a(head(NAME))
    a(f"""
    s_cmp_ge_u32 s2, 256
    s_cbranch_scc1 L_end
    s_load_dwordx16 s[72:87], s[0:1], 0
    s_load_dwordx8 s[88:95], s[0:1], 64
    s_load_dwordx2 s[96:97], s[0:1], 104
    v_lshrrev_b32 v1, 6, v0
    v_lshrrev_b32 v15, 5, v0
    v_and_b32 v16, 31, v0
    v_and_b32 v0, 63, v0
    v_readfirstlane_b32 s{sW}, v1
    v_and_b32 v1, 15, v0
    v_lshrrev_b32 v2, 4, v0
    v_lshlrev_b32 v3, 4, v0
    s_and_b32 s{sX}, s2, 7
    s_lshr_b32 s{sI}, s2, 3
    """)
    sizes = {sQ: 2621440, sK: 2621440, sV: 2621440, sSHK: 5120, sSSMK: 2621440, sSSMD: 1280, sW1: 2211840, sB1: 3456,
             sW2: 2211840, sB2: 1280, sOUT: 2621440, sWS: WS_REC}
    for b, n in sizes.items():
        a(f"s_mov_b32 s{b+2}, {n}\ns_mov_b32 s{b+3}, 0x20000")
    if opt.get("mapP"): a(f"""
    ; GEMM1 tile (i < 28): rb = 2x + i/14, cj = i%14 ; GEMM2 tile: mb = 4x + i/8, ni = i%8
    s_cmp_ge_u32 s{sI}, 14
    s_cselect_b32 s{sT0}, 1, 0
    s_cselect_b32 s{sT1}, 14, 0
    s_sub_u32 s{sCJ}, s{sI}, s{sT1}
    s_lshl_b32 s{sRB}, s{sX}, 1
    s_add_u32 s{sRB}, s{sRB}, s{sT0}
    s_lshl_b32 s{sMB}, s{sX}, 2
    s_lshr_b32 s{sT2}, s{sI}, 3
    s_add_u32 s{sMB}, s{sMB}, s{sT2}
    s_and_b32 s{sNI}, s{sI}, 7
    """)
    else: a(f"""
    ; GEMM1 tile (i < 28): rb = 4(x>>1) + i/7, cj = 7(x&1) + i%7 ; GEMM2 tile: mb = 8(x>>1) + i/4, ni = 4(x&1) + i%4
    s_mul_i32 s{sT2}, s{sI}, 37
    s_lshr_b32 s{sT2}, s{sT2}, 8
    s_lshr_b32 s{sT0}, s{sX}, 1
    s_lshl_b32 s{sRB}, s{sT0}, 2
    s_add_u32 s{sRB}, s{sRB}, s{sT2}
    s_min_u32 s{sRB}, s{sRB}, 15
    s_and_b32 s{sT1}, s{sX}, 1
    s_sub_u32 s{sCJ}, s{sT1}, s{sT2}
    s_mul_i32 s{sCJ}, s{sCJ}, 7
    s_add_u32 s{sCJ}, s{sCJ}, s{sI}
    s_lshl_b32 s{sMB}, s{sT0}, 3
    s_lshr_b32 s{sT2}, s{sI}, 2
    s_add_u32 s{sMB}, s{sMB}, s{sT2}
    s_lshl_b32 s{sNI}, s{sT1}, 2
    s_and_b32 s{sT2}, s{sI}, 3
    s_add_u32 s{sNI}, s{sNI}, s{sT2}
    """)
    a(f"""
    s_mul_i32 s{sTAU}, s{sX}, 28
    s_add_u32 s{sTAU}, s{sTAU}, s{sI}
    s_lshl_b32 s{sT0}, s{sX}, 2
    s_add_u32 s{sT0}, s{sT0}, s{sI}
    s_mul_i32 s{sT0}, s{sT0}, 3
    s_add_u32 s{sT0}, s{sT0}, 140
    s_cmp_lt_u32 s{sI}, 28
    s_cselect_b32 s{sTAU}, s{sTAU}, s{sT0}
    s_cselect_b32 s{sNT}, 1, 3
    v_mov_b32 v20, {OOB}
    v_lshrrev_b32 v21, 3, v0
    v_and_b32 v22, 7, v0
    s_cmp_ge_u32 s{sW}, 4
    s_waitcnt lgkmcnt(0)
    """)
    src = {sQ: 72, sK: 74, sV: 76, sSHK: 78, sSSMK: 80, sSSMD: 82, sW1: 86, sB1: 88, sW2: 90, sB2: 92, sOUT: 94, sWS: 96}
    for b, s in src.items():
        a(f"s_mov_b64 s[{b}:{b+1}], s[{s}:{s+1}]")
    wsb = [int(k[4:], 0) for k in opt if k.startswith("wsb:")]
    if wsb:
        a(f"s_cselect_b32 s{sT0}, 1, 0\ns_add_u32 s{sWS}, s{sWS}, {wsb[0]}\ns_addc_u32 s{sWS+1}, s{sWS+1}, 0\ns_cmp_eq_u32 s{sT0}, 1")
    a(f"s_load_dword s{sNON}, s[{sWS}:{sWS+1}], {NONCE_OFF}")
    stamp(0)
    a("s_cbranch_scc1 L_role_L")
    if not opt.get("noprio"): a("s_setprio 1")
    BX, BW = 4, 6
    FS0, FS1, ACC, CS, ONES, B1R = 104, 144, 184, 248, 100, 84
    SWT, SW, KR, VR_, WPK, KU, U, PK = 144, 24, 28, 40, 48, 56, 80, 56
    a(f"""
    v_mul_u32_u24 v23, 1280, v21
    v_lshl_add_u32 v23, v22, 4, v23
    v_cmp_gt_u32 vcc, 24, v0
    v_cndmask_b32 v17, v20, v23, vcc
    v_lshlrev_b32 v14, 4, v16
    s_mul_i32 s{sXO}, s{sW}, 5120
    s_mul_i32 s{sL}, s{sW}, {16*1280}
    s_mov_b32 s{sC}, 0
L_stg:
    """)
    tile_base(sM0, sC)
    a(f"""
    s_add_u32 s{sM0}, s{sM0}, s{sXO}
    s_add_u32 s{sT0}, s{sTAU}, s{sC}
    s_and_b32 s{sT1}, s{sT0}, 31
    s_mul_i32 s{sT1}, s{sT1}, {64*1280}
    s_add_u32 s{sT1}, s{sT1}, s{sL}
    s_cmp_eq_u32 s{sT1}, 0
    s_cselect_b32 s{sT3}, 3840, 0
    s_lshr_b32 s{sT0}, s{sT0}, 5
    s_lshl_b32 s{sT2}, s{sT0}, 7
    s_add_u32 s{sT1}, s{sT1}, s{sT2}
    v_subrev_u32 v18, s{sT3}, v23
    v_cmp_gt_i32 vcc, 0, v18
    s_add_u32 s{sT2}, s{sT1}, s{sT3}
    s_sub_u32 s{sT2}, s{sT2}, 3840
    v_cndmask_b32 v18, v18, v20, vcc
    s_mov_b32 m0, s{sM0}
    s_lshl_b32 s{sT0}, s{sT0}, 9
    buffer_load_dwordx4 v18, {srd(sK)}, s{sT2} offen lds
    s_add_u32 s{sT2}, s{sT1}, {10240-3840}
    s_add_u32 m0, s{sM0}, 1024
    s_add_u32 s{sT3}, s{sT1}, {20480-3840}
    buffer_load_dwordx4 v23, {srd(sK)}, s{sT2} offen lds
    s_add_u32 m0, s{sM0}, 2048
    s_add_u32 s{sT2}, s{sT1}, 10240
    buffer_load_dwordx4 v17, {srd(sK)}, s{sT3} offen lds
    s_add_u32 m0, s{sM0}, 3072
    s_add_u32 s{sC}, s{sC}, 1
    buffer_load_dwordx4 v23, {srd(sV)}, s{sT1} offen lds
    s_add_u32 m0, s{sM0}, 4096
    s_cmp_eq_u32 s{sC}, 2
    buffer_load_dwordx4 v23, {srd(sV)}, s{sT2} offen lds
    s_cbranch_scc1 L_stg_b
    s_cmp_eq_u32 s{sC}, 3
    s_cbranch_scc1 L_stg_c
    buffer_load_dwordx4 {vr(SWT,4)}, v14, {srd(sSHK)}, s{sT0} offen
    s_cmp_eq_u32 s{sNT}, 1
    s_cbranch_scc1 L_stg_done
    s_branch L_stg
L_stg_b:
    buffer_load_dwordx4 {vr(SWT+4,4)}, v14, {srd(sSHK)}, s{sT0} offen
    s_branch L_stg
L_stg_c:
    buffer_load_dwordx4 {vr(SWT+8,4)}, v14, {srd(sSHK)}, s{sT0} offen
L_stg_done:
    v_and_b32 v21, 7, v1
    v_xor_b32 v21, v21, v2
    v_lshlrev_b32 v21, 4, v21
    v_lshl_add_u32 v21, v1, 7, v21
    s_lshl_b32 s{sT0}, s{sW}, 12
    v_add_u32 v{BX}, s{sT0}, v21
    v_xor_b32 v{BX+1}, 64, v{BX}
    ; w read bases: row = 8g + i ; slot tile T holds physical tile T ^ 2w, stored at position tile ^ f, f = i | (g&1)<<2
    v_lshrrev_b32 v21, 2, v0
    v_and_b32 v22, 7, v21
    s_lshl_b32 s{sT0}, s{sW}, 1
    v_xor_b32 v22, s{sT0}, v22
    v_lshlrev_b32 v22, 5, v22
    v_and_b32 v21, 3, v21
    v_lshl_add_u32 v21, v2, 3, v21
    v_lshl_add_u32 v22, v21, 8, v22
    v_and_b32 v21, 3, v0
    v_lshl_add_u32 v22, v21, 3, v22
    v_add_u32 v{BW}, {WP_O}, v22
    v_and_b32 v14, 1, v15
    v_lshlrev_b32 v14, 10, v14
    v_lshl_add_u32 v14, v16, 2, v14
    v_add_u32 v14, s{sXO}, v14
    v_sub_u32 v17, 7, v15
    v_xor_b32 v17, v17, v16
    v_and_b32 v17, 7, v17
    v_lshlrev_b32 v17, 4, v17
    v_lshl_add_u32 v17, v16, 8, v17
    """)
    for T in range(1, 8): a(f"v_xor_b32 v{BW+T}, {32*T}, v{BW}")
    for r in range(ACC, ACC+72): a(f"v_mov_b32 v{r}, 0")
    for r in range(4): a(f"v_mov_b32 v{ONES+r}, 0x3f803f80")
    a(f"s_mov_b32 s{sC}, 0\ns_waitcnt vmcnt(0)")
    stamp(1)
    a("L_kv:")
    tile_base(sM0, sC)
    a(f"v_add_u32 v21, s{sM0}, v14\nv_add_u32 v22, 1024, v21\nv_add_u32 v23, 3072, v21")
    for q in range(4): a(f"ds_read2_b32 {vr(KR+2*q,2)}, v21 offset0:{64*q} offset1:{64*q+32}")
    a(f"ds_read2_b32 {vr(KR+8,2)}, v22 offset0:0 offset1:32\nds_read_b32 v{KR+10}, v22 offset:256")
    for q in range(4): a(f"ds_read2_b32 {vr(VR_+2*q,2)}, v23 offset0:{64*q} offset1:{64*q+32}")
    for j in range(4):
        for c in range(2):
            r = SWT + 2*c + (j >> 1)
            if j & 1: a(f"v_and_b32 v{WPK+2*j+c}, 0xffff0000, v{r}")
            else: a(f"v_lshlrev_b32 v{WPK+2*j+c}, 16, v{r}")
    a(f"v_add_u32 v21, s{sM0}, v17\ns_waitcnt lgkmcnt(4)")
    unp(KU, KR, 11)
    for s in range(8): a(f"v_pk_mul_f32 {vr(U+2*s,2)}, {vr(KU+2*(s+3),2)}, {vr(WPK,2)}")
    for j in range(1, 4):
        for s in range(8): a(f"v_pk_fma_f32 {vr(U+2*s,2)}, {vr(KU+2*(s+3-j),2)}, {vr(WPK+2*j,2)}, {vr(U+2*s,2)}")
    a("s_waitcnt lgkmcnt(0)")
    unp(KU+8, VR_, 8)
    for s in range(8): a(f"v_pk_mul_f32 {vr(U+2*s,2)}, {vr(U+2*s,2)}, {vr(KU+8+2*s,2)}")
    for c in range(2):
        for d in range(4):
            a(f"v_cvt_pk_bf16_f32 v{PK+4*c+d}, v{U+2*(7-2*d)+c}, v{U+2*(6-2*d)+c}")
        a(f"ds_write_b128 v21, {vr(PK+4*c,4)} offset:{OST+128*c}")
    a(f"""
    s_add_u32 s{sC}, s{sC}, 1
    s_cmp_ge_u32 s{sC}, s{sNT}
    s_cbranch_scc1 L_kv_done
    """)
    for r in range(8): a(f"v_mov_b32 v{SWT+r}, v{SWT+4+r}")
    a(f"""
    s_branch L_kv
L_kv_done:
    s_lshl_b32 s{sT0}, s{sCJ}, 8
    v_lshlrev_b32 v17, 3, v2
    s_cmp_eq_u32 s{sNT}, 1
    s_waitcnt lgkmcnt(0)
    s_barrier
    s_cbranch_scc1 L_c_busy
    s_barrier
    {nonce}
    """)
    lds_inc(XCNT)
    lds_inc(GW, perwave=True, wait=False)
    a("s_branch L_g2_pro\nL_c_busy:")
    def reads(sig):
        F = FS1 if sig else FS0
        l = [f"ds_read_b128 {vr(F+4*mt,4)}, v{BX+sig} offset:{2048*mt}" for mt in range(2)]
        for T in range(8):
            for j in range(2):
                l.append(f"ds_read_b64_tr_b16 {vr(F+8+4*T+2*j,2)}, v{BW+T} offset:{8192*sig+1024*j}")
        return l
    r0 = reads(0)
    for x in r0[:12]: a(x)
    for P in range(4):
        a(f"s_xor_b32 s{sT1}, s{sW}, {P}\ns_lshl_b32 s{sT1}, s{sT1}, 6\ns_add_u32 s{sT1}, s{sT1}, s{sT0}")
        for h in range(2): a(f"buffer_load_dwordx2 {vr(B1R+4*P+2*h,2)}, v17, {srd(sB1)}, s{sT1} offen offset:{32*h}")
        if P == 0:
            a("s_waitcnt lgkmcnt(4)")
            for x in r0[12:]: a(x)
    a(nonce)
    stamp(2)
    a(f"s_mov_b32 s{sC}, 0\ns_mov_b32 s{sNP}, 1\ns_mov_b32 s{sT0}, {SLOT}\nL_g1:")
    def step(sig, items):
        F = FS1 if sig else FS0
        ms = [(vr(ACC+(mt*8+T)*4, 4), vr(F+8+4*T, 4), vr(F+4*mt, 4)) for T in range(8) for mt in range(2)]
        ms += [(vr(CS+4*k, 4), vr(F+8+4*k, 4), vr(ONES, 4)) for k in range(2)]
        for k, (ac, A_, B_) in enumerate(ms):
            a(f"{MF} {ac}, {A_}, {B_}, {ac}")
            for _ in range(2):
                if items: a(items.pop(0))
        assert not items
    def withwait(l): return l[:12] + ["s_waitcnt lgkmcnt(4)"] + l[12:]
    a("s_waitcnt lgkmcnt(0)")
    step(0, withwait(reads(1)) + [f"v_add_u32 v{r}, s{sT0}, v{r}" for r in range(BX, BX+10)] + [f"s_cmp_ge_u32 s{sC}, 8"])
    a("""
    s_waitcnt lgkmcnt(0)
    s_cbranch_scc1 L_g1_nobar
    s_barrier
L_g1_nobar:
    """)
    step(1, withwait(reads(0)) + [f"s_add_u32 s{sNP}, s{sNP}, 1", f"s_cmp_eq_u32 s{sNP}, 3", f"s_cselect_b32 s{sNP}, 0, s{sNP}", f"s_mov_b32 s{sT0}, {SLOT}",
           f"s_cselect_b32 s{sT0}, {-2*SLOT}, s{sT0}", f"s_add_u32 s{sC}, s{sC}, 1", f"s_cmp_lt_u32 s{sC}, 10"])
    a("s_cbranch_scc1 L_g1")
    stamp(3)
    CSR, MN, NM = 24, 56, 60
    a(f"""
    s_lshl_b32 s{sT0}, s{sW}, 7
    s_add_u32 s{sT1}, s{sT0}, {XCH}
    v_add_u32 v17, s{sT1}, v0
    v_lshl_add_u32 v16, v2, 4, s{sT0}
    s_mov_b32 exec_lo, 0x10001
    s_mov_b32 exec_hi, 0x10001
    ds_write_b128 v17, {vr(CS,4)}
    ds_write_b128 v17, {vr(CS+4,4)} offset:64
    s_mov_b64 exec, -1
    """)
    lds_inc(XCNT)
    a(f"""
    s_lshl_b32 s{sT0}, s{sRB}, 1
    s_lshr_b32 s{sT1}, s{sW}, 1
    s_add_u32 s{sT0}, s{sT0}, s{sT1}
    s_mul_i32 s{sT0}, s{sT0}, {54*4096}
    s_and_b32 s{sT1}, s{sW}, 1
    s_lshl_b32 s{sT1}, s{sT1}, 11
    s_add_u32 s{sT0}, s{sT0}, s{sT1}
    s_add_u32 s{sXO}, s{sT0}, {H_OFF}
    s_lshl_b32 s{sL}, s{sCJ}, 2
    s_lshl_b32 s{sT0}, s{sW}, 8
    s_add_u32 s{sT0}, s{sT0}, {XST}
    v_lshl_add_u32 v17, v1, 3, s{sT0}
    """)
    for P in range(4): a(f"v_xor_b32 v{8+P}, {128*P}, v16\nv_add_u32 v{8+P}, {XCH}, v{8+P}")
    k0 = -2.0 * math.log2(math.e) * math.sqrt(2.0/math.pi)
    C0, C1, ONE, B1F, TT = 64, 66, 68, 70, 74
    for q in range(2): a(f"v_mov_b32 v{C0+q}, {f2u(k0):#x}\nv_mov_b32 v{C1+q}, {f2u(k0*0.044715):#x}\nv_mov_b32 v{ONE+q}, 1.0")
    lds_wait("C", XCNT, 8)
    for mt in range(2): a(f"ds_read_b64 {vr(MN+2*mt,2)}, v17 offset:{128*mt}")
    for T in range(8): a(f"ds_read_b128 {vr(CSR+4*T,4)}, v{8+(T>>1)} offset:{64*(T&1)}")
    a(f"""
    s_lshl_b32 s{sT0}, s{sRB}, 10
    s_lshl_b32 s{sT1}, s{sW}, 8
    s_add_u32 s{sT0}, s{sT0}, s{sT1}
    s_add_u32 s{sT0}, s{sT0}, {ST_OFF}
    s_cmp_eq_u32 s{sCJ}, 0
    s_cselect_b32 s{sT0}, s{sT0}, {OOB}
    v_lshlrev_b32 v17, 3, v0
    s_waitcnt vmcnt(0) lgkmcnt(8)
    s_mov_b64 exec, 0xffff
    buffer_store_dwordx2 {vr(MN,2)}, v17, {srd(sWS)}, s{sT0} offen sc0 sc1
    buffer_store_dwordx2 {vr(MN+2,2)}, v17, {srd(sWS)}, s{sT0} offen offset:128 sc0 sc1
    s_mov_b64 exec, -1
    v_mul_f32 v{NM}, -v{MN}, v{MN+1}
    v_mul_f32 v{NM+2}, -v{MN+2}, v{MN+3}
    v_mov_b32 v{MN}, v{MN+1}
    v_mov_b32 v{MN+2}, v{MN+3}
    v_mov_b32 v{NM+1}, v{NM}
    v_mov_b32 v{NM+3}, v{NM+2}
    s_waitcnt lgkmcnt(0)
    """)
    stamp(4)
    HP = 104
    for T in range(8):
        if T & 1:
            a(f"""
    s_xor_b32 s{sT1}, s{sW}, {T>>1}
    s_add_u32 s{sT1}, s{sT1}, s{sL}
    s_lshl_b32 s{sT2}, s{sT1}, 12
    s_add_u32 s{sT2}, s{sT2}, s{sXO}
    s_cmp_lt_u32 s{sT1}, 54
    s_cselect_b32 s{sT2}, s{sT2}, {OOB}
    """)
        unp(B1F, B1R + 2*T)
        for mt in range(2):
            ac = ACC + (mt*8+T)*4
            for h in range(2):
                a(f"v_pk_fma_f32 {vr(TT+2*h,2)}, {vr(CSR+4*T+2*h,2)}, {vr(NM+2*mt,2)}, {vr(B1F+2*h,2)}")
            for h in range(2):
                a(f"v_pk_fma_f32 {vr(ac+2*h,2)}, {vr(ac+2*h,2)}, {vr(MN+2*mt,2)}, {vr(TT+2*h,2)}")
            for h in range(2): a(f"v_pk_mul_f32 {vr(TT+2*h,2)}, {vr(ac+2*h,2)}, {vr(ac+2*h,2)}")
            for h in range(2): a(f"v_pk_fma_f32 {vr(TT+2*h,2)}, {vr(TT+2*h,2)}, {vr(C1,2)}, {vr(C0,2)}")
            for h in range(2): a(f"v_pk_mul_f32 {vr(TT+2*h,2)}, {vr(TT+2*h,2)}, {vr(ac+2*h,2)}")
            for r in range(4): a(f"v_exp_f32 v{TT+r}, v{TT+r}")
            for h in range(2): a(f"v_pk_add_f32 {vr(TT+2*h,2)}, {vr(TT+2*h,2)}, {vr(ONE,2)}")
            for r in range(4): a(f"v_rcp_f32 v{TT+r}, v{TT+r}")
            for h in range(2): a(f"v_pk_mul_f32 {vr(ac+2*h,2)}, {vr(ac+2*h,2)}, {vr(TT+2*h,2)}")
            for h in range(2): a(f"v_cvt_pk_bf16_f32 v{HP+(mt*8+T)*2+h}, v{ac+2*h}, v{ac+2*h+1}")
            if T & 1:
                a(f"buffer_store_dwordx4 {vr(HP+(mt*8+T-1)*2,4)}, v3, {srd(sWS)}, s{sT2} offen offset:{1024*mt} sc0 sc1")
    lds_inc(GW, perwave=True, wait=False)
    a("L_g2_pro:")
    def h_again():
        a(f"s_cmp_eq_u32 s{sNT}, 1\ns_cbranch_scc0 L_noagain")
        for P in range(4):
            a(f"""
    s_xor_b32 s{sT1}, s{sW}, {P}
    s_add_u32 s{sT1}, s{sT1}, s{sC}
    s_lshl_b32 s{sT3}, s{sT1}, 12
    s_add_u32 s{sT3}, s{sT3}, s{sXO}
    s_cmp_lt_u32 s{sT1}, 54
    s_cselect_b32 s{sT3}, s{sT3}, {OOB}
    """)
            for mt in range(2): a(f"buffer_store_dwordx4 {vr(HP+(mt*8+2*P)*2,4)}, v3, {srd(sWS)}, s{sT3} offen offset:{1024*mt}")
        a("L_noagain:")
    if not opt.get("noprio"): a("s_setprio 0")
    stamp(5)
    GA, HF, WR, HD, WD = 20, 100, 148, 3, 5
    a(f"""
    v_lshlrev_b32 v12, 12, v2
    v_lshl_add_u32 v12, v1, 7, v12
    s_lshl_b32 s{sT2}, s{sL}, 12
    s_add_u32 s{sT2}, s{sT2}, s{sXO}
    s_sub_u32 s{sT1}, 54, s{sL}
    v_cmp_gt_u32 vcc, s{sT1}, v2
    v_mov_b32 v13, {OOB}
    v_cndmask_b32 v12, v13, v12, vcc
    s_mov_b32 s{sC}, s{sL}
    s_sub_u32 s{sL}, 3, s{sW}
    s_mul_i32 s{sT0}, s{sNI}, 54
    s_add_u32 s{sT0}, s{sT0}, s{sL}
    s_mul_i32 s{sWO}, s{sT0}, 5120
    s_add_u32 s{sWO}, s{sWO}, {W2T_OFF}
    v_add_u32 v4, 4096, v3
    s_lshl_b32 s{sT0}, s{sRB}, 4
    s_add_u32 s{sT0}, s{sT0}, s{sCJ}
    s_lshl_b32 s{sT0}, s{sT0}, 2
    s_add_u32 s{sT0}, s{sT0}, s{sW}
    s_lshl_b32 s{sT0}, s{sT0}, 7
    s_add_u32 s{sT0}, s{sT0}, {FH_OFF}
    s_cmp_eq_u32 s{sNT}, 1
    s_cselect_b32 s{sT0}, s{sT0}, {OOB}
    s_cselect_b32 s{sT2}, s{sT2}, {OOB}
    """)
    wslot = [0, 1, 2, 3, 4, 1, 2, 3, 4, 0, 1, 2, 3, 4]
    def wload(j):
        if j == 13: a(f"s_cmp_ge_u32 s{sW}, 2\ns_cselect_b32 s{sWO}, s{sWO}, {OOB}")
        for t in range(5):
            a(f"buffer_load_dwordx4 {vr(WR+20*wslot[j]+4*t,4)}, v{3 if t<4 else 4}, {srd(sWS)}, s{sWO} offen offset:{1024*(t%4)} sc1")
        if j < 13: a(f"s_add_u32 s{sWO}, s{sWO}, {(5 if j == 4 else 1)*4*5120}")
    a("s_waitcnt vmcnt(0)")
    flag_store(sT0)
    if opt.get("htouch"): a(f"buffer_load_dword v14, v12, {srd(sWS)}, s{sT2} offen sc1")
    if opt.get("hagain"): h_again()
    lds_wait("A", ACNT, 1, sleep=1)
    for j in range(WD): wload(j)
    a(f"""
    s_mul_i32 s{sT1}, s{sMB}, 54
    s_add_u32 s{sT1}, s{sT1}, s{sL}
    s_lshl_b32 s{sXO}, s{sT1}, 12
    s_add_u32 s{sXO}, s{sXO}, {H_OFF}
    s_lshr_b32 s{sT0}, s{sMB}, 1
    s_lshl_b32 s{sT0}, s{sT0}, 13
    s_and_b32 s{sT1}, s{sMB}, 1
    s_lshl_b32 s{sT1}, s{sT1}, 8
    s_add_u32 s{sT0}, s{sT0}, s{sT1}
    s_add_u32 s{sT0}, s{sT0}, {FH_OFF}
    v_min_u32 v13, 27, v0
    v_lshrrev_b32 v15, 1, v13
    v_and_b32 v13, 1, v13
    v_lshlrev_b32 v13, 7, v13
    v_lshl_add_u32 v13, v15, 9, v13
    s_mul_i32 s{sT1}, s{sW}, 20480
    v_add_u32 v7, s{sT1}, v3
    s_lshl_b32 s{sT2}, s{sMB}, 6
    s_lshl_b32 s{sT1}, s{sW}, 4
    s_add_u32 s{sT2}, s{sT2}, s{sT1}
    v_add_u32 v15, s{sT2}, v1
    v_mul_u32_u24 v15, 1280, v15
    s_mul_i32 s{sCJ}, s{sNI}, 160
    v_lshl_add_u32 v5, v2, 4, v15
    v_lshl_add_u32 v6, v2, 3, v15
    """)
    for mu in range(4):
        a(f"s_xor_b32 s{sT1}, s{sW}, {mu}\ns_lshl_b32 s{sT1}, s{sT1}, 10\nv_add_u32 v{8+mu}, s{sT1}, v3")
    stamp(6)
    poll("H", [(13, sT0)], sleep=2)
    def hload(j):
        l = []
        if j == 13: l.append(f"s_cmp_ge_u32 s{sW}, 2\ns_cselect_b32 s{sXO}, s{sXO}, {OOB}")
        for mu in range(4):
            l.append(f"buffer_load_dwordx4 {vr(HF+16*(j%HD)+4*mu,4)}, v{8+mu}, {srd(sWS)}, s{sXO} offen sc1")
        if j < 13: l.append(f"s_add_u32 s{sXO}, s{sXO}, 16384")
        return l
    fifo = []
    for j in range(HD):
        for x in hload(j): a(x)
        fifo += [("h", j)] * 4
    lds_inc(HCNT, wait=False)
    stamp(7)
    for j in range(14):
        need = [i for i, e in enumerate(fifo) if e in (("h", j), ("w", j))]
        a(f"s_waitcnt vmcnt({len(fifo)-1-max(need)})" + (" lgkmcnt(0)" if j == 5 else ""))
        if j == 5: lds_inc(GCNT, wait=False)
        if j == 13: a(f"s_cmp_lt_u32 s{sW}, 2\ns_cbranch_scc1 L_g2_done")
        for mu in range(4):
            for t in range(5):
                ac = vr(GA + (mu*5+t)*4, 4)
                a(f"{MF} {ac}, {vr(WR+20*wslot[j]+4*t,4)}, {vr(HF+16*(j%HD)+4*mu,4)}, {'0' if j==0 else ac}")
                if t == 0 and mu > 0 and j + HD < 14:
                    if mu == 1:
                        hl = hload(j + HD)
                        if j + HD == 13: a(hl.pop(0))
                    a(hl.pop(0)); fifo.append(("h", j+HD))
        if j + HD < 14:
            for x in hl: a(x)
            fifo.append(("h", j+HD))
        if 1 <= j < 5:
            if j == 1: lds_wait("W", WW, 1, perwave=True)
            if j == 4: a("s_waitcnt lgkmcnt(10)")
            for t in range(5): a(f"ds_read_b128 {vr(WR+20*j+4*t,4)}, v7 offset:{5120*(j-1)+1024*t}")
        elif j < 9:
            jj = 9 if j == 0 else 5 + j
            wload(jj); fifo += [("w", jj)] * 5
    a("L_g2_done:")
    stamp(8)
    for mu in range(1, 4):
        a(f"s_xor_b32 s{sT0}, s{sW}, {mu}\ns_mul_i32 s{sT0}, s{sT0}, 15360\ns_add_u32 s{sT0}, s{sT0}, {(mu-1)*5120}\nv_add_u32 v{8+mu}, s{sT0}, v3")
    lds_wait("G", GCNT, 4)
    for mu in range(1, 4):
        for t in range(5): a(f"ds_write_b128 v{8+mu}, {vr(GA+(mu*5+t)*4,4)} offset:{1024*t}")
    a(f"""
    s_mul_i32 s{sT0}, s{sW}, 15360
    v_add_u32 v15, s{sT0}, v3
    s_mul_i32 s{sT0}, s{sW}, 5120
    s_add_u32 s{sT0}, s{sT0}, {RG}
    v_add_u32 v16, s{sT0}, v3
    s_waitcnt lgkmcnt(0)
    s_barrier
    """)
    stamp(9)
    for t in range(5): a(f"ds_read_b128 {vr(GA+80+4*t,4)}, v16 offset:{1024*t}")
    for mu in range(1, 3):
        for t in range(5): a(f"ds_read_b128 {vr(GA+(mu*5+t)*4,4)}, v15 offset:{(mu-1)*5120+1024*t}")
    for k, mu in enumerate((4, 1, 2, 3)):
        a(f"s_waitcnt lgkmcnt({(10, 10, 5, 0)[k]})")
        if k == 0:
            for t in range(5): a(f"ds_read_b128 {vr(GA+(15+t)*4,4)}, v15 offset:{2*5120+1024*t}")
        for t in range(5):
            for h in range(2):
                a(f"v_pk_add_f32 {vr(GA+4*t+2*h,2)}, {vr(GA+4*t+2*h,2)}, {vr(GA+(mu*5+t)*4+2*h,2)}")
    XR = 124
    for t in range(5):
        for h in range(2): a(f"v_cvt_pk_bf16_f32 v{XR+2*t+h}, v{GA+4*t+2*h}, v{GA+4*t+2*h+1}")
    a(f"""
    buffer_store_dwordx4 {vr(XR,4)}, v5, {srd(sOUT)}, s{sCJ} offen
    buffer_store_dwordx4 {vr(XR+4,4)}, v5, {srd(sOUT)}, s{sCJ} offen offset:64
    buffer_store_dwordx2 {vr(XR+8,2)}, v6, {srd(sOUT)}, s{sCJ} offen offset:128
    s_branch L_fin
    """)
    a(f"""
L_role_L:
    s_sub_u32 s{sW}, s{sW}, 4
    v_and_b32 v8, 7, v1
    v_xor_b32 v8, v8, v2
    v_lshlrev_b32 v8, 4, v8
    v_lshl_add_u32 v8, v1, 7, v8
    s_lshl_b32 s{sT0}, s{sW}, 12
    v_add_u32 v8, s{sT0}, v8
    v_xor_b32 v9, 64, v8
    v_mov_b32 v10, 0x3f803f80
    v_mov_b32 v40, 0
    v_mov_b32 v41, 0
    v_mov_b32 v42, 0
    v_mov_b32 v43, 0
    s_mov_b32 s{sCH}, 0
    s_cmp_ge_u32 s{sW}, 2
    s_cbranch_scc1 L_aux
    s_cmp_eq_u32 s{sNT}, 1
    s_cbranch_scc1 L_loader
    s_waitcnt lgkmcnt(0)
    s_barrier
    s_barrier
    ; no GEMM1 tile: pull the filter rows of this channel group into the L2
    s_mul_i32 s{sT0}, s{sX}, {80*4096}
    s_sub_u32 s{sT1}, s{sI}, 28
    s_lshl_b32 s{sT1}, s{sT1}, 1
    s_add_u32 s{sT1}, s{sT1}, s{sW}
    s_mul_i32 s{sT1}, s{sT1}, {10*4096}
    s_add_u32 s{sT0}, s{sT0}, s{sT1}
    v_lshlrev_b32 v21, 7, v0
    """)
    if not opt.get("x_noktouch"):
        for j in range(5): a(f"buffer_load_dword v22, v21, {srd(sSSMK)}, s{sT0} offen\ns_add_u32 s{sT0}, s{sT0}, 8192")
    a(f"""
    s_branch L_g1_over
L_loader:
    s_lshl_b32 s{sT0}, s{sRB}, 7
    s_lshl_b32 s{sT1}, s{sW}, 6
    s_add_u32 s{sT0}, s{sT0}, s{sT1}
    v_xor_b32 v22, v22, v21
    v_add_u32 v21, s{sT0}, v21
    v_mul_u32_u24 v21, 1280, v21
    v_lshl_add_u32 v24, v22, 4, v21
    s_lshl_b32 s{sT0}, s{sCJ}, 8
    s_mul_i32 s{sT1}, s{sW}, {32*3456}
    s_add_u32 s{sT0}, s{sT0}, s{sT1}
    s_cmp_eq_u32 s{sCJ}, 13
    s_cselect_b32 s{sT1}, 8, 16
    v_lshlrev_b32 v21, 1, v2
    v_xor_b32 v21, v21, v1
    v_mul_u32_u24 v22, 3456, v2
    v_add_u32 v22, s{sT0}, v22
    v_lshl_add_u32 v32, v21, 4, v22
    v_cmp_gt_u32 vcc, s{sT1}, v21
    v_xor_b32 v21, 8, v21
    v_add_u32 v22, {8*3456}, v22
    v_cndmask_b32 v32, v20, v32, vcc
    v_lshl_add_u32 v34, v21, 4, v22
    v_cmp_gt_u32 vcc, s{sT1}, v21
    s_mov_b32 s{sLD}, 0
    s_lshl_b32 s{sNP}, s{sW}, 13
    v_cndmask_b32 v34, v20, v34, vcc
    """)
    for j in range(1, 8):
        a(f"v_add_u32 v{24+j}, {10240*j}, v24")
        if j != 2: a(f"v_add_u32 v{32+j}, {3456*(4*j - (8 if j & 2 else 0))}, v{34 if j & 2 else 32}")
    if opt.get("rot"):
        a(f"""
    s_mul_i32 s{sT1}, s{sRB}, 3
    s_add_u32 s{sLD}, s{sCJ}, s{sT1}
    s_mul_i32 s{sT1}, s{sLD}, 26
    s_lshr_b32 s{sT1}, s{sT1}, 8
    s_mul_i32 s{sT1}, s{sT1}, 10
    s_sub_u32 s{sLD}, s{sLD}, s{sT1}
    """)
    def stats_chunk():
        for sg in range(2):
            for mt in range(2): a(f"ds_read_b128 {vr(44+8*sg+4*mt,4)}, v{8+sg} offset:{2048*mt}")
        a(f"""
    s_add_u32 s{sCH}, s{sCH}, 1
    s_cmp_eq_u32 s{sCH}, 3
    s_cselect_b32 s{sCH}, 0, s{sCH}
    s_mov_b32 s{sT3}, {SLOT}
    s_cselect_b32 s{sT3}, {-2*SLOT}, s{sT3}
    v_add_u32 v8, s{sT3}, v8
    v_add_u32 v9, s{sT3}, v9
    """)
        for sg in range(2):
            a(f"s_waitcnt lgkmcnt({2-2*sg})")
            for d in range(4):
                for mt in range(2):
                    r = 44+8*sg+4*mt+d
                    a(f"v_dot2_f32_bf16 v{40+2*mt}, v{r}, v10, v{40+2*mt}\nv_dot2_f32_bf16 v{41+2*mt}, v{r}, v{r}, v{41+2*mt}")
    def ld_body():
        a(f"""
    s_lshl_b32 s{sT0}, s{sLD}, 7
    s_mul_i32 s{sT1}, s{sLD}, {64*3456}
    """)
        for j in range(8):
            a(f"s_add_u32 m0, s{sNP}, {1024*j}\nbuffer_load_dwordx4 v{24+j}, {srd(sQ)}, s{sT0} offen lds")
            a(f"s_add_u32 m0, s{sNP}, {WP_O+1024*j}\nbuffer_load_dwordx4 v{32+j}, {srd(sW1)}, s{sT1} offen lds")
        a(f"""
    s_add_u32 s{sLD}, s{sLD}, 1
    s_cmp_eq_u32 s{sLD}, 10
    s_cselect_b32 s{sLD}, 0, s{sLD}
    s_add_u32 s{sNP}, s{sNP}, {SLOT}
    s_cmp_ge_u32 s{sNP}, {3*SLOT}
    s_cselect_b32 s{sT0}, {3*SLOT}, 0
    s_sub_u32 s{sNP}, s{sNP}, s{sT0}
    """)
    if opt.get("ldstamps"):
        for c in range(10):
            ld_body()
            if c >= 2: stats_chunk()
            if c >= 1:
                a(f"s_waitcnt vmcnt({16 if c < 9 else 0}) lgkmcnt(0)\ns_barrier")
                stamp(c)
        a("s_branch L_g1_over")
    else:
        a(f"s_mov_b32 s{sC}, 0\nL_ld:")
        ld_body()
        a(f"""
    s_add_u32 s{sC}, s{sC}, 1
    s_cmp_eq_u32 s{sC}, 1
    s_cbranch_scc1 L_ld
    s_cmp_eq_u32 s{sC}, 2
    s_cbranch_scc1 L_ld_nost
    """)
        stats_chunk()
        a(f"""
L_ld_nost:
    s_cmp_eq_u32 s{sC}, 10
    s_cbranch_scc1 L_ld_done
    s_waitcnt vmcnt(16)
    s_barrier
    s_branch L_ld
L_ld_done:
    s_waitcnt vmcnt(0) lgkmcnt(0)
    s_barrier
    s_branch L_g1_over
    """)
    W2R = 72
    a(f"""
L_aux:
    s_and_b32 s{sLD}, s{sW}, 1
    v_mov_b32 v23, {XCH+1536}
    v_lshl_add_u32 v23, v1, 2, v23
    v_mov_b32 v24, 0
    ds_write_b32 v23, v24
    s_lshl_b32 s{sT0}, s{sLD}, 5
    v_add_u32 v21, s{sT0}, v21
    v_lshrrev_b32 v23, 1, v21
    v_xor_b32 v23, v23, v22
    v_and_b32 v23, 7, v23
    v_lshlrev_b32 v23, 4, v23
    v_lshl_add_u32 v12, v21, 7, v23
    v_xor_b32 v13, 64, v12
    v_lshlrev_b32 v4, 12, v21
    v_lshl_add_u32 v4, v22, 4, v4
    v_add_u32 v5, {8*4096}, v4
    v_add_u32 v6, {16*4096}, v4
    v_add_u32 v7, {24*4096}, v4
    """)
    for j in range(5):
        divmod10(22, 23, 21, 64*j)
        a(f"v_mul_u32_u24 v22, 1280, v22\nv_lshl_add_u32 v{104+j}, v23, 4, v22")
    a(f"""
    s_lshl_b32 s{sWO}, s{sLD}, 5
    s_add_u32 s{sWO}, s{sWO}, s{sI}
    s_cmp_eq_u32 s{sNT}, 1
    s_mov_b32 s{sT0}, {2*TILE_ST}
    s_cselect_b32 s{sT0}, {W2ST}, s{sT0}
    s_mul_i32 s{sXO}, s{sLD}, 5120
    s_add_u32 s{sXO}, s{sXO}, s{sT0}
    v_lshrrev_b32 v21, 2, v0                  ; 4g + ((l>>2)&3)
    v_mul_u32_u24 v21, 160, v21
    v_add_u32 v21, s{sXO}, v21
    v_and_b32 v22, 3, v0
    v_lshl_add_u32 v15, v22, 3, v21
    v_lshl_add_u32 v14, v22, 4, v21
    v_add_u32 v11, 4096, v3
    s_mov_b32 s{sL}, 0
    s_waitcnt lgkmcnt(0)
    {nonce}
    s_barrier
L_aux_seg:
    s_cmp_eq_u32 s{sL}, 0
    s_cbranch_scc1 L_hook0
    s_cmp_eq_u32 s{sL}, 3
    s_cbranch_scc1 L_hook3
    s_cmp_eq_u32 s{sL}, 5
    s_cbranch_scc1 L_hook5
L_aux_st:
    s_cmp_eq_u32 s{sNT}, 1
    s_cbranch_scc0 L_aux_nost
    """)
    stats_chunk()
    a(f"""
L_aux_nost:
    s_add_u32 s{sL}, s{sL}, 1
    s_cmp_eq_u32 s{sL}, 3
    s_cbranch_scc1 L_aux_ack
    s_cmp_eq_u32 s{sL}, 8
    s_cbranch_scc1 L_aux_last
    s_cmp_eq_u32 s{sNT}, 1
    s_cbranch_scc0 L_aux_seg
    s_barrier
    s_branch L_aux_seg
L_aux_ack:
    s_waitcnt vmcnt(0)
    s_barrier
    s_branch L_aux_seg
L_hook0:
    s_mov_b32 s{sC}, 0
L_rb:
    """)
    tile_base(sM0, sC)
    a(f"v_add_u32 v21, s{sM0}, v12\nv_add_u32 v22, s{sM0}, v13")
    for q in range(4): a(f"ds_read_b128 {vr(72+4*q,4)}, v{22 if q & 1 else 21} offset:{OST+1024*q}")
    a(f"""
    s_add_u32 s{sT0}, s{sTAU}, s{sC}
    s_and_b32 s{sT1}, s{sT0}, 31
    s_lshr_b32 s{sT0}, s{sT0}, 5
    s_lshl_b32 s{sT0}, s{sT0}, 18
    s_lshl_b32 s{sT1}, s{sT1}, 7
    s_sub_u32 s{sT0}, s{sT0}, s{sT1}
    s_add_u32 s{sT0}, s{sT0}, {KVT_OFF + 1984*2}
    s_add_u32 s{sC}, s{sC}, 1
    s_waitcnt lgkmcnt(0)
    """)
    for q in range(4): a(f"buffer_store_dwordx4 {vr(72+4*q,4)}, v{4+q}, {srd(sWS)}, s{sT0} offen sc0 sc1")
    a(f"""
    s_cmp_lt_u32 s{sC}, s{sNT}
    s_cbranch_scc1 L_rb
    s_branch L_aux_st
L_hook3:
    s_lshl_b32 s{sT0}, s{sTAU}, 7
    s_add_u32 s{sT0}, s{sT0}, {FP_OFF}
    s_cmp_eq_u32 s{sW}, 2
    s_cselect_b32 s{sT0}, s{sT0}, {OOB}
    s_bfm_b32 s{sT1}, s{sNT}, 0
    v_lshlrev_b32 v21, 7, v0
    v_mov_b32 v19, s{sNON}
    s_mul_i32 s{sT2}, s{sWO}, {32*1280}
    s_mul_i32 s{sT3}, s{sX}, 160
    s_add_u32 s{sT2}, s{sT2}, s{sT3}
    s_mov_b32 exec_lo, s{sT1}
    s_mov_b32 exec_hi, 0
    buffer_store_dword v19, v21, {srd(sWS)}, s{sT0} offen sc0 sc1
    s_mov_b64 exec, -1
    """)
    for j in range(5): a(f"s_add_u32 m0, s{sXO}, {1024*j}\nbuffer_load_dwordx4 v{104+j}, {srd(sW2)}, s{sT2} offen lds")
    a(f"""
    s_branch L_aux_st
L_hook5:
    s_mul_i32 s{sT3}, s{sX}, 54
    s_add_u32 s{sT3}, s{sT3}, s{sWO}
    s_mul_i32 s{sT3}, s{sT3}, 5120
    s_add_u32 s{sT3}, s{sT3}, {W2T_OFF}
    s_cmp_ge_u32 s{sWO}, 54
    s_cselect_b32 s{sT2}, {OOB}, s{sT3}
    s_waitcnt vmcnt(0)
    """)
    for t in range(5):
        for j in range(2):
            if t < 4: a(f"ds_read_b64_tr_b16 {vr(W2R+4*t+2*j,2)}, v14 offset:{2560*j + 8*(t&1) + 64*(t>>1)}")
            else: a(f"ds_read_b64_tr_b16 {vr(W2R+4*t+2*j,2)}, v15 offset:{2560*j + 128}")
    a("s_waitcnt lgkmcnt(0)")
    for t in range(5):
        a(f"buffer_store_dwordx4 {vr(W2R+4*t,4)}, v{3 if t<4 else 11}, {srd(sWS)}, s{sT2} offen offset:{1024*(t%4)} sc0 sc1")
    a(f"""
    s_branch L_aux_st
L_aux_last:
    s_lshl_b32 s{sT0}, s{sX}, 5
    s_add_u32 s{sT0}, s{sT0}, s{sI}
    s_lshl_b32 s{sT0}, s{sT0}, 1
    s_add_u32 s{sT0}, s{sT0}, s{sLD}
    s_lshl_b32 s{sT0}, s{sT0}, 7
    s_add_u32 s{sT0}, s{sT0}, {FA_OFF}
    s_cmp_eq_u32 s{sNT}, 1
    s_cbranch_scc0 L_aux_nob8
    s_barrier
L_aux_nob8:
    s_waitcnt vmcnt(0)
    """)
    flag_store(sT0)
    a(f"""
    s_branch L_aux_over
L_g1_over:
    {nonce}
L_aux_over:
    s_cmp_eq_u32 s{sNT}, 1
    s_cbranch_scc0 L_st_done
    s_mov_b32 s{sC}, 0
L_st_tail:
    """)
    stats_chunk()
    a(f"""
    s_add_u32 s{sC}, s{sC}, 1
    s_cmp_lt_u32 s{sC}, 2
    s_cbranch_scc1 L_st_tail
    s_mov_b32 s{sT0}, 0x3acccccd
    s_mov_b32 s{sT1}, 0x3727c5ac
    s_nop 0
    """)
    for sw in ("v_permlane32_swap_b32", "v_permlane16_swap_b32"):
        for r in range(4): a(f"v_mov_b32 v{44+r}, v{40+r}")
        for r in range(4): a(f"{sw} v{40+r}, v{44+r}")
        for r in range(4): a(f"v_add_f32 v{40+r}, v{40+r}, v{44+r}")
    for m in (40, 42):
        a(f"v_mul_f32 v{m}, s{sT0}, v{m}\nv_mul_f32 v{m+1}, s{sT0}, v{m+1}")
    for m in (40, 42): a(f"v_fma_f32 v{m+1}, -v{m}, v{m}, v{m+1}")
    for m in (40, 42): a(f"v_max_f32 v{m+1}, 0, v{m+1}")
    for m in (40, 42): rbf(m+1)
    for m in (40, 42): a(f"v_add_f32 v{m+1}, s{sT1}, v{m+1}")
    for m in (40, 42): rbf(m+1)
    for m in (40, 42): a(f"v_sqrt_f32 v{m+1}, v{m+1}")
    for m in (40, 42): rbf(m)
    for m in (40, 42): rbf(m+1)
    for m in (40, 42): a(f"v_rcp_f32 v{m+1}, v{m+1}")
    a(f"""
    s_lshl_b32 s{sT0}, s{sW}, 8
    s_add_u32 s{sT0}, s{sT0}, {XST}
    v_lshl_add_u32 v21, v1, 3, s{sT0}
    ds_write_b64 v21, v[40:41]
    ds_write_b64 v21, v[42:43] offset:128
L_st_done:
    """)
    lds_inc(XCNT)
    if opt.get("ldstamps"):
        stamp0 = stamp
        stamp = lambda k: stamp0(k) if k == 10 else None
    stamp(1)
    KVR, K0R, DR = 20, 36, 38
    a(f"""
    s_mul_i32 s{sT0}, s{sI}, 5
    s_lshr_b32 s{sT0}, s{sT0}, 1
    s_mul_i32 s{sCH}, s{sX}, 80
    s_add_u32 s{sCH}, s{sCH}, s{sT0}
    s_and_b32 s{sCNT}, s{sI}, 1
    s_add_u32 s{sCNT}, s{sCNT}, 2
    v_and_b32 v12, 31, v0
    v_lshlrev_b32 v12, 7, v12
    v_add_u32 v16, 1, v1
    v_and_b32 v17, 3, v16
    v_mul_u32_u24 v17, 4160, v17
    v_and_b32 v16, 28, v16
    v_lshl_add_u32 v17, v16, 1, v17
    v_lshl_add_u32 v5, v2, 4, v17
    v_lshlrev_b32 v16, 5, v1
    s_lshl_b32 s{sT0}, s{sW}, 12
    s_add_u32 s{sT0}, s{sT0}, {ZST}
    v_lshl_add_u32 v8, v2, 3, v16
    v_add_u32 v8, s{sT0}, v8
    v_add_u32 v9, s{sT0}, v3
    v_sub_u32 v16, {16640+480}, v16
    v_lshl_add_u32 v6, v2, 4, v16
    v_lshlrev_b32 v17, 3, v2
    v_sub_u32 v7, v16, v17
    v_add_u32 v7, 24, v7
    s_cmp_eq_u32 s{sW}, 3
    s_cbranch_scc1 L_w3
    s_cmp_ge_u32 s{sW}, s{sCNT}
    s_cbranch_scc1 L_staged
    s_add_u32 s{sCH}, s{sCH}, s{sW}
    s_mul_i32 s{sM0}, s{sW}, {CONV_STRIDE}
    s_add_u32 s{sM0}, s{sM0}, {RG}
    s_lshl_b32 s{sT0}, s{sCH}, 12
    s_lshr_b32 s{sT1}, s{sCH}, 6
    s_lshl_b32 s{sT1}, s{sT1}, 12
    s_add_u32 s{sT1}, s{sT1}, {FP_OFF}
    """)
    poll("K", [(12, sT1)])
    a(f"s_add_u32 s{sT1}, s{sT0}, {KVT_OFF}")
    for j in range(4): a(f"buffer_load_dwordx4 {vr(KVR+4*j,4)}, v3, {srd(sWS)}, s{sT1} offen offset:{1024*j} sc1")
    a(f"buffer_load_dwordx2 {vr(K0R,2)}, off, {srd(sSSMK)}, s{sT0}")
    a(f"s_lshl_b32 s{sT1}, s{sCH}, 1\nbuffer_load_ushort v{DR}, off, {srd(sSSMD)}, s{sT1}")
    for cp in range(4):
        a(f"s_add_u32 m0, s{sM0}, {cp*4160+32}\ns_add_u32 s{sT1}, s{sT0}, {2*cp}")
        for j in range(4): a(f"buffer_load_dwordx4 v3, {srd(sSSMK)}, s{sT1} offen offset:{1024*j} lds")
    a(f"""
    s_add_u32 s{sT0}, s{sM0}, 16640
    v_add_u32 v15, s{sT0}, v3
    v_add_u32 v5, s{sM0}, v5
    v_add_u32 v6, s{sM0}, v6
    v_add_u32 v7, s{sM0}, v7
    v_mov_b32 v40, 0
    v_mov_b32 v41, 0
    v_mov_b32 v42, 0
    v_mov_b32 v43, 0
    s_mov_b64 exec, 0x3fffffff
    ds_write_b128 v15, v[40:43] offset:4096
    s_mov_b64 exec, -1
    v_lshrrev_b32 v16, 1, v0
    v_lshlrev_b32 v17, 4, v16
    v_sub_u32 v17, 48, v17
    v_and_b32 v18, 1, v0
    v_mul_u32_u24 v16, 4160, v16
    v_lshl_add_u32 v16, v18, 4, v16
    v_add_u32 v16, s{sM0}, v16
    v_cmp_eq_u32 vcc, 1, v18
    s_waitcnt vmcnt(16)
    """)
    for j in range(4): a(f"ds_write_b128 v15, {vr(KVR+4*j,4)} offset:{1024*j}")
    a(f"""
    v_lshlrev_b64 v[42:43], v17, {vr(K0R,2)}
    v_lshlrev_b64 v[42:43], 16, v[42:43]
    v_lshlrev_b32 v{DR}, 16, v{DR}
    v_cndmask_b32 v42, 0, v42, vcc
    v_cndmask_b32 v43, 0, v43, vcc
    v_mov_b32 v{DR+1}, v{DR}
    s_mov_b64 exec, 0xff
    ds_write_b128 v16, v[40:43]
    s_mov_b64 exec, -1
    s_waitcnt vmcnt(0)
    """)
    lds_inc(SCNT)
    a(f"""
    s_branch L_staged
L_w3:
    v_lshlrev_b32 v13, 7, v0
    s_lshl_b32 s{sT1}, s{sNI}, 13
    s_add_u32 s{sT1}, s{sT1}, {FA_OFF}
    s_lshl_b32 s{sT0}, s{sCH}, 1
    v_lshlrev_b32 v14, 1, v0
    buffer_load_ushort v{DR}, v14, {srd(sSSMD)}, s{sT0} offen
    """)
    poll("P", [(13, sT1)])
    a(f"v_lshlrev_b32 v{DR}, 16, v{DR}")
    lds_inc(ACNT, wait=False)
    a(f"""
    s_cmp_lg_u32 s2, 0
    s_cbranch_scc1 L_staged
    v_lshlrev_b32 v13, 8, v0
    s_mov_b32 s{sT0}, {FA_OFF}
    s_mov_b32 s{sT1}, {FA_OFF+16384}
    s_mov_b32 s{sT2}, {FA_OFF+32768}
    s_mov_b32 s{sT3}, {FA_OFF+49152}
    """)
    poll("N", [(13, sT0), (13, sT1), (13, sT2), (13, sT3)])
    a(f"s_mov_b32 s{sT0}, {NONCE_OFF}")
    flag_store(sT0)
    a("L_staged:")
    stamp(2)
    lds_wait("X", XCNT, 8, sleep=1)
    lds_wait("A2", ACNT, 1, sleep=1)
    a(f"""
    s_mul_i32 s{sT0}, s{sNI}, 54
    s_sub_u32 s{sT0}, s{sT0}, s{sW}
    s_add_u32 s{sT0}, s{sT0}, 23
    s_mul_i32 s{sT0}, s{sT0}, 5120
    s_add_u32 s{sT0}, s{sT0}, {W2T_OFF}
    s_mul_i32 s{sT1}, s{sW}, 20480
    v_add_u32 v4, 4096, v3
    """)
    thr = 30 if opt.get("x_nothr") else 5
    for j in range(4):
        a(f"s_add_u32 m0, s{sT1}, {5120*j}")
        for t in range(4): a(f"s_waitcnt vmcnt({thr})\nbuffer_load_dwordx4 v3, {srd(sWS)}, s{sT0} offen offset:{1024*t} sc1 lds")
        a(f"s_add_u32 m0, s{sT1}, {5120*j+4096}\nbuffer_load_dwordx4 v4, {srd(sWS)}, s{sT0} offen sc1 lds\ns_add_u32 s{sT0}, s{sT0}, 20480")
    if opt.get("wtouch"):
        a(f"""
    s_and_b32 s{sT1}, s{sMB}, 3
    s_mul_i32 s{sT2}, s{sT1}, 20480
    s_add_u32 s{sT0}, s{sT0}, s{sT2}
    s_lshl_b32 s{sT1}, s{sT1}, 2
    s_sub_u32 s{sT1}, s{sT1}, s{sW}
    s_cmp_le_i32 s{sT1}, 10
    s_cselect_b32 s{sT0}, s{sT0}, {OOB}
    {'v_min_u32 v13, 39, v0' if opt.get("mapP") else f's_lshr_b32 s{sT1}, s{sMB}, 2'}
    """)
        if not opt.get("mapP"): a(f"s_and_b32 s{sT1}, s{sT1}, 1\ns_mul_i32 s{sT1}, s{sT1}, 20\nv_min_u32 v13, 19, v0\nv_add_u32 v13, s{sT1}, v13")
        a(f"v_lshlrev_b32 v13, 7, v13\nbuffer_load_dword v14, v13, {srd(sWS)}, s{sT0} offen sc1")
    stamp(3)
    a(f"s_mov_b32 s{sNP}, 0\ns_cmp_eq_u32 s{sW}, 3\ns_cbranch_scc1 L_convY\ns_cmp_lt_u32 s{sW}, s{sCNT}\ns_cbranch_scc1 L_convX\ns_waitcnt vmcnt(0)")
    lds_inc(WW, perwave=True, wait=False)
    a("s_branch L_conv_done\nL_convX:")
    CA, CB, CACC, UR = (40, 104), (72, 136), 168, 200
    def creads(par, off, ai, bi):
        A_, B_ = CA[par], CB[par]
        l = []
        for i in range(8):
            if i in bi: l.append(f"ds_read_b128 {vr(B_+4*i,4)}, v11 offset:{off+512*i}")
            if i in ai:
                l.append(f"ds_read_b64 {vr(A_+4*i,2)}, v10 offset:{off+512*i}")
                l.append(f"ds_read_b64 {vr(A_+4*i+2,2)}, v10 offset:{off+512*i+8}")
        return l
    def conv_first(ai, bi):
        first = creads(0, 0, ai, bi)
        for x in first[:12]: a(x)
        if len(first) > 12: a("s_waitcnt lgkmcnt(3)")
        for x in first[12:]: a(x)
    def conv_loop(tag, ds, ai, bi):
        for d in ds:
            for r in range(4): a(f"v_mov_b32 v{CACC+4*(7-d)+r}, 0")
        a(f"s_mov_b32 s{sC}, 0\nL_cv{tag}:")
        for par in range(2):
            A_, B_ = CA[par], CB[par]
            nxt = creads(par ^ 1, 64*(par+1), ai, bi)
            if len(nxt) > 12: nxt = nxt[:12] + ["s_waitcnt lgkmcnt(3)"] + nxt[12:]
            if par == 0 and tag == "Y":
                nxt += [f"s_cmp_eq_u32 s{sC}, 3", f"s_cselect_b32 s{sT2}, {CONV_STRIDE-512}, 0", f"v_add_u32 v10, s{sT2}, v10", f"v_add_u32 v11, s{sT2}, v11"]
            if par == 1: nxt += ["v_add_u32 v10, 128, v10", "v_add_u32 v11, 128, v11", f"s_add_u32 s{sC}, s{sC}, 1", f"s_cmp_lt_u32 s{sC}, 4"]
            ms = [(ip, ip - d) for ip in range(8) for d in reversed(ds) if ip - d >= 0]
            a("s_waitcnt lgkmcnt(0)")
            for k, (ip, i) in enumerate(ms):
                ac = vr(CACC + 4*(7-(ip-i)), 4)
                a(f"{MF} {ac}, {vr(A_+4*i,4)}, {vr(B_+4*ip,4)}, {ac}")
                for _ in range(2):
                    if nxt: a(nxt.pop(0))
            assert not nxt
        a(f"s_cbranch_scc0 L_cvd{tag}\ns_or_b32 s{sT1}, s{sC}, s{sNP}\ns_cmp_lg_u32 s{sT1}, 2\ns_cbranch_scc1 L_cv{tag}\ns_waitcnt vmcnt(0)\ns_mov_b32 s{sNP}, 8")
        lds_inc(WW, perwave=True, wait=False)
        a(f"s_branch L_cv{tag}\nL_cvd{tag}:\ns_waitcnt lgkmcnt(0)")
    def z_tiles(tiles, ubase, dreg, slot0):
        for k, jt in enumerate(tiles): a(f"ds_read_b64 {vr(UR+2*k,2)}, v{ubase} offset:{512*(7-jt)}")
        a("s_waitcnt lgkmcnt(0)")
        for k, jt in enumerate(tiles):
            ac = CACC + 4*jt; u = UR + 2*k
            a(f"""
    v_and_b32 v212, 0xffff0000, v{u+1}
    v_lshlrev_b32 v213, 16, v{u+1}
    v_and_b32 v214, 0xffff0000, v{u}
    v_lshlrev_b32 v215, 16, v{u}
    v_pk_fma_f32 {vr(ac,2)}, v[212:213], {vr(dreg,2)}, {vr(ac,2)}
    v_pk_fma_f32 {vr(ac+2,2)}, v[214:215], {vr(dreg,2)}, {vr(ac+2,2)}
    v_cvt_pk_bf16_f32 v{u}, v{ac}, v{ac+1}
    v_cvt_pk_bf16_f32 v{u+1}, v{ac+2}, v{ac+3}
    ds_write_b64 v8, {vr(u,2)} offset:{512*(slot0+k)}
    """)
    a("v_mov_b32 v10, v5\nv_mov_b32 v11, v6")
    conv_first(range(8), range(8))
    lds_wait("GX", GW, 1, perwave=True, sleep=1)
    if not opt.get("noprio"): a("s_setprio 2")
    stamp(4)
    conv_loop("X", [0, 1, 2, 3, 7], range(8), range(8))
    stamp(5)
    z_tiles([4, 5, 6, 7, 0], 7, DR, 0)
    a(f"""
    s_lshl_b32 s{sT0}, s{sCH}, 12
    s_add_u32 s{sT0}, s{sT0}, {Z_OFF}
    s_waitcnt lgkmcnt(0)
    """)
    for j in range(3): a(f"ds_read_b128 {vr(220+4*j,4)}, v9 offset:{1024*j}")
    for j in range(2):
        a(f"s_waitcnt lgkmcnt({2-j})\nbuffer_store_dwordx4 {vr(220+4*j,4)}, v3, {srd(sWS)}, s{sT0} offen offset:{2048+1024*j} sc0 sc1")
    a(f"""
    s_waitcnt lgkmcnt(0)
    s_mov_b32 exec_hi, 0
    buffer_store_dwordx4 {vr(228,4)}, v3, {srd(sWS)}, s{sT0} offen sc0 sc1
    s_mov_b32 exec_hi, -1
    s_branch L_conv_sig
L_convY:
    """)
    lds_wait("S", SCNT, f"s{sCNT}", sleep=1)
    a(f"""
    s_mov_b32 s{sLD}, 0
    v_add_u32 v10, {RG}, v5
    v_add_u32 v11, {RG}, v6
    v_add_u32 v12, {RG}, v7
    """)
    conv_first(range(4), range(4, 8))
    lds_wait("GY", GW, 1, perwave=True, sleep=1)
    if not opt.get("noprio"): a("s_setprio 2")
    stamp(4)
    a(f"L_cy:\nv_readlane_b32 s{sT0}, v{DR}, s{sLD}")
    conv_loop("Y", [4, 5, 6], range(4), range(4, 8))
    a(f"v_mov_b32 v216, s{sT0}\nv_mov_b32 v217, s{sT0}")
    z_tiles([1, 2, 3], 12, 216, 0)
    a(f"""
    s_add_u32 s{sT0}, s{sCH}, s{sLD}
    s_lshl_b32 s{sT0}, s{sT0}, 12
    s_add_u32 s{sT0}, s{sT0}, {Z_OFF+512}
    v_add_u32 v12, {CONV_STRIDE}, v12
    s_waitcnt lgkmcnt(0)
    ds_read_b128 v[220:223], v9
    ds_read_b128 v[224:227], v9 offset:1024
    s_add_u32 s{sLD}, s{sLD}, 1
    s_cmp_lt_u32 s{sLD}, s{sCNT}
    s_waitcnt lgkmcnt(0)
    buffer_store_dwordx4 v[220:223], v3, {srd(sWS)}, s{sT0} offen sc0 sc1
    s_mov_b32 exec_hi, 0
    buffer_store_dwordx4 v[224:227], v3, {srd(sWS)}, s{sT0} offen offset:1024 sc0 sc1
    s_mov_b32 exec_hi, -1
    s_cbranch_scc1 L_cy
    """)
    stamp(5)
    a(f"""
L_conv_sig:
    {'s_setprio 0' if not opt.get("noprio") else ''}
    s_lshl_b32 s{sT0}, s{sX}, 5
    s_add_u32 s{sT0}, s{sT0}, s{sI}
    s_lshl_b32 s{sT0}, s{sT0}, 7
    s_add_u32 s{sT0}, s{sT0}, {FZ_OFF}
    v_mov_b32 v16, {ZCNT}
    v_mov_b32 v17, 1
    s_waitcnt vmcnt(0)
    s_mov_b64 exec, 1
    ds_add_rtn_u32 v17, v16, v17
    s_waitcnt lgkmcnt(0)
    s_mov_b64 exec, -1
    v_readfirstlane_b32 s{sT1}, v17
    s_cmp_lg_u32 s{sT1}, s{sCNT}
    s_cbranch_scc1 L_conv_done
    """)
    flag_store(sT0)
    a(f"L_conv_done:\ns_add_u32 s{sCNT}, s{sCNT}, 1")
    stamp(6)
    lds_wait("Z", ZCNT, f"s{sCNT}", sleep=2)
    XR, B2R, STR, ZR, ZT, PR = 20, 30, 40, 44, 56, 68
    a(f"""
    s_lshl_b32 s{sT0}, s{sMB}, 6
    s_lshl_b32 s{sT1}, s{sW}, 4
    s_add_u32 s{sL}, s{sT0}, s{sT1}
    s_mul_i32 s{sT0}, s{sL}, 1280
    s_mul_i32 s{sT2}, s{sNI}, 160
    s_add_u32 s{sT0}, s{sT0}, s{sT2}
    s_mul_i32 s{sM0}, s{sW}, 5120
    s_add_u32 s{sM0}, s{sM0}, {RG}
    """)
    for j in range(3):
        divmod10(22, 23, 21, 64*j)
        a(f"""
    v_mul_u32_u24 v22, 1280, v22
    v_lshl_add_u32 v22, v23, 4, v22
    s_add_u32 m0, s{sM0}, {2560+1024*j}
    {'s_mov_b32 exec_hi, 0' if j == 2 else ''}
    buffer_load_dwordx4 v22, {srd(sQ)}, s{sT0} offen lds
    """)
    a(f"""
    s_mov_b32 exec_hi, -1
    v_lshlrev_b32 v17, 4, v2
    v_lshlrev_b32 v18, 3, v2
    v_lshlrev_b32 v12, 3, v1
    s_lshl_b32 s{sT1}, s{sL}, 3
    s_add_u32 s{sT1}, s{sT1}, {ST_OFF}
    buffer_load_dwordx4 {vr(B2R,4)}, v17, {srd(sB2)}, s{sT2} offen
    buffer_load_dwordx4 {vr(B2R+4,4)}, v17, {srd(sB2)}, s{sT2} offen offset:64
    buffer_load_dwordx2 {vr(B2R+8,2)}, v18, {srd(sB2)}, s{sT2} offen offset:128
    s_lshl_b32 s{sT0}, s{sNI}, 12
    s_add_u32 s{sT0}, s{sT0}, {FZ_OFF}
    v_and_b32 v14, 31, v0
    v_lshlrev_b32 v14, 7, v14
    """)
    lds_wait("H", HCNT, 4, sleep=2)
    a(f"buffer_load_dwordx2 {vr(STR,2)}, v12, {srd(sWS)}, s{sT1} offen sc1")
    poll("Z", [(14, sT0)])
    stamp(7)
    a(f"""
    s_mul_i32 s{sT0}, s{sNI}, {80*4096}
    s_lshl_b32 s{sT1}, s{sL}, 1
    s_add_u32 s{sT0}, s{sT0}, s{sT1}
    s_add_u32 s{sT0}, s{sT0}, {Z_OFF}
    v_lshrrev_b32 v15, 1, v0
    v_lshlrev_b32 v15, 12, v15
    v_and_b32 v16, 1, v0
    v_lshl_add_u32 v15, v16, 4, v15
    v_add_u32 v16, {32*4096}, v15
    v_add_u32 v17, {64*4096}, v15
    buffer_load_dwordx4 {vr(ZR,4)}, v15, {srd(sWS)}, s{sT0} offen sc1
    buffer_load_dwordx4 {vr(ZR+4,4)}, v16, {srd(sWS)}, s{sT0} offen sc1
    s_mov_b32 exec_hi, 0
    buffer_load_dwordx4 {vr(ZR+8,4)}, v17, {srd(sWS)}, s{sT0} offen sc1
    s_mov_b32 exec_hi, -1
    v_add_u32 v15, s{sM0}, v3
    v_mul_u32_u24 v16, 160, v1
    v_add_u32 v16, s{sM0}, v16
    v_lshl_add_u32 v17, v2, 4, v16
    v_lshl_add_u32 v16, v2, 3, v16
    ds_read_b128 {vr(XR,4)}, v17 offset:2560
    ds_read_b128 {vr(XR+4,4)}, v17 offset:{2560+64}
    ds_read_b64 {vr(XR+8,2)}, v16 offset:{2560+128}
    v_lshrrev_b32 v16, 2, v0
    v_and_b32 v17, 3, v0
    v_lshlrev_b32 v17, 3, v17
    v_add_u32 v17, s{sM0}, v17
    v_lshl_add_u32 v18, v16, 5, v17
    v_lshl_add_u32 v16, v2, 2, v16
    v_lshl_add_u32 v16, v16, 5, v17
    v_mov_b32 v{STR+2}, v{STR+1}
    v_mov_b32 v{STR+3}, v{STR+1}
    v_mov_b32 v{STR+1}, v{STR}
    s_waitcnt lgkmcnt(0)
    """)
    for t in range(5):
        x = PR + 4*t; xn = 104 + 4*t
        unp(x, XR + 2*t); unp(96, B2R + 2*t)
        for h in range(2): a(f"v_pk_add_f32 {vr(xn+2*h,2)}, {vr(x+2*h,2)}, {vr(STR,2)} neg_lo:[0,1] neg_hi:[0,1]")
        for h in range(2): a(f"v_pk_add_f32 {vr(x+2*h,2)}, {vr(x+2*h,2)}, {vr(96+2*h,2)}")
        for h in range(2): a(f"v_pk_mul_f32 {vr(xn+2*h,2)}, {vr(xn+2*h,2)}, {vr(STR+2,2)}")
    a(f"""
    s_waitcnt vmcnt(0)
    ds_write_b128 v15, {vr(ZR,4)}
    ds_write_b128 v15, {vr(ZR+4,4)} offset:1024
    s_mov_b32 exec_hi, 0
    ds_write_b128 v15, {vr(ZR+8,4)} offset:2048
    s_mov_b32 exec_hi, -1
    s_waitcnt lgkmcnt(0)
    """)
    for t in range(5):
        if t < 4: a(f"ds_read_b64_tr_b16 {vr(ZT+2*t,2)}, v16 offset:{32*(32*(t>>1)+4*(t&1))}")
        else: a(f"ds_read_b64_tr_b16 {vr(ZT+2*t,2)}, v18 offset:{32*64}")
    a("s_waitcnt lgkmcnt(0)")
    for t in range(5):
        x = PR + 4*t; xn = 104 + 4*t
        unp(92, ZT + 2*t)
        for h in range(2): a(f"v_pk_fma_f32 {vr(x+2*h,2)}, {vr(xn+2*h,2)}, {vr(92+2*h,2)}, {vr(x+2*h,2)}")
        a(f"ds_write_b128 v15, {vr(x,4)} offset:{1024*t}")
    a("s_waitcnt lgkmcnt(0)")
    stamp(8)
    a(f"s_barrier\ns_add_u32 s{sW}, s{sW}, 4")
    stamp(9)
    a("L_fin:")
    dbl = [k for k in opt if k.startswith("dbl:")]
    if dbl:
        _, i, j, mult = dbl[0].split(":"); i, j, mult = int(i), int(j), int(mult)
        a("s_waitcnt vmcnt(0)")
        stamp(10)
        a(f"""
    s_waitcnt lgkmcnt(0)
    s_cmp_ge_u32 s{sW}, 4
    s_cbranch_scc1 L_end
    s_cmp_lg_u32 s{sNT}, 1
    s_cbranch_scc1 L_end
    s_sub_u32 s{sT0}, s{sTS+2*j}, s{sTS+2*i}
    s_mul_i32 s{sT0}, s{sT0}, {mult}
    s_min_u32 s{sT0}, s{sT0}, 100000
L_dbl:
    s_memrealtime s[{sT4}:{sT5}]
    s_waitcnt lgkmcnt(0)
    s_sub_u32 s{sT1}, s{sT4}, s{sTS+20}
    s_cmp_lt_u32 s{sT1}, s{sT0}
    s_cbranch_scc1 L_dbl
    """)
    elif stamps:
        a("s_waitcnt vmcnt(0)")
        stamp(10)
        a("s_waitcnt lgkmcnt(0)")
        for k in range(12):
            a(f"v_mov_b32 v{40+k}, s{sTS+2*k}" if k < 11 else f"v_mov_b32 v{40+k}, 0")
        a(f"""
    s_lshl_b32 s{sT0}, s2, 3
    s_add_u32 s{sT0}, s{sT0}, s{sW}
    s_lshl_b32 s{sT0}, s{sT0}, 6
    s_add_u32 s{sT0}, s{sT0}, {TS_OFF}
    s_mov_b64 exec, 1
    buffer_store_dwordx4 v[40:43], off, {srd(sWS)}, s{sT0}
    buffer_store_dwordx4 v[44:47], off, {srd(sWS)}, s{sT0} offset:16
    buffer_store_dwordx4 v[48:51], off, {srd(sWS)}, s{sT0} offset:32
    """)
    a("""
L_end:
    s_endpgm
.section .rodata,"a"
.p2align 6
""")
    def add_nt(srds):
        out = []
        for x in a.l:
            if "buffer_load" in x and any(srd(b) in x for b in srds) and " nt" not in x:
                x = x.replace(" lds", " nt lds") if x.rstrip().endswith(" lds") else x + " nt"
            out.append(x)
        a.l = out
    if opt.get("nt1"): add_nt([sK, sV, sW2, sSSMK])
    if opt.get("ntx"): add_nt([sQ])
    if opt.get("ntw"): add_nt([sW1])
    a(kd(NAME, 256, accum=256))
    return a.text(dopad=True), a

if __name__ == "__main__":
    out = sys.argv[1] if len(sys.argv) > 1 else "k.s"
    opt = {k: 1 for k in sys.argv[2:]}
    t, a = gen(stamps=bool(opt.get("stamps")), opt=opt)
    open(out, "w").write(t)
    print("nops inserted:", a.nops, "lines", len(t.split("\n")))
```

```python
import sys, struct, math
from asm import *

NAME = "parallel_sum__ssm_conv_h3__dense_activation_gelu__prompt_kernel"
NONCE_OFF, FP_OFF, FA_OFF, FZ_OFF, FH_OFF = 0x0, 0x1080000, 0x1090000, 0x10a0000, 0x10b0000
H_OFF, W2T_OFF, KVT_OFF, Z_OFF, ST_OFF, TS_OFF, WS_REC = 0x10000, 0x700000, 0xA00000, 0xD00000, 0x1000000, 0x1010000, 0x1100000
OOB = 0x40000000
LDS_BYTES = 163840
SLOT, WP_O = 32768, 16384
RG = 3 * SLOT
OST, TILE_ST = 20480, 28672
W2ST = RG + TILE_ST
CONV_STRIDE = 21248
XCH = RG + 3 * CONV_STRIDE
XST = XCH + 512
XCNT, ZCNT, SCNT, HCNT, GCNT, ACNT, ZRDY, FCNT, GW, WW = [XCH + 1536 + o for o in (0, 4, 8, 12, 16, 20, 24, 28, 32, 48)]
ZST = 81920
sQ, sK, sV, sSHK, sSSMK, sSSMD, sW1, sB1, sW2, sB2, sOUT, sWS = [4 + 4*i for i in range(12)]
srd = lambda b: f"s[{b}:{b+3}]"
(sW, sX, sI, sRB, sCJ, sNT, sTAU, sMB, sNI, sC, sT0, sT1, sT2, sT3, sCH, sXO, sNON, sSPIN, sL, sCNT) = range(52, 72)
(sWO, sM0, sNP, sLD, sT4, sT5) = range(72, 78)
sTS = 78

def vr(b, n): return f"v[{b}:{b+n-1}]" if n > 1 else f"v{b}"
f2u = lambda x: struct.unpack("<I", struct.pack("<f", x))[0]
MF = "v_mfma_f32_16x16x32_bf16"

def gen(stamps=False, opt=None):
    opt = opt or {}
    a = A()
    def stamp(k):
        if stamps:
            a(f"{'s_memtime' if opt.get('cyc') else 's_memrealtime'} s[{sTS+2*k}:{sTS+2*k+1}]")
    def unp(dst, srcr, n=2):
        for d in range(n):
            a(f"v_lshlrev_b32 v{dst+2*d}, 16, v{srcr+d}\nv_and_b32 v{dst+2*d+1}, 0xffff0000, v{srcr+d}")
    def rbf(r):
        a(f"v_cvt_pk_bf16_f32 v{r}, v{r}, v{r}\nv_and_b32 v{r}, 0xffff0000, v{r}")
    def flag_store(soff):
        a(f"""
    v_mov_b32 v19, s{sNON}
    s_mov_b64 exec, 1
    buffer_store_dword v19, off, {srd(sWS)}, s{soff} sc0 sc1
    s_mov_b64 exec, -1
    """)
    def poll(tag, loads, sleep=4, pre=None):
        if pre is not None:
            a(f"s_waitcnt vmcnt({pre})\nv_cmp_eq_u32 vcc, s{sNON}, v16\ns_cmp_eq_u64 vcc, -1\ns_cbranch_scc1 L_polld{tag}")
        a(f"s_mov_b32 s{sSPIN}, 0\nL_poll{tag}:")
        for k, (vo, so) in enumerate(loads):
            a(f"buffer_load_dword v{16+k}, v{vo}, {srd(sWS)}, s{so} offen sc1")
        a("s_waitcnt vmcnt(0)")
        for k in range(len(loads)):
            if k == 0: a(f"v_cmp_eq_u32 vcc, s{sNON}, v16")
            else: a(f"v_cmp_eq_u32 s[{sT4}:{sT5}], s{sNON}, v{16+k}\ns_and_b64 vcc, vcc, s[{sT4}:{sT5}]")
        a(f"""
    s_cmp_eq_u64 vcc, -1
    s_cbranch_scc1 L_polld{tag}
    s_sleep {sleep}
    s_add_u32 s{sSPIN}, s{sSPIN}, 1
    s_cmp_lt_u32 s{sSPIN}, 0x8000
    s_cbranch_scc1 L_poll{tag}
L_polld{tag}:
    """)
    def lds_addr(addr, perwave):
        if perwave: a(f"s_lshl_b32 s{sT4}, s{sW}, 2\ns_add_u32 s{sT4}, s{sT4}, {addr}\nv_mov_b32 v18, s{sT4}")
        else: a(f"v_mov_b32 v18, {addr}")
    def lds_inc(addr, perwave=False, wait=True):
        lds_addr(addr, perwave)
        a(f"""
    v_mov_b32 v19, 1
    {'s_waitcnt lgkmcnt(0)' if wait else ''}
    s_mov_b64 exec, 1
    ds_add_u32 v18, v19
    s_mov_b64 exec, -1
    """)
    def lds_wait(tag, addr, n, perwave=False, sleep=0):
        lds_addr(addr, perwave)
        a(f"""
    s_mov_b32 s{sSPIN}, 0
L_lw{tag}:
    ds_read_b32 v19, v18
    s_add_u32 s{sSPIN}, s{sSPIN}, 1
    s_waitcnt lgkmcnt(0)
    v_readfirstlane_b32 s{sT4}, v19
    s_cmp_ge_u32 s{sT4}, {n}
    s_cbranch_scc1 L_lwd{tag}
    {'s_sleep %d' % sleep if sleep else ''}
    s_cmp_lt_u32 s{sSPIN}, 0x100000
    s_cbranch_scc1 L_lw{tag}
L_lwd{tag}:
    """)
    def tile_base(dst, t):
        a(f"s_sub_u32 s{dst}, s{t}, 1\ns_mul_i32 s{dst}, s{dst}, {TILE_ST}\ns_cmp_eq_u32 s{t}, 0\ns_cselect_b32 s{dst}, {RG}, s{dst}")
    def divmod10(q, r, tmp, off):
        a(f"v_add_u32 v{tmp}, {off}, v0\nv_mul_u32_u24 v{q}, 6554, v{tmp}\nv_lshrrev_b32 v{q}, 16, v{q}\nv_mul_u32_u24 v{r}, 10, v{q}\nv_sub_u32 v{r}, v{tmp}, v{r}")
    nonce = f"s_mul_i32 s{sNON}, s{sNON}, 1664525\ns_add_u32 s{sNON}, s{sNON}, 1013904223"

    a(f"; @launch {'kernel='+NAME+' ' if not opt.get('final') else ''}grid=(256,1,1) block=(512,1,1) lds={LDS_BYTES}")
    a('.amdgcn_target "amdgcn-amd-amdhsa--gfx950"\n.text')
    a(head(NAME))
    a(f"""
    s_cmp_ge_u32 s2, 256
    s_cbranch_scc1 L_end
    s_load_dwordx16 s[72:87], s[0:1], 0
    s_load_dwordx8 s[88:95], s[0:1], 64
    s_load_dwordx2 s[96:97], s[0:1], 104
    v_lshrrev_b32 v1, 6, v0
    v_lshrrev_b32 v15, 5, v0
    v_and_b32 v16, 31, v0
    v_and_b32 v0, 63, v0
    v_readfirstlane_b32 s{sW}, v1
    v_and_b32 v1, 15, v0
    v_lshrrev_b32 v2, 4, v0
    v_lshlrev_b32 v3, 4, v0
    s_and_b32 s{sX}, s2, 7
    s_lshr_b32 s{sI}, s2, 3
    """)
    sizes = {sQ: 2621440, sK: 2621440, sV: 2621440, sSHK: 5120, sSSMK: 2621440, sSSMD: 1280, sW1: 2211840, sB1: 3456,
             sW2: 2211840, sB2: 1280, sOUT: 2621440, sWS: WS_REC}
    for b, n in sizes.items():
        a(f"s_mov_b32 s{b+2}, {n}\ns_mov_b32 s{b+3}, 0x20000")
    if opt.get("mapP"): a(f"""
    ; GEMM1 tile (i < 28): rb = 2x + i/14, cj = i%14 ; GEMM2 tile: mb = 4x + i/8, ni = i%8
    s_cmp_ge_u32 s{sI}, 14
    s_cselect_b32 s{sT0}, 1, 0
    s_cselect_b32 s{sT1}, 14, 0
    s_sub_u32 s{sCJ}, s{sI}, s{sT1}
    s_lshl_b32 s{sRB}, s{sX}, 1
    s_add_u32 s{sRB}, s{sRB}, s{sT0}
    s_lshl_b32 s{sMB}, s{sX}, 2
    s_lshr_b32 s{sT2}, s{sI}, 3
    s_add_u32 s{sMB}, s{sMB}, s{sT2}
    s_and_b32 s{sNI}, s{sI}, 7
    """)
    else: a(f"""
    ; GEMM1 tile (i < 28): rb = 4(x>>1) + i/7, cj = 7(x&1) + i%7 ; GEMM2 tile: mb = 8(x>>1) + i/4, ni = 4(x&1) + i%4
    s_mul_i32 s{sT2}, s{sI}, 37
    s_lshr_b32 s{sT2}, s{sT2}, 8
    s_lshr_b32 s{sT0}, s{sX}, 1
    s_lshl_b32 s{sRB}, s{sT0}, 2
    s_add_u32 s{sRB}, s{sRB}, s{sT2}
    s_min_u32 s{sRB}, s{sRB}, 15
    s_and_b32 s{sT1}, s{sX}, 1
    s_sub_u32 s{sCJ}, s{sT1}, s{sT2}
    s_mul_i32 s{sCJ}, s{sCJ}, 7
    s_add_u32 s{sCJ}, s{sCJ}, s{sI}
    s_lshl_b32 s{sMB}, s{sT0}, 3
    s_lshr_b32 s{sT2}, s{sI}, 2
    s_add_u32 s{sMB}, s{sMB}, s{sT2}
    s_lshl_b32 s{sNI}, s{sT1}, 2
    s_and_b32 s{sT2}, s{sI}, 3
    s_add_u32 s{sNI}, s{sNI}, s{sT2}
    """)
    a(f"""
    s_mul_i32 s{sTAU}, s{sX}, 28
    s_add_u32 s{sTAU}, s{sTAU}, s{sI}
    s_lshl_b32 s{sT0}, s{sX}, 2
    s_add_u32 s{sT0}, s{sT0}, s{sI}
    s_mul_i32 s{sT0}, s{sT0}, 3
    s_add_u32 s{sT0}, s{sT0}, 140
    s_cmp_lt_u32 s{sI}, 28
    s_cselect_b32 s{sTAU}, s{sTAU}, s{sT0}
    s_cselect_b32 s{sNT}, 1, 3
    v_mov_b32 v20, {OOB}
    v_lshrrev_b32 v21, 3, v0
    v_and_b32 v22, 7, v0
    s_cmp_ge_u32 s{sW}, 4
    s_waitcnt lgkmcnt(0)
    """)
    src = {sQ: 72, sK: 74, sV: 76, sSHK: 78, sSSMK: 80, sSSMD: 82, sW1: 86, sB1: 88, sW2: 90, sB2: 92, sOUT: 94, sWS: 96}
    for b, s in src.items():
        a(f"s_mov_b64 s[{b}:{b+1}], s[{s}:{s+1}]")
    wsb = [int(k[4:], 0) for k in opt if k.startswith("wsb:")]
    if wsb:
        a(f"s_cselect_b32 s{sT0}, 1, 0\ns_add_u32 s{sWS}, s{sWS}, {wsb[0]}\ns_addc_u32 s{sWS+1}, s{sWS+1}, 0\ns_cmp_eq_u32 s{sT0}, 1")
    a(f"s_load_dword s{sNON}, s[{sWS}:{sWS+1}], {NONCE_OFF}")
    stamp(0)
    a("s_cbranch_scc1 L_role_L")
    if not opt.get("noprio"): a("s_setprio 1")
    BX, BW = 4, 6
    FS0, FS1, ACC, CS, ONES, B1R = 104, 144, 184, 248, 100, 84
    SWT, SW, KR, VR_, WPK, KU, U, PK = 144, 24, 28, 40, 48, 56, 80, 56
    a(f"""
    v_mul_u32_u24 v23, 1280, v21
    v_lshl_add_u32 v23, v22, 4, v23
    v_cmp_gt_u32 vcc, 24, v0
    v_cndmask_b32 v17, v20, v23, vcc
    v_lshlrev_b32 v14, 4, v16
    s_mul_i32 s{sXO}, s{sW}, 5120
    s_mul_i32 s{sL}, s{sW}, {16*1280}
    s_mov_b32 s{sC}, 0
L_stg:
    """)
    tile_base(sM0, sC)
    a(f"""
    s_add_u32 s{sM0}, s{sM0}, s{sXO}
    s_add_u32 s{sT0}, s{sTAU}, s{sC}
    s_and_b32 s{sT1}, s{sT0}, 31
    s_mul_i32 s{sT1}, s{sT1}, {64*1280}
    s_add_u32 s{sT1}, s{sT1}, s{sL}
    s_cmp_eq_u32 s{sT1}, 0
    s_cselect_b32 s{sT3}, 3840, 0
    s_lshr_b32 s{sT0}, s{sT0}, 5
    s_lshl_b32 s{sT2}, s{sT0}, 7
    s_add_u32 s{sT1}, s{sT1}, s{sT2}
    v_subrev_u32 v18, s{sT3}, v23
    v_cmp_gt_i32 vcc, 0, v18
    s_add_u32 s{sT2}, s{sT1}, s{sT3}
    s_sub_u32 s{sT2}, s{sT2}, 3840
    v_cndmask_b32 v18, v18, v20, vcc
    s_mov_b32 m0, s{sM0}
    s_lshl_b32 s{sT0}, s{sT0}, 9
    buffer_load_dwordx4 v18, {srd(sK)}, s{sT2} offen lds
    s_add_u32 s{sT2}, s{sT1}, {10240-3840}
    s_add_u32 m0, s{sM0}, 1024
    s_add_u32 s{sT3}, s{sT1}, {20480-3840}
    buffer_load_dwordx4 v23, {srd(sK)}, s{sT2} offen lds
    s_add_u32 m0, s{sM0}, 2048
    s_add_u32 s{sT2}, s{sT1}, 10240
    buffer_load_dwordx4 v17, {srd(sK)}, s{sT3} offen lds
    s_add_u32 m0, s{sM0}, 3072
    s_add_u32 s{sC}, s{sC}, 1
    buffer_load_dwordx4 v23, {srd(sV)}, s{sT1} offen lds
    s_add_u32 m0, s{sM0}, 4096
    s_cmp_eq_u32 s{sC}, 2
    buffer_load_dwordx4 v23, {srd(sV)}, s{sT2} offen lds
    s_cbranch_scc1 L_stg_b
    s_cmp_eq_u32 s{sC}, 3
    s_cbranch_scc1 L_stg_c
    buffer_load_dwordx4 {vr(SWT,4)}, v14, {srd(sSHK)}, s{sT0} offen
    s_cmp_eq_u32 s{sNT}, 1
    s_cbranch_scc1 L_stg_done
    s_branch L_stg
L_stg_b:
    buffer_load_dwordx4 {vr(SWT+4,4)}, v14, {srd(sSHK)}, s{sT0} offen
    s_branch L_stg
L_stg_c:
    buffer_load_dwordx4 {vr(SWT+8,4)}, v14, {srd(sSHK)}, s{sT0} offen
L_stg_done:
    v_and_b32 v21, 7, v1
    v_xor_b32 v21, v21, v2
    v_lshlrev_b32 v21, 4, v21
    v_lshl_add_u32 v21, v1, 7, v21
    s_lshl_b32 s{sT0}, s{sW}, 12
    v_add_u32 v{BX}, s{sT0}, v21
    v_xor_b32 v{BX+1}, 64, v{BX}
    ; w read bases: row = 8g + i ; slot tile T holds physical tile T ^ 2w, stored at position tile ^ f, f = i | (g&1)<<2
    v_lshrrev_b32 v21, 2, v0
    v_and_b32 v22, 7, v21
    s_lshl_b32 s{sT0}, s{sW}, 1
    v_xor_b32 v22, s{sT0}, v22
    v_lshlrev_b32 v22, 5, v22
    v_and_b32 v21, 3, v21
    v_lshl_add_u32 v21, v2, 3, v21
    v_lshl_add_u32 v22, v21, 8, v22
    v_and_b32 v21, 3, v0
    v_lshl_add_u32 v22, v21, 3, v22
    v_add_u32 v{BW}, {WP_O}, v22
    v_and_b32 v14, 1, v15
    v_lshlrev_b32 v14, 10, v14
    v_lshl_add_u32 v14, v16, 2, v14
    v_add_u32 v14, s{sXO}, v14
    v_sub_u32 v17, 7, v15
    v_xor_b32 v17, v17, v16
    v_and_b32 v17, 7, v17
    v_lshlrev_b32 v17, 4, v17
    v_lshl_add_u32 v17, v16, 8, v17
    """)
    for T in range(1, 8): a(f"v_xor_b32 v{BW+T}, {32*T}, v{BW}")
    for r in range(ACC, ACC+72): a(f"v_mov_b32 v{r}, 0")
    for r in range(4): a(f"v_mov_b32 v{ONES+r}, 0x3f803f80")
    a(f"s_mov_b32 s{sC}, 0\ns_waitcnt vmcnt(0)")
    stamp(1)
    a("L_kv:")
    tile_base(sM0, sC)
    a(f"v_add_u32 v21, s{sM0}, v14\nv_add_u32 v22, 1024, v21\nv_add_u32 v23, 3072, v21")
    for q in range(4): a(f"ds_read2_b32 {vr(KR+2*q,2)}, v21 offset0:{64*q} offset1:{64*q+32}")
    a(f"ds_read2_b32 {vr(KR+8,2)}, v22 offset0:0 offset1:32\nds_read_b32 v{KR+10}, v22 offset:256")
    for q in range(4): a(f"ds_read2_b32 {vr(VR_+2*q,2)}, v23 offset0:{64*q} offset1:{64*q+32}")
    for j in range(4):
        for c in range(2):
            r = SWT + 2*c + (j >> 1)
            if j & 1: a(f"v_and_b32 v{WPK+2*j+c}, 0xffff0000, v{r}")
            else: a(f"v_lshlrev_b32 v{WPK+2*j+c}, 16, v{r}")
    a(f"v_add_u32 v21, s{sM0}, v17\ns_waitcnt lgkmcnt(4)")
    unp(KU, KR, 11)
    for s in range(8): a(f"v_pk_mul_f32 {vr(U+2*s,2)}, {vr(KU+2*(s+3),2)}, {vr(WPK,2)}")
    for j in range(1, 4):
        for s in range(8): a(f"v_pk_fma_f32 {vr(U+2*s,2)}, {vr(KU+2*(s+3-j),2)}, {vr(WPK+2*j,2)}, {vr(U+2*s,2)}")
    a("s_waitcnt lgkmcnt(0)")
    unp(KU+8, VR_, 8)
    for s in range(8): a(f"v_pk_mul_f32 {vr(U+2*s,2)}, {vr(U+2*s,2)}, {vr(KU+8+2*s,2)}")
    for c in range(2):
        for d in range(4):
            a(f"v_cvt_pk_bf16_f32 v{PK+4*c+d}, v{U+2*(7-2*d)+c}, v{U+2*(6-2*d)+c}")
        a(f"ds_write_b128 v21, {vr(PK+4*c,4)} offset:{OST+128*c}")
    a(f"""
    s_add_u32 s{sC}, s{sC}, 1
    s_cmp_ge_u32 s{sC}, s{sNT}
    s_cbranch_scc1 L_kv_done
    """)
    for r in range(8): a(f"v_mov_b32 v{SWT+r}, v{SWT+4+r}")
    a(f"""
    s_branch L_kv
L_kv_done:
    s_lshl_b32 s{sT0}, s{sCJ}, 8
    v_lshlrev_b32 v17, 3, v2
    s_cmp_eq_u32 s{sNT}, 1
    s_waitcnt lgkmcnt(0)
    s_barrier
    s_cbranch_scc1 L_c_busy
    s_barrier
    {nonce}
    """)
    lds_inc(XCNT)
    lds_inc(GW, perwave=True, wait=False)
    a("s_branch L_g2_pro\nL_c_busy:")
    def reads(sig):
        F = FS1 if sig else FS0
        l = [f"ds_read_b128 {vr(F+4*mt,4)}, v{BX+sig} offset:{2048*mt}" for mt in range(2)]
        for T in range(8):
            for j in range(2):
                l.append(f"ds_read_b64_tr_b16 {vr(F+8+4*T+2*j,2)}, v{BW+T} offset:{8192*sig+1024*j}")
        return l
    r0 = reads(0)
    for x in r0[:12]: a(x)
    for P in range(4):
        a(f"s_xor_b32 s{sT1}, s{sW}, {P}\ns_lshl_b32 s{sT1}, s{sT1}, 6\ns_add_u32 s{sT1}, s{sT1}, s{sT0}")
        for h in range(2): a(f"buffer_load_dwordx2 {vr(B1R+4*P+2*h,2)}, v17, {srd(sB1)}, s{sT1} offen offset:{32*h}")
        if P == 0:
            a("s_waitcnt lgkmcnt(4)")
            for x in r0[12:]: a(x)
    a(nonce)
    stamp(2)
    a(f"s_mov_b32 s{sC}, 0\ns_mov_b32 s{sNP}, 1\ns_mov_b32 s{sT0}, {SLOT}\nL_g1:")
    def step(sig, items):
        F = FS1 if sig else FS0
        ms = [(vr(ACC+(mt*8+T)*4, 4), vr(F+8+4*T, 4), vr(F+4*mt, 4)) for T in range(8) for mt in range(2)]
        ms += [(vr(CS+4*k, 4), vr(F+8+4*k, 4), vr(ONES, 4)) for k in range(2)]
        for k, (ac, A_, B_) in enumerate(ms):
            a(f"{MF} {ac}, {A_}, {B_}, {ac}")
            for _ in range(2):
                if items: a(items.pop(0))
        assert not items
    def withwait(l): return l[:12] + ["s_waitcnt lgkmcnt(4)"] + l[12:]
    a("s_waitcnt lgkmcnt(0)")
    step(0, withwait(reads(1)) + [f"v_add_u32 v{r}, s{sT0}, v{r}" for r in range(BX, BX+10)] + [f"s_cmp_ge_u32 s{sC}, 8"])
    a("""
    s_waitcnt lgkmcnt(0)
    s_cbranch_scc1 L_g1_nobar
    s_barrier
L_g1_nobar:
    """)
    step(1, withwait(reads(0)) + [f"s_add_u32 s{sNP}, s{sNP}, 1", f"s_cmp_eq_u32 s{sNP}, 3", f"s_cselect_b32 s{sNP}, 0, s{sNP}", f"s_mov_b32 s{sT0}, {SLOT}",
           f"s_cselect_b32 s{sT0}, {-2*SLOT}, s{sT0}", f"s_add_u32 s{sC}, s{sC}, 1", f"s_cmp_lt_u32 s{sC}, 10"])
    a("s_cbranch_scc1 L_g1")
    stamp(3)
    CSR, MN, NM = 24, 56, 60
    a(f"""
    s_lshl_b32 s{sT0}, s{sW}, 7
    s_add_u32 s{sT1}, s{sT0}, {XCH}
    v_add_u32 v17, s{sT1}, v0
    v_lshl_add_u32 v16, v2, 4, s{sT0}
    s_mov_b32 exec_lo, 0x10001
    s_mov_b32 exec_hi, 0x10001
    ds_write_b128 v17, {vr(CS,4)}
    ds_write_b128 v17, {vr(CS+4,4)} offset:64
    s_mov_b64 exec, -1
    """)
    lds_inc(XCNT)
    a(f"""
    s_lshl_b32 s{sT0}, s{sRB}, 1
    s_lshr_b32 s{sT1}, s{sW}, 1
    s_add_u32 s{sT0}, s{sT0}, s{sT1}
    s_mul_i32 s{sT0}, s{sT0}, {54*4096}
    s_and_b32 s{sT1}, s{sW}, 1
    s_lshl_b32 s{sT1}, s{sT1}, 11
    s_add_u32 s{sT0}, s{sT0}, s{sT1}
    s_add_u32 s{sXO}, s{sT0}, {H_OFF}
    s_lshl_b32 s{sL}, s{sCJ}, 2
    s_lshl_b32 s{sT0}, s{sW}, 8
    s_add_u32 s{sT0}, s{sT0}, {XST}
    v_lshl_add_u32 v17, v1, 3, s{sT0}
    """)
    for P in range(4): a(f"v_xor_b32 v{8+P}, {128*P}, v16\nv_add_u32 v{8+P}, {XCH}, v{8+P}")
    k0 = -2.0 * math.log2(math.e) * math.sqrt(2.0/math.pi)
    C0, C1, ONE, B1F, TT = 64, 66, 68, 70, 74
    for q in range(2): a(f"v_mov_b32 v{C0+q}, {f2u(k0):#x}\nv_mov_b32 v{C1+q}, {f2u(k0*0.044715):#x}\nv_mov_b32 v{ONE+q}, 1.0")
    lds_wait("C", XCNT, 8)
    for mt in range(2): a(f"ds_read_b64 {vr(MN+2*mt,2)}, v17 offset:{128*mt}")
    for T in range(8): a(f"ds_read_b128 {vr(CSR+4*T,4)}, v{8+(T>>1)} offset:{64*(T&1)}")
    a(f"""
    s_lshl_b32 s{sT0}, s{sRB}, 10
    s_lshl_b32 s{sT1}, s{sW}, 8
    s_add_u32 s{sT0}, s{sT0}, s{sT1}
    s_add_u32 s{sT0}, s{sT0}, {ST_OFF}
    s_cmp_eq_u32 s{sCJ}, 0
    s_cselect_b32 s{sT0}, s{sT0}, {OOB}
    v_lshlrev_b32 v17, 3, v0
    s_waitcnt vmcnt(0) lgkmcnt(8)
    s_mov_b64 exec, 0xffff
    buffer_store_dwordx2 {vr(MN,2)}, v17, {srd(sWS)}, s{sT0} offen sc0 sc1
    buffer_store_dwordx2 {vr(MN+2,2)}, v17, {srd(sWS)}, s{sT0} offen offset:128 sc0 sc1
    s_mov_b64 exec, -1
    v_mul_f32 v{NM}, -v{MN}, v{MN+1}
    v_mul_f32 v{NM+2}, -v{MN+2}, v{MN+3}
    v_mov_b32 v{MN}, v{MN+1}
    v_mov_b32 v{MN+2}, v{MN+3}
    v_mov_b32 v{NM+1}, v{NM}
    v_mov_b32 v{NM+3}, v{NM+2}
    s_waitcnt lgkmcnt(0)
    """)
    stamp(4)
    HP = 104
    for T in range(8):
        if T & 1:
            a(f"""
    s_xor_b32 s{sT1}, s{sW}, {T>>1}
    s_add_u32 s{sT1}, s{sT1}, s{sL}
    s_lshl_b32 s{sT2}, s{sT1}, 12
    s_add_u32 s{sT2}, s{sT2}, s{sXO}
    s_cmp_lt_u32 s{sT1}, 54
    s_cselect_b32 s{sT2}, s{sT2}, {OOB}
    """)
        unp(B1F, B1R + 2*T)
        for mt in range(2):
            ac = ACC + (mt*8+T)*4
            for h in range(2):
                a(f"v_pk_fma_f32 {vr(TT+2*h,2)}, {vr(CSR+4*T+2*h,2)}, {vr(NM+2*mt,2)}, {vr(B1F+2*h,2)}")
            for h in range(2):
                a(f"v_pk_fma_f32 {vr(ac+2*h,2)}, {vr(ac+2*h,2)}, {vr(MN+2*mt,2)}, {vr(TT+2*h,2)}")
            for h in range(2): a(f"v_pk_mul_f32 {vr(TT+2*h,2)}, {vr(ac+2*h,2)}, {vr(ac+2*h,2)}")
            for h in range(2): a(f"v_pk_fma_f32 {vr(TT+2*h,2)}, {vr(TT+2*h,2)}, {vr(C1,2)}, {vr(C0,2)}")
            for h in range(2): a(f"v_pk_mul_f32 {vr(TT+2*h,2)}, {vr(TT+2*h,2)}, {vr(ac+2*h,2)}")
            for r in range(4): a(f"v_exp_f32 v{TT+r}, v{TT+r}")
            for h in range(2): a(f"v_pk_add_f32 {vr(TT+2*h,2)}, {vr(TT+2*h,2)}, {vr(ONE,2)}")
            for r in range(4): a(f"v_rcp_f32 v{TT+r}, v{TT+r}")
            for h in range(2): a(f"v_pk_mul_f32 {vr(ac+2*h,2)}, {vr(ac+2*h,2)}, {vr(TT+2*h,2)}")
            for h in range(2): a(f"v_cvt_pk_bf16_f32 v{HP+(mt*8+T)*2+h}, v{ac+2*h}, v{ac+2*h+1}")
            if T & 1:
                a(f"buffer_store_dwordx4 {vr(HP+(mt*8+T-1)*2,4)}, v3, {srd(sWS)}, s{sT2} offen offset:{1024*mt} sc0 sc1")
    lds_inc(GW, perwave=True, wait=False)
    a("L_g2_pro:")
    def h_again():
        a(f"s_cmp_eq_u32 s{sNT}, 1\ns_cbranch_scc0 L_noagain")
        for P in range(4):
            a(f"""
    s_xor_b32 s{sT1}, s{sW}, {P}
    s_add_u32 s{sT1}, s{sT1}, s{sC}
    s_lshl_b32 s{sT3}, s{sT1}, 12
    s_add_u32 s{sT3}, s{sT3}, s{sXO}
    s_cmp_lt_u32 s{sT1}, 54
    s_cselect_b32 s{sT3}, s{sT3}, {OOB}
    """)
            for mt in range(2): a(f"buffer_store_dwordx4 {vr(HP+(mt*8+2*P)*2,4)}, v3, {srd(sWS)}, s{sT3} offen offset:{1024*mt}")
        a("L_noagain:")
    if not opt.get("noprio"): a("s_setprio 0")
    stamp(5)
    GA, HF, WR, HD, WD = 20, 100, 148, 3, 5
    a(f"""
    v_lshlrev_b32 v12, 12, v2
    v_lshl_add_u32 v12, v1, 7, v12
    s_lshl_b32 s{sT2}, s{sL}, 12
    s_add_u32 s{sT2}, s{sT2}, s{sXO}
    s_sub_u32 s{sT1}, 54, s{sL}
    v_cmp_gt_u32 vcc, s{sT1}, v2
    v_mov_b32 v13, {OOB}
    v_cndmask_b32 v12, v13, v12, vcc
    s_mov_b32 s{sC}, s{sL}
    s_sub_u32 s{sL}, 3, s{sW}
    s_mul_i32 s{sT0}, s{sNI}, 54
    s_add_u32 s{sT0}, s{sT0}, s{sL}
    s_mul_i32 s{sWO}, s{sT0}, 5120
    s_add_u32 s{sWO}, s{sWO}, {W2T_OFF}
    v_add_u32 v4, 4096, v3
    s_lshl_b32 s{sT0}, s{sRB}, 4
    s_add_u32 s{sT0}, s{sT0}, s{sCJ}
    s_lshl_b32 s{sT0}, s{sT0}, 2
    s_add_u32 s{sT0}, s{sT0}, s{sW}
    s_lshl_b32 s{sT0}, s{sT0}, 7
    s_add_u32 s{sT0}, s{sT0}, {FH_OFF}
    s_cmp_eq_u32 s{sNT}, 1
    s_cselect_b32 s{sT0}, s{sT0}, {OOB}
    s_cselect_b32 s{sT2}, s{sT2}, {OOB}
    """)
    qord = [0, 1, 2, 3, 4, 9, 10, 11, 12, 5, 6, 7, 8, 13]
    wslot = [0, 1, 2, 3, 4, 0, 1, 2, 3, 4, 0, 1, 2, 3]
    def wload(j):
        if j == 13: a(f"s_cmp_ge_u32 s{sW}, 2\ns_cselect_b32 s{sWO}, s{sWO}, {OOB}")
        for t in range(5):
            a(f"buffer_load_dwordx4 {vr(WR+20*wslot[j]+4*t,4)}, v{3 if t<4 else 4}, {srd(sWS)}, s{sWO} offen offset:{1024*(t%4)} sc1")
        if j < 13: a(f"s_add_u32 s{sWO}, s{sWO}, {(5 if j == 4 else 1)*4*5120}")
    a("s_waitcnt vmcnt(0)")
    flag_store(sT0)
    if opt.get("htouch"): a(f"buffer_load_dword v14, v12, {srd(sWS)}, s{sT2} offen sc1")
    if opt.get("hagain"): h_again()
    if not opt.get("x_nofc"):
        lds_inc(FCNT, wait=False)
        lds_wait("F", FCNT, 4)
    lds_wait("A", ACNT, 1, sleep=1)
    for j in range(WD):
        if j >= 2 and opt.get("thr"): a("s_waitcnt vmcnt(5)")
        wload(j)
    a(f"""
    s_mul_i32 s{sT1}, s{sMB}, 54
    s_add_u32 s{sT1}, s{sT1}, s{sL}
    s_lshl_b32 s{sXO}, s{sT1}, 12
    s_add_u32 s{sXO}, s{sXO}, {H_OFF}
    s_lshr_b32 s{sT0}, s{sMB}, 1
    s_lshl_b32 s{sT0}, s{sT0}, 13
    s_and_b32 s{sT1}, s{sMB}, 1
    s_lshl_b32 s{sT1}, s{sT1}, 8
    s_add_u32 s{sT0}, s{sT0}, s{sT1}
    s_add_u32 s{sT0}, s{sT0}, {FH_OFF}
    v_min_u32 v13, 27, v0
    v_lshrrev_b32 v15, 1, v13
    v_and_b32 v13, 1, v13
    v_lshlrev_b32 v13, 7, v13
    v_lshl_add_u32 v13, v15, 9, v13
    s_mul_i32 s{sT1}, s{sW}, 20480
    v_add_u32 v7, s{sT1}, v3
    s_lshl_b32 s{sT2}, s{sMB}, 6
    s_lshl_b32 s{sT1}, s{sW}, 4
    s_add_u32 s{sT2}, s{sT2}, s{sT1}
    s_mul_i32 s{sT2}, s{sT2}, 1280
    s_mul_i32 s{sCJ}, s{sNI}, 160
    s_add_u32 s{sCJ}, s{sCJ}, s{sT2}
    """)
    for j, r in enumerate((5, 6, 12)):
        divmod10(15, 16, 17, 64*j)
        a(f"v_mul_u32_u24 v15, 1280, v15\nv_lshl_add_u32 v{r}, v16, 4, v15")
    for mu in range(4):
        a(f"s_xor_b32 s{sT1}, s{sW}, {mu}\ns_lshl_b32 s{sT1}, s{sT1}, 10\nv_add_u32 v{8+mu}, s{sT1}, v3")
    stamp(6)
    a(f"s_cmp_eq_u32 s{sW}, 0\ns_cbranch_scc0 L_hwait")
    poll("H", [(13, sT0)], sleep=2)
    lds_inc(HCNT, wait=False)
    a("s_branch L_hready\nL_hwait:")
    lds_wait("HC", HCNT, 1, sleep=1)
    a("L_hready:")
    def hload(j):
        l = []
        if j == 13: l.append(f"s_cmp_ge_u32 s{sW}, 2\ns_cselect_b32 s{sXO}, s{sXO}, {OOB}")
        for mu in range(4):
            l.append(f"buffer_load_dwordx4 {vr(HF+16*(j%HD)+4*mu,4)}, v{8+mu}, {srd(sWS)}, s{sXO} offen sc1")
        if j < 13: l.append(f"s_add_u32 s{sXO}, s{sXO}, {16384*(qord[j+1]-qord[j])}")
        return l
    fifo = []
    for j in range(HD):
        for x in hload(j): a(x)
        fifo += [("h", j)] * 4
    stamp(7)
    for j in range(14):
        need = [i for i, e in enumerate(fifo) if e in (("h", j), ("w", j))]
        a(f"s_waitcnt vmcnt({len(fifo)-1-max(need)})" + (" lgkmcnt(0)" if j == 9 else ""))
        if j == 9: lds_inc(GCNT, wait=False)
        if j == 13: a(f"s_cmp_lt_u32 s{sW}, 2\ns_cbranch_scc1 L_g2_done")
        for mu in range(4):
            for t in range(5):
                ac = vr(GA + (mu*5+t)*4, 4)
                a(f"{MF} {ac}, {vr(WR+20*wslot[j]+4*t,4)}, {vr(HF+16*(j%HD)+4*mu,4)}, {'0' if j==0 else ac}")
                if t == 0 and mu > 0 and j + HD < 14:
                    if mu == 1:
                        hl = hload(j + HD)
                        if j + HD == 13: a(hl.pop(0))
                    a(hl.pop(0)); fifo.append(("h", j+HD))
        if j + HD < 14:
            for x in hl: a(x)
            fifo.append(("h", j+HD))
        if 4 <= j < 8:
            if j == 4: lds_wait("W", WW, 1, perwave=True)
            if j == 7: a("s_waitcnt lgkmcnt(10)")
            for t in range(5): a(f"ds_read_b128 {vr(WR+20*wslot[j]+4*t,4)}, v7 offset:{5120*(j-4)+1024*t}")
        elif j < 9:
            wload(j + 5); fifo += [("w", j + 5)] * 5
    a("L_g2_done:")
    stamp(8)
    for mu in range(1, 4):
        a(f"s_xor_b32 s{sT0}, s{sW}, {mu}\ns_mul_i32 s{sT0}, s{sT0}, 15360\ns_add_u32 s{sT0}, s{sT0}, {(mu-1)*5120}\nv_add_u32 v{8+mu}, s{sT0}, v3")
    lds_wait("G", GCNT, 4)
    for mu in range(1, 4):
        for t in range(5): a(f"ds_write_b128 v{8+mu}, {vr(GA+(mu*5+t)*4,4)} offset:{1024*t}")
    a(f"""
    s_mul_i32 s{sT1}, s{sW}, 15360
    v_add_u32 v15, s{sT1}, v3
    s_mul_i32 s{sT0}, s{sW}, 5120
    s_add_u32 s{sT0}, s{sT0}, {RG}
    v_add_u32 v16, s{sT0}, v3
    s_waitcnt lgkmcnt(0)
    s_barrier
    """)
    stamp(9)
    for t in range(5): a(f"ds_read_b128 {vr(GA+80+4*t,4)}, v16 offset:{1024*t}")
    for mu in range(1, 3):
        for t in range(5): a(f"ds_read_b128 {vr(GA+(mu*5+t)*4,4)}, v15 offset:{(mu-1)*5120+1024*t}")
    for k, mu in enumerate((4, 1, 2, 3)):
        a(f"s_waitcnt lgkmcnt({(10, 10, 5, 0)[k]})")
        if k == 0:
            for t in range(5): a(f"ds_read_b128 {vr(GA+(15+t)*4,4)}, v15 offset:{2*5120+1024*t}")
        for t in range(5):
            for h in range(2):
                a(f"v_pk_add_f32 {vr(GA+4*t+2*h,2)}, {vr(GA+4*t+2*h,2)}, {vr(GA+(mu*5+t)*4+2*h,2)}")
    XR = 124
    a(f"v_mul_u32_u24 v16, 160, v1\nv_add_u32 v16, s{sT1}, v16\nv_lshl_add_u32 v17, v2, 4, v16\nv_lshl_add_u32 v16, v2, 3, v16")
    for t in range(5):
        for h in range(2): a(f"v_cvt_pk_bf16_f32 v{XR+2*t+h}, v{GA+4*t+2*h}, v{GA+4*t+2*h+1}")
        if t == 1: a(f"ds_write_b128 v17, {vr(XR,4)}")
        if t == 3: a(f"ds_write_b128 v17, {vr(XR+4,4)} offset:64")
    a(f"""
    ds_write_b64 v16, {vr(XR+8,2)} offset:128
    s_waitcnt lgkmcnt(0)
    ds_read_b128 {vr(XR,4)}, v15
    ds_read_b128 {vr(XR+4,4)}, v15 offset:1024
    ds_read_b128 {vr(XR+8,4)}, v15 offset:2048
    s_waitcnt lgkmcnt(2)
    buffer_store_dwordx4 {vr(XR,4)}, v5, {srd(sOUT)}, s{sCJ} offen
    s_waitcnt lgkmcnt(1)
    buffer_store_dwordx4 {vr(XR+4,4)}, v6, {srd(sOUT)}, s{sCJ} offen
    s_waitcnt lgkmcnt(0)
    s_mov_b32 exec_hi, 0
    buffer_store_dwordx4 {vr(XR+8,4)}, v12, {srd(sOUT)}, s{sCJ} offen
    s_mov_b32 exec_hi, -1
    s_branch L_fin
    """)
    a(f"""
L_role_L:
    s_sub_u32 s{sW}, s{sW}, 4
    v_and_b32 v8, 7, v1
    v_xor_b32 v8, v8, v2
    v_lshlrev_b32 v8, 4, v8
    v_lshl_add_u32 v8, v1, 7, v8
    s_lshl_b32 s{sT0}, s{sW}, 12
    v_add_u32 v8, s{sT0}, v8
    v_xor_b32 v9, 64, v8
    """)
    for r in range(4): a(f"v_mov_b32 v{40+r}, 0x3f803f80")
    for r in list(range(60, 68)) + list(range(112, 120)): a(f"v_mov_b32 v{r}, 0")
    a(f"""
    s_mov_b32 s3, 0
    s_cmp_ge_u32 s{sW}, 2
    s_cbranch_scc1 L_aux
    s_cmp_eq_u32 s{sNT}, 1
    s_cbranch_scc1 L_loader
    s_waitcnt lgkmcnt(0)
    s_barrier
    s_barrier
    ; no GEMM1 tile: pull the filter rows of this channel group into the L2
    s_mul_i32 s{sT0}, s{sX}, {80*4096}
    s_sub_u32 s{sT1}, s{sI}, 28
    s_lshl_b32 s{sT1}, s{sT1}, 1
    s_add_u32 s{sT1}, s{sT1}, s{sW}
    s_mul_i32 s{sT1}, s{sT1}, {10*4096}
    s_add_u32 s{sT0}, s{sT0}, s{sT1}
    v_lshlrev_b32 v21, 7, v0
    """)
    if not opt.get("x_noktouch"):
        for j in range(5): a(f"buffer_load_dword v22, v21, {srd(sSSMK)}, s{sT0} offen\ns_add_u32 s{sT0}, s{sT0}, 8192")
    a(f"""
    s_branch L_g1_over
L_loader:
    s_lshl_b32 s{sT0}, s{sRB}, 7
    s_lshl_b32 s{sT1}, s{sW}, 6
    s_add_u32 s{sT0}, s{sT0}, s{sT1}
    v_xor_b32 v22, v22, v21
    v_add_u32 v21, s{sT0}, v21
    v_mul_u32_u24 v21, 1280, v21
    v_lshl_add_u32 v24, v22, 4, v21
    s_lshl_b32 s{sT0}, s{sCJ}, 8
    s_mul_i32 s{sT1}, s{sW}, {32*3456}
    s_add_u32 s{sT0}, s{sT0}, s{sT1}
    s_cmp_eq_u32 s{sCJ}, 13
    s_cselect_b32 s{sT1}, 8, 16
    v_lshlrev_b32 v21, 1, v2
    v_xor_b32 v21, v21, v1
    v_mul_u32_u24 v22, 3456, v2
    v_add_u32 v22, s{sT0}, v22
    v_lshl_add_u32 v32, v21, 4, v22
    v_cmp_gt_u32 vcc, s{sT1}, v21
    v_xor_b32 v21, 8, v21
    v_add_u32 v22, {8*3456}, v22
    v_cndmask_b32 v32, v20, v32, vcc
    v_lshl_add_u32 v34, v21, 4, v22
    v_cmp_gt_u32 vcc, s{sT1}, v21
    s_mov_b32 s{sLD}, 0
    s_lshl_b32 s{sNP}, s{sW}, 13
    v_cndmask_b32 v34, v20, v34, vcc
    """)
    for j in range(1, 8):
        a(f"v_add_u32 v{24+j}, {10240*j}, v24")
        if j != 2: a(f"v_add_u32 v{32+j}, {3456*(4*j - (8 if j & 2 else 0))}, v{34 if j & 2 else 32}")
    if opt.get("rot"):
        a(f"""
    s_mul_i32 s{sT1}, s{sRB}, 3
    s_add_u32 s{sLD}, s{sCJ}, s{sT1}
    s_mul_i32 s{sT1}, s{sLD}, 26
    s_lshr_b32 s{sT1}, s{sT1}, 8
    s_mul_i32 s{sT1}, s{sT1}, 10
    s_sub_u32 s{sLD}, s{sLD}, s{sT1}
    """)
    def stats_chunk():
        for sg in range(2):
            for mt in range(2): a(f"ds_read_b128 {vr(44+8*sg+4*mt,4)}, v{8+sg} offset:{2048*mt}")
        a(f"""
    s_add_u32 s3, s3, 1
    s_cmp_eq_u32 s3, 3
    s_cselect_b32 s3, 0, s3
    s_mov_b32 s{sT3}, {SLOT}
    s_cselect_b32 s{sT3}, {-2*SLOT}, s{sT3}
    v_add_u32 v8, s{sT3}, v8
    v_add_u32 v9, s{sT3}, v9
    """)
        for sg in range(2):
            a(f"s_waitcnt lgkmcnt({2-2*sg})")
            for mt in range(2):
                x = vr(44+8*sg+4*mt, 4)
                a(f"{MF} {vr(60+4*mt,4)}, v[40:43], {x}, {vr(60+4*mt,4)}\n{MF} {vr(112+4*mt,4)}, {x}, {x}, {vr(112+4*mt,4)}")
    def ld_body():
        a(f"""
    s_lshl_b32 s{sT0}, s{sLD}, 7
    s_mul_i32 s{sT1}, s{sLD}, {64*3456}
    """)
        for j in range(8):
            a(f"s_add_u32 m0, s{sNP}, {1024*j}\nbuffer_load_dwordx4 v{24+j}, {srd(sQ)}, s{sT0} offen lds")
            a(f"s_add_u32 m0, s{sNP}, {WP_O+1024*j}\nbuffer_load_dwordx4 v{32+j}, {srd(sW1)}, s{sT1} offen lds")
        a(f"""
    s_add_u32 s{sLD}, s{sLD}, 1
    s_cmp_eq_u32 s{sLD}, 10
    s_cselect_b32 s{sLD}, 0, s{sLD}
    s_add_u32 s{sNP}, s{sNP}, {SLOT}
    s_cmp_ge_u32 s{sNP}, {3*SLOT}
    s_cselect_b32 s{sT0}, {3*SLOT}, 0
    s_sub_u32 s{sNP}, s{sNP}, s{sT0}
    """)
    if opt.get("ldstamps"):
        for c in range(10):
            ld_body()
            if c >= 2: stats_chunk()
            if c >= 1:
                a(f"s_waitcnt vmcnt({16 if c < 9 else 0}) lgkmcnt(0)\ns_barrier")
                stamp(c)
        a("s_branch L_g1_over")
    else:
        a(f"s_mov_b32 s{sC}, 0\nL_ld:")
        ld_body()
        a(f"""
    s_add_u32 s{sC}, s{sC}, 1
    s_cmp_eq_u32 s{sC}, 1
    s_cbranch_scc1 L_ld
    s_cmp_eq_u32 s{sC}, 2
    s_cbranch_scc1 L_ld_nost
    """)
        stats_chunk()
        a(f"""
L_ld_nost:
    s_cmp_eq_u32 s{sC}, 10
    s_cbranch_scc1 L_ld_done
    s_waitcnt vmcnt(16)
    s_barrier
    s_branch L_ld
L_ld_done:
    s_waitcnt vmcnt(0) lgkmcnt(0)
    s_barrier
    s_branch L_g1_over
    """)
    W2R = 72
    a(f"""
L_aux:
    s_and_b32 s{sLD}, s{sW}, 1
    v_mov_b32 v23, {XCH+1536}
    v_lshl_add_u32 v23, v1, 2, v23
    v_mov_b32 v24, 0
    ds_write_b32 v23, v24
    s_lshl_b32 s{sT0}, s{sLD}, 5
    v_add_u32 v21, s{sT0}, v21
    v_lshrrev_b32 v23, 1, v21
    v_xor_b32 v23, v23, v22
    v_and_b32 v23, 7, v23
    v_lshlrev_b32 v23, 4, v23
    v_lshl_add_u32 v12, v21, 7, v23
    v_xor_b32 v13, 64, v12
    v_lshlrev_b32 v4, 12, v21
    v_lshl_add_u32 v4, v22, 4, v4
    v_add_u32 v5, {8*4096}, v4
    v_add_u32 v6, {16*4096}, v4
    v_add_u32 v7, {24*4096}, v4
    """)
    for j in range(5):
        divmod10(22, 23, 21, 64*j)
        a(f"v_mul_u32_u24 v22, 1280, v22\nv_lshl_add_u32 v{104+j}, v23, 4, v22")
    a(f"""
    s_lshl_b32 s{sWO}, s{sLD}, 5
    s_add_u32 s{sWO}, s{sWO}, s{sI}
    s_cmp_eq_u32 s{sNT}, 1
    s_mov_b32 s{sT0}, {2*TILE_ST}
    s_cselect_b32 s{sT0}, {W2ST}, s{sT0}
    s_mul_i32 s{sXO}, s{sLD}, 5120
    s_add_u32 s{sXO}, s{sXO}, s{sT0}
    v_lshrrev_b32 v21, 2, v0                  ; 4g + ((l>>2)&3)
    v_mul_u32_u24 v21, 160, v21
    v_add_u32 v21, s{sXO}, v21
    v_and_b32 v22, 3, v0
    v_lshl_add_u32 v15, v22, 3, v21
    v_lshl_add_u32 v14, v22, 4, v21
    v_add_u32 v11, 4096, v3
    s_mov_b32 s{sL}, 0
    s_waitcnt lgkmcnt(0)
    {nonce}
    s_barrier
L_aux_seg:
    s_cmp_eq_u32 s{sL}, 0
    s_cbranch_scc1 L_hook0
    s_cmp_eq_u32 s{sL}, 3
    s_cbranch_scc1 L_hook3
    s_cmp_eq_u32 s{sL}, 5
    s_cbranch_scc1 L_hook5
L_aux_st:
    s_cmp_eq_u32 s{sNT}, 1
    s_cbranch_scc0 L_aux_nost
    """)
    stats_chunk()
    a(f"""
L_aux_nost:
    s_add_u32 s{sL}, s{sL}, 1
    s_cmp_eq_u32 s{sL}, 3
    s_cbranch_scc1 L_aux_ack
    s_cmp_eq_u32 s{sL}, 8
    s_cbranch_scc1 L_aux_last
    s_cmp_eq_u32 s{sNT}, 1
    s_cbranch_scc0 L_aux_seg
    s_barrier
    s_branch L_aux_seg
L_aux_ack:
    s_waitcnt vmcnt(0)
    s_barrier
    s_branch L_aux_seg
L_hook0:
    s_mov_b32 s{sC}, 0
L_rb:
    """)
    tile_base(sM0, sC)
    a(f"v_add_u32 v21, s{sM0}, v12\nv_add_u32 v22, s{sM0}, v13")
    for q in range(4): a(f"ds_read_b128 {vr(72+4*q,4)}, v{22 if q & 1 else 21} offset:{OST+1024*q}")
    a(f"""
    s_add_u32 s{sT0}, s{sTAU}, s{sC}
    s_and_b32 s{sT1}, s{sT0}, 31
    s_lshr_b32 s{sT0}, s{sT0}, 5
    s_lshl_b32 s{sT0}, s{sT0}, 18
    s_lshl_b32 s{sT1}, s{sT1}, 7
    s_sub_u32 s{sT0}, s{sT0}, s{sT1}
    s_add_u32 s{sT0}, s{sT0}, {KVT_OFF + 1984*2}
    s_add_u32 s{sC}, s{sC}, 1
    s_waitcnt lgkmcnt(0)
    """)
    for q in range(4): a(f"buffer_store_dwordx4 {vr(72+4*q,4)}, v{4+q}, {srd(sWS)}, s{sT0} offen sc0 sc1")
    a(f"""
    s_cmp_lt_u32 s{sC}, s{sNT}
    s_cbranch_scc1 L_rb
    s_branch L_aux_st
L_hook3:
    s_lshl_b32 s{sT0}, s{sTAU}, 7
    s_add_u32 s{sT0}, s{sT0}, {FP_OFF}
    s_cmp_eq_u32 s{sW}, 2
    s_cselect_b32 s{sT0}, s{sT0}, {OOB}
    s_bfm_b32 s{sT1}, s{sNT}, 0
    v_lshlrev_b32 v21, 7, v0
    v_mov_b32 v19, s{sNON}
    s_mul_i32 s{sT2}, s{sWO}, {32*1280}
    s_mul_i32 s{sT3}, s{sX}, 160
    s_add_u32 s{sT2}, s{sT2}, s{sT3}
    s_mov_b32 exec_lo, s{sT1}
    s_mov_b32 exec_hi, 0
    buffer_store_dword v19, v21, {srd(sWS)}, s{sT0} offen sc0 sc1
    s_mov_b64 exec, -1
    """)
    for j in range(5): a(f"s_add_u32 m0, s{sXO}, {1024*j}\nbuffer_load_dwordx4 v{104+j}, {srd(sW2)}, s{sT2} offen lds")
    a(f"""
    s_branch L_aux_st
L_hook5:
    s_mul_i32 s{sT3}, s{sX}, 54
    s_add_u32 s{sT3}, s{sT3}, s{sWO}
    s_mul_i32 s{sT3}, s{sT3}, 5120
    s_add_u32 s{sT3}, s{sT3}, {W2T_OFF}
    s_cmp_ge_u32 s{sWO}, 54
    s_cselect_b32 s{sT2}, {OOB}, s{sT3}
    s_waitcnt vmcnt(0)
    """)
    for t in range(5):
        for j in range(2):
            if t < 4: a(f"ds_read_b64_tr_b16 {vr(W2R+4*t+2*j,2)}, v14 offset:{2560*j + 8*(t&1) + 64*(t>>1)}")
            else: a(f"ds_read_b64_tr_b16 {vr(W2R+4*t+2*j,2)}, v15 offset:{2560*j + 128}")
    a("s_waitcnt lgkmcnt(0)")
    for t in range(5):
        a(f"buffer_store_dwordx4 {vr(W2R+4*t,4)}, v{3 if t<4 else 11}, {srd(sWS)}, s{sT2} offen offset:{1024*(t%4)} sc0 sc1")
    a(f"""
    s_branch L_aux_st
L_aux_last:
    s_lshl_b32 s{sT0}, s{sX}, 5
    s_add_u32 s{sT0}, s{sT0}, s{sI}
    s_lshl_b32 s{sT0}, s{sT0}, 1
    s_add_u32 s{sT0}, s{sT0}, s{sLD}
    s_lshl_b32 s{sT0}, s{sT0}, 7
    s_add_u32 s{sT0}, s{sT0}, {FA_OFF}
    s_cmp_eq_u32 s{sNT}, 1
    s_cbranch_scc0 L_aux_nob8
    s_barrier
L_aux_nob8:
    s_waitcnt vmcnt(0)
    """)
    flag_store(sT0)
    a(f"""
    s_branch L_aux_over
L_g1_over:
    {nonce}
L_aux_over:
    v_and_b32 v12, 31, v0
    v_lshlrev_b32 v12, 7, v12
    s_mul_i32 s{sT0}, s{sI}, 5
    s_lshr_b32 s{sT0}, s{sT0}, 1
    s_mul_i32 s{sCH}, s{sX}, 80
    s_add_u32 s{sCH}, s{sCH}, s{sT0}
    s_and_b32 s{sCNT}, s{sI}, 1
    s_add_u32 s{sCNT}, s{sCNT}, 2
    s_cmp_eq_u32 s{sW}, 3
    s_cbranch_scc1 L_a3
    s_cmp_ge_u32 s{sW}, s{sCNT}
    s_cbranch_scc1 L_adone
    s_add_u32 s{sCH}, s{sCH}, s{sW}
    s_mul_i32 s{sM0}, s{sW}, {CONV_STRIDE}
    s_add_u32 s{sM0}, s{sM0}, {RG}
    s_lshl_b32 s{sT0}, s{sCH}, 12
    s_lshr_b32 s{sL}, s{sCH}, 6
    s_lshl_b32 s{sL}, s{sL}, 12
    s_add_u32 s{sL}, s{sL}, {FP_OFF}
    s_lshl_b32 s{sT1}, s{sCH}, 1
    buffer_load_dword v16, v12, {srd(sWS)}, s{sL} offen sc1
    buffer_load_dwordx2 v[36:37], off, {srd(sSSMK)}, s{sT0}
    buffer_load_ushort v38, off, {srd(sSSMD)}, s{sT1}
    s_branch L_adone
L_a3:
    v_lshlrev_b32 v12, 7, v0
    s_lshl_b32 s{sL}, s{sNI}, 13
    s_add_u32 s{sL}, s{sL}, {FA_OFF}
    s_lshl_b32 s{sT0}, s{sCH}, 1
    v_lshlrev_b32 v14, 1, v0
    buffer_load_dword v16, v12, {srd(sWS)}, s{sL} offen sc1
    buffer_load_ushort v38, v14, {srd(sSSMD)}, s{sT0} offen
L_adone:
    s_cmp_eq_u32 s{sNT}, 1
    s_cbranch_scc0 L_st_done
    {'s_setprio 2' if not opt.get("noprio") else ''}
    s_mov_b32 s{sC}, 0
L_st_tail:
    """)
    stats_chunk()
    a(f"""
    s_add_u32 s{sC}, s{sC}, 1
    s_cmp_lt_u32 s{sC}, 2
    s_cbranch_scc1 L_st_tail
    s_mov_b32 s{sT0}, 0x3acccccd
    s_mov_b32 s{sT1}, 0x3727c5ac
    v_and_b32 v21, 3, v1
    v_lshrrev_b32 v22, 2, v1
    v_lshl_add_u32 v22, v22, 4, v1
    v_lshlrev_b32 v22, 2, v22
    """)
    for r in range(1, 4):
        a(f"v_cmp_eq_u32 vcc, {r}, v21")
        for mt in range(2): a(f"v_cndmask_b32 v{112+4*mt}, v{112+4*mt}, v{112+4*mt+r}, vcc")
    a("ds_bpermute_b32 v41, v22, v112\nds_bpermute_b32 v43, v22, v116")
    a(f"v_mul_f32 v40, s{sT0}, v60\nv_mul_f32 v42, s{sT0}, v64\ns_waitcnt lgkmcnt(0)\nv_mul_f32 v41, s{sT0}, v41\nv_mul_f32 v43, s{sT0}, v43")
    for m in (40, 42): a(f"v_fma_f32 v{m+1}, -v{m}, v{m}, v{m+1}")
    for m in (40, 42): a(f"v_max_f32 v{m+1}, 0, v{m+1}")
    for m in (40, 42): rbf(m+1)
    for m in (40, 42): a(f"v_add_f32 v{m+1}, s{sT1}, v{m+1}")
    for m in (40, 42): rbf(m+1)
    for m in (40, 42): a(f"v_sqrt_f32 v{m+1}, v{m+1}")
    for m in (40, 42): rbf(m)
    for m in (40, 42): rbf(m+1)
    for m in (40, 42): a(f"v_rcp_f32 v{m+1}, v{m+1}")
    a(f"""
    s_lshl_b32 s{sT0}, s{sW}, 8
    s_add_u32 s{sT0}, s{sT0}, {XST}
    v_lshl_add_u32 v21, v1, 3, s{sT0}
    ds_write_b64 v21, v[40:41]
    ds_write_b64 v21, v[42:43] offset:128
L_st_done:
    """)
    lds_inc(XCNT)
    if not opt.get("noprio"): a("s_setprio 0")
    if opt.get("ldstamps"):
        stamp0 = stamp
        stamp = lambda k: stamp0(k) if k == 10 else None
    stamp(1)
    KVR, K0R, DR = 20, 36, 38
    a(f"""
    v_add_u32 v15, 1, v1
    v_and_b32 v17, 3, v15
    v_mul_u32_u24 v17, 4160, v17
    v_and_b32 v15, 28, v15
    v_lshl_add_u32 v17, v15, 1, v17
    v_lshl_add_u32 v5, v2, 4, v17
    v_lshlrev_b32 v15, 5, v1
    s_lshl_b32 s{sT0}, s{sW}, 12
    s_add_u32 s{sT0}, s{sT0}, {ZST}
    v_lshl_add_u32 v8, v2, 3, v15
    v_add_u32 v8, s{sT0}, v8
    v_add_u32 v9, s{sT0}, v3
    v_sub_u32 v15, {16640+480}, v15
    v_lshl_add_u32 v6, v2, 4, v15
    v_lshlrev_b32 v17, 3, v2
    v_sub_u32 v7, v15, v17
    v_add_u32 v7, 24, v7
    s_cmp_eq_u32 s{sW}, 3
    s_cbranch_scc1 L_w3
    s_cmp_ge_u32 s{sW}, s{sCNT}
    s_cbranch_scc1 L_staged
    """)
    a(f"s_lshl_b32 s{sT0}, s{sCH}, 12")
    for cp in range(4):
        a(f"s_add_u32 m0, s{sM0}, {cp*4160+32}\ns_add_u32 s{sT1}, s{sT0}, {2*cp}")
        for j in range(4): a(f"buffer_load_dwordx4 v3, {srd(sSSMK)}, s{sT1} offen offset:{1024*j} lds")
    poll("K", [(12, sL)], pre=18)
    a(f"s_lshl_b32 s{sT1}, s{sCH}, 12\ns_add_u32 s{sT1}, s{sT1}, {KVT_OFF}")
    for j in range(4): a(f"buffer_load_dwordx4 {vr(KVR+4*j,4)}, v3, {srd(sWS)}, s{sT1} offen offset:{1024*j} sc1")
    a(f"""
    s_add_u32 s{sT0}, s{sM0}, 16640
    v_add_u32 v15, s{sT0}, v3
    v_add_u32 v5, s{sM0}, v5
    v_add_u32 v6, s{sM0}, v6
    v_add_u32 v7, s{sM0}, v7
    v_mov_b32 v40, 0
    v_mov_b32 v41, 0
    v_mov_b32 v42, 0
    v_mov_b32 v43, 0
    s_mov_b64 exec, 0x3fffffff
    ds_write_b128 v15, v[40:43] offset:4096
    s_mov_b64 exec, -1
    v_lshrrev_b32 v16, 1, v0
    v_lshlrev_b32 v17, 4, v16
    v_sub_u32 v17, 48, v17
    v_and_b32 v18, 1, v0
    v_mul_u32_u24 v16, 4160, v16
    v_lshl_add_u32 v16, v18, 4, v16
    v_add_u32 v16, s{sM0}, v16
    v_cmp_eq_u32 vcc, 1, v18
    s_waitcnt vmcnt(20)
    v_lshlrev_b64 v[42:43], v17, {vr(K0R,2)}
    v_lshlrev_b64 v[42:43], 16, v[42:43]
    v_lshlrev_b32 v{DR}, 16, v{DR}
    v_cndmask_b32 v42, 0, v42, vcc
    v_cndmask_b32 v43, 0, v43, vcc
    v_mov_b32 v{DR+1}, v{DR}
    s_mov_b64 exec, 0xff
    ds_write_b128 v16, v[40:43]
    s_mov_b64 exec, -1
    s_waitcnt vmcnt(0)
    """)
    for j in range(4): a(f"ds_write_b128 v15, {vr(KVR+4*j,4)} offset:{1024*j}")
    lds_inc(SCNT)
    a(f"""
    s_branch L_staged
L_w3:
    """)
    poll("P", [(12, sL)], pre=1)
    a(f"s_waitcnt vmcnt(0)\nv_lshlrev_b32 v{DR}, 16, v{DR}")
    lds_inc(ACNT, wait=False)
    a(f"""
    s_cmp_lg_u32 s2, 0
    s_cbranch_scc1 L_staged
    v_lshlrev_b32 v13, 8, v0
    s_mov_b32 s{sT0}, {FA_OFF}
    s_mov_b32 s{sT1}, {FA_OFF+16384}
    s_mov_b32 s{sT2}, {FA_OFF+32768}
    s_mov_b32 s{sT3}, {FA_OFF+49152}
    """)
    poll("N", [(13, sT0), (13, sT1), (13, sT2), (13, sT3)])
    a(f"s_mov_b32 s{sT0}, {NONCE_OFF}")
    flag_store(sT0)
    a("L_staged:")
    stamp(2)
    lds_wait("A2", ACNT, 1, sleep=1)
    a(f"""
    s_mul_i32 s{sWO}, s{sNI}, 54
    s_sub_u32 s{sWO}, s{sWO}, s{sW}
    s_add_u32 s{sWO}, s{sWO}, 23
    s_mul_i32 s{sWO}, s{sWO}, 5120
    s_add_u32 s{sWO}, s{sWO}, {W2T_OFF}
    s_mul_i32 s{sXO}, s{sW}, 20480
    v_add_u32 v4, 4096, v3
    s_mov_b32 s{sNP}, 0
    """)
    if not opt.get("xburst"): a(f"s_cmp_lt_u32 s{sW}, s{sCNT}\ns_cbranch_scc1 L_convX")
    w2dma = [f"s_mov_b32 m0, s{sXO}", f"s_add_u32 s{sXO}, s{sXO}, 4096"]
    w2dma += [f"buffer_load_dwordx4 v3, {srd(sWS)}, s{sWO} offen offset:{1024*t} sc1 lds" for t in range(4)]
    w2dma += [f"s_mov_b32 m0, s{sXO}", f"s_add_u32 s{sXO}, s{sXO}, 1024", f"buffer_load_dwordx4 v4, {srd(sWS)}, s{sWO} offen sc1 lds", f"s_add_u32 s{sWO}, s{sWO}, 20480"]
    lds_wait("X", XCNT, 8, sleep=1)
    for j in range(4):
        for x in w2dma: a(x)
    stamp(3)
    if opt.get("xburst"): a(f"s_cmp_lt_u32 s{sW}, s{sCNT}\ns_cbranch_scc1 L_convX")
    a(f"s_cmp_eq_u32 s{sW}, 3\ns_cbranch_scc1 L_convY\ns_waitcnt vmcnt(0)")
    lds_inc(WW, perwave=True, wait=False)
    a("s_branch L_conv_done\nL_convX:")
    stamp(3)
    CA, CB, CACC, UR = (40, 104), (72, 136), 168, 200
    def creads(par, off, ai, bi):
        A_, B_ = CA[par], CB[par]
        l = []
        for i in range(8):
            if i in bi: l.append(f"ds_read_b128 {vr(B_+4*i,4)}, v11 offset:{off+512*i}")
            if i in ai:
                l.append(f"ds_read_b64 {vr(A_+4*i,2)}, v10 offset:{off+512*i}")
                l.append(f"ds_read_b64 {vr(A_+4*i+2,2)}, v10 offset:{off+512*i+8}")
        return l
    def conv_first(ai, bi):
        first = creads(0, 0, ai, bi)
        for x in first[:12]: a(x)
        if len(first) > 12: a("s_waitcnt lgkmcnt(3)")
        for x in first[12:]: a(x)
    def conv_loop(tag, ds, ai, bi):
        for d in ds:
            for r in range(4): a(f"v_mov_b32 v{CACC+4*(7-d)+r}, 0")
        a(f"s_mov_b32 s{sC}, {3 if opt.get('x_noconv') else 0}\nL_cv{tag}:")
        for par in range(2):
            A_, B_ = CA[par], CB[par]
            nxt = creads(par ^ 1, 64*(par+1), ai, bi)
            if len(nxt) > 12: nxt = nxt[:12] + ["s_waitcnt lgkmcnt(3)"] + nxt[12:]
            if par == 0 and tag == "Y":
                nxt += [f"s_cmp_eq_u32 s{sC}, 3", f"s_cselect_b32 s{sT2}, {CONV_STRIDE-512}, 0", f"v_add_u32 v10, s{sT2}, v10", f"v_add_u32 v11, s{sT2}, v11"]
            if par == 0 and tag == "X" and not opt.get("xburst"): nxt += w2dma
            if par == 1: nxt += ["v_add_u32 v10, 128, v10", "v_add_u32 v11, 128, v11", f"s_add_u32 s{sC}, s{sC}, 1", f"s_cmp_lt_u32 s{sC}, 4"]
            ms = [(ip, ip - d) for ip in range(8) for d in reversed(ds) if ip - d >= 0]
            a("s_waitcnt lgkmcnt(0)")
            for k, (ip, i) in enumerate(ms):
                ac = vr(CACC + 4*(7-(ip-i)), 4)
                a(f"{MF} {ac}, {vr(A_+4*i,4)}, {vr(B_+4*ip,4)}, {ac}")
                for _ in range(2):
                    if nxt: a(nxt.pop(0))
            assert not nxt
        if tag == "X":
            a(f"s_cbranch_scc1 L_cvX\ns_waitcnt vmcnt(0) lgkmcnt(0)")
            lds_inc(WW, perwave=True, wait=False)
        else:
            a(f"s_cbranch_scc0 L_cvd{tag}\ns_or_b32 s{sT1}, s{sC}, s{sNP}\ns_cmp_lg_u32 s{sT1}, 2\ns_cbranch_scc1 L_cv{tag}\ns_waitcnt vmcnt(0)\ns_mov_b32 s{sNP}, 8")
            lds_inc(WW, perwave=True, wait=False)
            a(f"s_branch L_cv{tag}\nL_cvd{tag}:\ns_waitcnt lgkmcnt(0)")
    def z_tiles(tiles, ubase, dreg, slot0):
        for k, jt in enumerate(tiles): a(f"ds_read_b64 {vr(UR+2*k,2)}, v{ubase} offset:{512*(7-jt)}")
        a("s_waitcnt lgkmcnt(0)")
        for k, jt in enumerate(tiles):
            ac = CACC + 4*jt; u = UR + 2*k
            a(f"""
    v_and_b32 v212, 0xffff0000, v{u+1}
    v_lshlrev_b32 v213, 16, v{u+1}
    v_and_b32 v214, 0xffff0000, v{u}
    v_lshlrev_b32 v215, 16, v{u}
    v_pk_fma_f32 {vr(ac,2)}, v[212:213], {vr(dreg,2)}, {vr(ac,2)}
    v_pk_fma_f32 {vr(ac+2,2)}, v[214:215], {vr(dreg,2)}, {vr(ac+2,2)}
    v_cvt_pk_bf16_f32 v{u}, v{ac}, v{ac+1}
    v_cvt_pk_bf16_f32 v{u+1}, v{ac+2}, v{ac+3}
    ds_write_b64 v8, {vr(u,2)} offset:{512*(slot0+k)}
    """)
    a("v_mov_b32 v10, v5\nv_mov_b32 v11, v6")
    conv_first(range(8), range(8))
    lds_wait("GX", GW, 1, perwave=True, sleep=1)
    if not opt.get("noprio"): a("s_setprio 2")
    stamp(4)
    conv_loop("X", [0, 1, 2, 3, 7], range(8), range(8))
    stamp(5)
    z_tiles([4, 5, 6, 7, 0], 7, DR, 0)
    a(f"""
    s_lshl_b32 s{sT0}, s{sCH}, 12
    s_add_u32 s{sT0}, s{sT0}, {Z_OFF}
    s_waitcnt lgkmcnt(0)
    """)
    for j in range(3): a(f"ds_read_b128 {vr(220+4*j,4)}, v9 offset:{1024*j}")
    for j in range(2):
        a(f"s_waitcnt lgkmcnt({2-j})\nbuffer_store_dwordx4 {vr(220+4*j,4)}, v3, {srd(sWS)}, s{sT0} offen offset:{2048+1024*j} sc0 sc1")
    a(f"""
    s_waitcnt lgkmcnt(0)
    s_mov_b32 exec_hi, 0
    buffer_store_dwordx4 {vr(228,4)}, v3, {srd(sWS)}, s{sT0} offen sc0 sc1
    s_mov_b32 exec_hi, -1
    s_branch L_conv_sig
L_convY:
    """)
    lds_wait("S", SCNT, f"s{sCNT}", sleep=1)
    a(f"""
    s_mov_b32 s{sLD}, 0
    v_add_u32 v10, {RG}, v5
    v_add_u32 v11, {RG}, v6
    v_add_u32 v12, {RG}, v7
    """)
    conv_first(range(4), range(4, 8))
    lds_wait("GY", GW, 1, perwave=True, sleep=1)
    if not opt.get("noprio"): a("s_setprio 2")
    stamp(4)
    a(f"L_cy:\nv_readlane_b32 s{sT0}, v{DR}, s{sLD}")
    conv_loop("Y", [4, 5, 6], range(4), range(4, 8))
    a(f"v_mov_b32 v216, s{sT0}\nv_mov_b32 v217, s{sT0}")
    z_tiles([1, 2, 3], 12, 216, 0)
    a(f"""
    s_add_u32 s{sT0}, s{sCH}, s{sLD}
    s_lshl_b32 s{sT0}, s{sT0}, 12
    s_add_u32 s{sT0}, s{sT0}, {Z_OFF+512}
    v_add_u32 v12, {CONV_STRIDE}, v12
    s_waitcnt lgkmcnt(0)
    ds_read_b128 v[220:223], v9
    ds_read_b128 v[224:227], v9 offset:1024
    s_add_u32 s{sLD}, s{sLD}, 1
    s_cmp_lt_u32 s{sLD}, s{sCNT}
    s_waitcnt lgkmcnt(0)
    buffer_store_dwordx4 v[220:223], v3, {srd(sWS)}, s{sT0} offen sc0 sc1
    s_mov_b32 exec_hi, 0
    buffer_store_dwordx4 v[224:227], v3, {srd(sWS)}, s{sT0} offen offset:1024 sc0 sc1
    s_mov_b32 exec_hi, -1
    s_cbranch_scc1 L_cy
    """)
    stamp(5)
    a(f"""
L_conv_sig:
    {'s_setprio 0' if not opt.get("noprio") else ''}
    s_lshl_b32 s{sT0}, s{sX}, 5
    s_add_u32 s{sT0}, s{sT0}, s{sI}
    s_lshl_b32 s{sT0}, s{sT0}, 7
    s_add_u32 s{sT0}, s{sT0}, {FZ_OFF}
    v_mov_b32 v16, {ZCNT}
    v_mov_b32 v17, 1
    s_waitcnt vmcnt(0)
    s_mov_b64 exec, 1
    ds_add_rtn_u32 v17, v16, v17
    s_waitcnt lgkmcnt(0)
    s_mov_b64 exec, -1
    v_readfirstlane_b32 s{sT1}, v17
    s_cmp_lg_u32 s{sT1}, s{sCNT}
    s_cbranch_scc1 L_conv_done
    """)
    flag_store(sT0)
    a(f"L_conv_done:\ns_add_u32 s{sCNT}, s{sCNT}, 1")
    stamp(6)
    lds_wait("Z", ZCNT, f"s{sCNT}", sleep=2)
    XR, B2R, STR, ZR, ZT, PR = 20, 30, 40, 44, 56, 68
    a(f"""
    s_lshl_b32 s{sT0}, s{sMB}, 6
    s_lshl_b32 s{sT1}, s{sW}, 4
    s_add_u32 s{sL}, s{sT0}, s{sT1}
    s_mul_i32 s{sT0}, s{sL}, 1280
    s_mul_i32 s{sT2}, s{sNI}, 160
    s_add_u32 s{sT0}, s{sT0}, s{sT2}
    s_mul_i32 s{sM0}, s{sW}, 5120
    s_add_u32 s{sM0}, s{sM0}, {RG}
    """)
    for j in range(3):
        divmod10(22, 23, 21, 64*j)
        a(f"""
    v_mul_u32_u24 v22, 1280, v22
    v_lshl_add_u32 v22, v23, 4, v22
    s_add_u32 m0, s{sM0}, {2560+1024*j}
    {'s_mov_b32 exec_hi, 0' if j == 2 else ''}
    buffer_load_dwordx4 v22, {srd(sQ)}, s{sT0} offen lds
    """)
    a(f"""
    s_mov_b32 exec_hi, -1
    v_lshlrev_b32 v17, 4, v2
    v_lshlrev_b32 v18, 3, v2
    v_lshlrev_b32 v12, 3, v1
    s_lshl_b32 s{sT1}, s{sL}, 3
    s_add_u32 s{sT1}, s{sT1}, {ST_OFF}
    buffer_load_dwordx4 {vr(B2R,4)}, v17, {srd(sB2)}, s{sT2} offen
    buffer_load_dwordx4 {vr(B2R+4,4)}, v17, {srd(sB2)}, s{sT2} offen offset:64
    buffer_load_dwordx2 {vr(B2R+8,2)}, v18, {srd(sB2)}, s{sT2} offen offset:128
    s_lshl_b32 s{sT0}, s{sNI}, 12
    s_add_u32 s{sT0}, s{sT0}, {FZ_OFF}
    v_and_b32 v14, 31, v0
    v_lshlrev_b32 v14, 7, v14
    """)
    lds_wait("H", HCNT, 1, sleep=2)
    a(f"buffer_load_dwordx2 {vr(STR,2)}, v12, {srd(sWS)}, s{sT1} offen sc1")
    ZS2 = RG + 20480
    a(f"""
    v_add_u32 v15, s{sM0}, v3
    v_mul_u32_u24 v16, 160, v1
    v_add_u32 v16, s{sM0}, v16
    v_lshl_add_u32 v17, v2, 4, v16
    v_lshl_add_u32 v16, v2, 3, v16
    s_waitcnt vmcnt(0)
    ds_read_b128 {vr(XR,4)}, v17 offset:2560
    ds_read_b128 {vr(XR+4,4)}, v17 offset:{2560+64}
    ds_read_b64 {vr(XR+8,2)}, v16 offset:{2560+128}
    v_lshrrev_b32 v16, 2, v0
    v_and_b32 v17, 3, v0
    v_lshlrev_b32 v17, 3, v17
    v_add_u32 v17, {ZS2}, v17
    v_lshl_add_u32 v13, v16, 7, v17
    v_lshl_add_u32 v12, v2, 9, v13
    v_lshrrev_b32 v16, 3, v0
    v_and_b32 v17, 3, v16
    v_xor_b32 v17, s{sW}, v17
    v_lshl_add_u32 v12, v17, 5, v12
    v_and_b32 v16, 1, v16
    v_and_b32 v17, 2, v2
    v_or_b32 v17, v17, v16
    v_xor_b32 v17, s{sW}, v17
    v_lshl_add_u32 v13, v17, 5, v13
    v_mov_b32 v{STR+2}, v{STR+1}
    v_mov_b32 v{STR+3}, v{STR+1}
    v_mov_b32 v{STR+1}, v{STR}
    s_waitcnt lgkmcnt(0)
    """)
    for t in range(5):
        x = PR + 4*t; xn = 104 + 4*t
        unp(x, XR + 2*t); unp(96, B2R + 2*t)
        for h in range(2): a(f"v_pk_add_f32 {vr(xn+2*h,2)}, {vr(x+2*h,2)}, {vr(STR,2)} neg_lo:[0,1] neg_hi:[0,1]")
        for h in range(2): a(f"v_pk_add_f32 {vr(x+2*h,2)}, {vr(x+2*h,2)}, {vr(96+2*h,2)}")
        for h in range(2): a(f"v_pk_mul_f32 {vr(xn+2*h,2)}, {vr(xn+2*h,2)}, {vr(STR+2,2)}")
    a(f"s_cmp_eq_u32 s{sW}, 0\ns_cbranch_scc0 L_zwait")
    a(f"""
    v_lshrrev_b32 v21, 3, v0
    v_lshrrev_b32 v22, 3, v0
    v_and_b32 v22, 2, v22
    v_and_b32 v23, 7, v0
    v_xor_b32 v23, v23, v22
    v_lshlrev_b32 v21, 12, v21
    v_lshl_add_u32 v21, v23, 4, v21
    v_xor_b32 v22, 64, v21
    s_mul_i32 s{sT2}, s{sNI}, {80*4096}
    s_lshl_b32 s{sT1}, s{sMB}, 7
    s_add_u32 s{sT2}, s{sT2}, s{sT1}
    s_add_u32 s{sT2}, s{sT2}, {Z_OFF}
    """)
    poll("Z", [(14, sT0)], sleep=2)
    stamp(7)
    for q in range(10):
        a(f"s_mov_b32 m0, {ZS2+1024*q}\ns_add_u32 s{sT1}, s{sT2}, {8*4096*q}\nbuffer_load_dwordx4 v{22 if q & 1 else 21}, {srd(sWS)}, s{sT1} offen sc1 lds")
    a("s_waitcnt vmcnt(0)")
    lds_inc(ZRDY, wait=False)
    a("s_branch L_zready\nL_zwait:")
    lds_wait("ZR", ZRDY, 1, sleep=1)
    stamp(7)
    a("L_zready:")
    for t in range(5):
        if t < 4: a(f"ds_read_b64_tr_b16 {vr(ZT+2*t,2)}, v12 offset:{128*(32*(t>>1)+4*(t&1))}")
        else: a(f"ds_read_b64_tr_b16 {vr(ZT+2*t,2)}, v13 offset:{128*64}")
    a("s_waitcnt lgkmcnt(0)")
    for t in range(5):
        x = PR + 4*t; xn = 104 + 4*t
        unp(92, ZT + 2*t)
        for h in range(2): a(f"v_pk_fma_f32 {vr(x+2*h,2)}, {vr(xn+2*h,2)}, {vr(92+2*h,2)}, {vr(x+2*h,2)}")
        a(f"ds_write_b128 v15, {vr(x,4)} offset:{1024*t}")
    a("s_waitcnt lgkmcnt(0)")
    stamp(8)
    a(f"s_barrier\ns_add_u32 s{sW}, s{sW}, 4")
    stamp(9)
    a("L_fin:")
    dbl = [k for k in opt if k.startswith("dbl:")]
    if dbl:
        _, i, j, mult = dbl[0].split(":"); i, j, mult = int(i), int(j), int(mult)
        a("s_waitcnt vmcnt(0)")
        stamp(10)
        a(f"""
    s_waitcnt lgkmcnt(0)
    s_cmp_ge_u32 s{sW}, 4
    s_cbranch_scc1 L_end
    s_cmp_lg_u32 s{sNT}, 1
    s_cbranch_scc1 L_end
    s_sub_u32 s{sT0}, s{sTS+2*j}, s{sTS+2*i}
    s_mul_i32 s{sT0}, s{sT0}, {mult}
    s_min_u32 s{sT0}, s{sT0}, 100000
L_dbl:
    s_memrealtime s[{sT4}:{sT5}]
    s_waitcnt lgkmcnt(0)
    s_sub_u32 s{sT1}, s{sT4}, s{sTS+20}
    s_cmp_lt_u32 s{sT1}, s{sT0}
    s_cbranch_scc1 L_dbl
    """)
    elif stamps:
        a("s_waitcnt vmcnt(0)")
        stamp(10)
        a("s_waitcnt lgkmcnt(0)")
        for k in range(12):
            a(f"v_mov_b32 v{40+k}, s{sTS+2*k}" if k < 11 else f"v_mov_b32 v{40+k}, 0")
        a(f"""
    s_lshl_b32 s{sT0}, s2, 3
    s_add_u32 s{sT0}, s{sT0}, s{sW}
    s_lshl_b32 s{sT0}, s{sT0}, 6
    s_add_u32 s{sT0}, s{sT0}, {TS_OFF}
    s_mov_b64 exec, 1
    buffer_store_dwordx4 v[40:43], off, {srd(sWS)}, s{sT0}
    buffer_store_dwordx4 v[44:47], off, {srd(sWS)}, s{sT0} offset:16
    buffer_store_dwordx4 v[48:51], off, {srd(sWS)}, s{sT0} offset:32
    """)
    a("""
L_end:
    s_endpgm
.section .rodata,"a"
.p2align 6
""")
    def add_nt(srds):
        out = []
        for x in a.l:
            if "buffer_load" in x and any(srd(b) in x for b in srds) and " nt" not in x:
                x = x.replace(" lds", " nt lds") if x.rstrip().endswith(" lds") else x + " nt"
            out.append(x)
        a.l = out
    if opt.get("nt1"): add_nt([sK, sV, sW2, sSSMK])
    if opt.get("ntx"): add_nt([sQ])
    if opt.get("ntw"): add_nt([sW1])
    a(kd(NAME, 256, accum=256))
    return a.text(dopad=True), a

if __name__ == "__main__":
    out = sys.argv[1] if len(sys.argv) > 1 else "k.s"
    opt = {k: 1 for k in sys.argv[2:]}
    t, a = gen(stamps=bool(opt.get("stamps")), opt=opt)
    open(out, "w").write(t)
    print("nops inserted:", a.nops, "lines", len(t.split("\n")))
```

```python
import sys, struct, math
from asm import *

NAME = "parallel_sum__ssm_conv_h3__dense_activation_gelu__prompt_kernel"
NONCE_OFF, FP_OFF, FA_OFF, FZ_OFF, FH_OFF = 0x0, 0x1080000, 0x1090000, 0x10a0000, 0x10b0000
H_OFF, W2T_OFF, KVT_OFF, Z_OFF, ST_OFF, TS_OFF, WS_REC = 0x10000, 0x700000, 0xA00000, 0xD00000, 0x1000000, 0x1010000, 0x1100000
OOB = 0x40000000
LDS_BYTES = 163840
SLOT, WP_O = 32768, 16384
RG = 3 * SLOT
OST, TILE_ST = 20480, 28672
W2ST = RG + TILE_ST
CONV_STRIDE = 21248
XCH = RG + 3 * CONV_STRIDE
XST = XCH + 512
XCNT, ZCNT, SCNT, HCNT, GCNT, ACNT, ZRDY, FCNT, GW, WW = [XCH + 1536 + o for o in (0, 4, 8, 12, 16, 20, 24, 28, 32, 48)]
ZST = 81920
sQ, sK, sV, sSHK, sSSMK, sSSMD, sW1, sB1, sW2, sB2, sOUT, sWS = [4 + 4*i for i in range(12)]
srd = lambda b: f"s[{b}:{b+3}]"
(sW, sX, sI, sRB, sCJ, sNT, sTAU, sMB, sNI, sC, sT0, sT1, sT2, sT3, sCH, sXO, sNON, sSPIN, sL, sCNT) = range(52, 72)
(sWO, sM0, sNP, sLD, sT4, sT5) = range(72, 78)
sTS = 78

def vr(b, n): return f"v[{b}:{b+n-1}]" if n > 1 else f"v{b}"
f2u = lambda x: struct.unpack("<I", struct.pack("<f", x))[0]
MF = "v_mfma_f32_16x16x32_bf16"

def gen(stamps=False, opt=None):
    opt = opt or {}
    a = A()
    def stamp(k):
        if stamps:
            a(f"{'s_memtime' if opt.get('cyc') else 's_memrealtime'} s[{sTS+2*k}:{sTS+2*k+1}]")
    def unp(dst, srcr, n=2):
        for d in range(n):
            a(f"v_lshlrev_b32 v{dst+2*d}, 16, v{srcr+d}\nv_and_b32 v{dst+2*d+1}, 0xffff0000, v{srcr+d}")
    def rbf(r):
        a(f"v_cvt_pk_bf16_f32 v{r}, v{r}, v{r}\nv_and_b32 v{r}, 0xffff0000, v{r}")
    def flag_store(soff):
        a(f"""
    v_mov_b32 v19, s{sNON}
    s_mov_b64 exec, 1
    buffer_store_dword v19, off, {srd(sWS)}, s{soff} sc0 sc1
    s_mov_b64 exec, -1
    """)
    def poll(tag, loads, sleep=4, pre=None):
        if pre is not None:
            a(f"s_waitcnt vmcnt({pre})\nv_cmp_eq_u32 vcc, s{sNON}, v16\ns_cmp_eq_u64 vcc, -1\ns_cbranch_scc1 L_polld{tag}")
        a(f"s_mov_b32 s{sSPIN}, 0\nL_poll{tag}:")
        for k, (vo, so) in enumerate(loads):
            a(f"buffer_load_dword v{16+k}, v{vo}, {srd(sWS)}, s{so} offen sc1")
        a("s_waitcnt vmcnt(0)")
        for k in range(len(loads)):
            if k == 0: a(f"v_cmp_eq_u32 vcc, s{sNON}, v16")
            else: a(f"v_cmp_eq_u32 s[{sT4}:{sT5}], s{sNON}, v{16+k}\ns_and_b64 vcc, vcc, s[{sT4}:{sT5}]")
        a(f"""
    s_cmp_eq_u64 vcc, -1
    s_cbranch_scc1 L_polld{tag}
    s_sleep {sleep}
    s_add_u32 s{sSPIN}, s{sSPIN}, 1
    s_cmp_lt_u32 s{sSPIN}, 0x8000
    s_cbranch_scc1 L_poll{tag}
L_polld{tag}:
    """)
    def lds_addr(addr, perwave):
        if perwave: a(f"s_lshl_b32 s{sT4}, s{sW}, 2\ns_add_u32 s{sT4}, s{sT4}, {addr}\nv_mov_b32 v18, s{sT4}")
        else: a(f"v_mov_b32 v18, {addr}")
    def lds_inc(addr, perwave=False, wait=True):
        lds_addr(addr, perwave)
        a(f"""
    v_mov_b32 v19, 1
    {'s_waitcnt lgkmcnt(0)' if wait else ''}
    s_mov_b64 exec, 1
    ds_add_u32 v18, v19
    s_mov_b64 exec, -1
    """)
    def lds_wait(tag, addr, n, perwave=False, sleep=0):
        lds_addr(addr, perwave)
        a(f"""
    s_mov_b32 s{sSPIN}, 0
L_lw{tag}:
    ds_read_b32 v19, v18
    s_add_u32 s{sSPIN}, s{sSPIN}, 1
    s_waitcnt lgkmcnt(0)
    v_readfirstlane_b32 s{sT4}, v19
    s_cmp_ge_u32 s{sT4}, {n}
    s_cbranch_scc1 L_lwd{tag}
    {'s_sleep %d' % sleep if sleep else ''}
    s_cmp_lt_u32 s{sSPIN}, 0x100000
    s_cbranch_scc1 L_lw{tag}
L_lwd{tag}:
    """)
    def tile_base(dst, t):
        a(f"s_sub_u32 s{dst}, s{t}, 1\ns_mul_i32 s{dst}, s{dst}, {TILE_ST}\ns_cmp_eq_u32 s{t}, 0\ns_cselect_b32 s{dst}, {RG}, s{dst}")
    def divmod10(q, r, tmp, off):
        a(f"v_add_u32 v{tmp}, {off}, v0\nv_mul_u32_u24 v{q}, 6554, v{tmp}\nv_lshrrev_b32 v{q}, 16, v{q}\nv_mul_u32_u24 v{r}, 10, v{q}\nv_sub_u32 v{r}, v{tmp}, v{r}")
    nonce = f"s_mul_i32 s{sNON}, s{sNON}, 1664525\ns_add_u32 s{sNON}, s{sNON}, 1013904223"

    a(f"; @launch {'kernel='+NAME+' ' if not opt.get('final') else ''}grid=(256,1,1) block=(512,1,1) lds={LDS_BYTES}")
    a('.amdgcn_target "amdgcn-amd-amdhsa--gfx950"\n.text')
    a(head(NAME))
    a(f"""
    s_cmp_ge_u32 s2, 256
    s_cbranch_scc1 L_end
    s_load_dwordx16 s[72:87], s[0:1], 0
    s_load_dwordx8 s[88:95], s[0:1], 64
    s_load_dwordx2 s[96:97], s[0:1], 104
    v_lshrrev_b32 v1, 6, v0
    v_lshrrev_b32 v15, 5, v0
    v_and_b32 v16, 31, v0
    v_and_b32 v0, 63, v0
    v_readfirstlane_b32 s{sW}, v1
    v_and_b32 v1, 15, v0
    v_lshrrev_b32 v2, 4, v0
    v_lshlrev_b32 v3, 4, v0
    s_and_b32 s{sX}, s2, 7
    s_lshr_b32 s{sI}, s2, 3
    """)
    sizes = {sQ: 2621440, sK: 2621440, sV: 2621440, sSHK: 5120, sSSMK: 2621440, sSSMD: 1280, sW1: 2211840, sB1: 3456,
             sW2: 2211840, sB2: 1280, sOUT: 2621440, sWS: WS_REC}
    for b, n in sizes.items():
        a(f"s_mov_b32 s{b+2}, {n}\ns_mov_b32 s{b+3}, 0x20000")
    if opt.get("mapP"): a(f"""
    ; GEMM1 tile (i < 28): rb = 2x + i/14, cj = i%14 ; GEMM2 tile: mb = 4x + i/8, ni = i%8
    s_cmp_ge_u32 s{sI}, 14
    s_cselect_b32 s{sT0}, 1, 0
    s_cselect_b32 s{sT1}, 14, 0
    s_sub_u32 s{sCJ}, s{sI}, s{sT1}
    s_lshl_b32 s{sRB}, s{sX}, 1
    s_add_u32 s{sRB}, s{sRB}, s{sT0}
    s_lshl_b32 s{sMB}, s{sX}, 2
    s_lshr_b32 s{sT2}, s{sI}, 3
    s_add_u32 s{sMB}, s{sMB}, s{sT2}
    s_and_b32 s{sNI}, s{sI}, 7
    """)
    else: a(f"""
    ; GEMM1 tile (i < 28): rb = 4(x>>1) + i/7, cj = 7(x&1) + i%7 ; GEMM2 tile: mb = 8(x>>1) + i/4, ni = 4(x&1) + i%4
    s_mul_i32 s{sT2}, s{sI}, 37
    s_lshr_b32 s{sT2}, s{sT2}, 8
    s_lshr_b32 s{sT0}, s{sX}, 1
    s_lshl_b32 s{sRB}, s{sT0}, 2
    s_add_u32 s{sRB}, s{sRB}, s{sT2}
    s_min_u32 s{sRB}, s{sRB}, 15
    s_and_b32 s{sT1}, s{sX}, 1
    s_sub_u32 s{sCJ}, s{sT1}, s{sT2}
    s_mul_i32 s{sCJ}, s{sCJ}, 7
    s_add_u32 s{sCJ}, s{sCJ}, s{sI}
    s_lshl_b32 s{sMB}, s{sT0}, 3
    s_lshr_b32 s{sT2}, s{sI}, 2
    s_add_u32 s{sMB}, s{sMB}, s{sT2}
    s_lshl_b32 s{sNI}, s{sT1}, 2
    s_and_b32 s{sT2}, s{sI}, 3
    s_add_u32 s{sNI}, s{sNI}, s{sT2}
    """)
    a(f"""
    s_mul_i32 s{sTAU}, s{sX}, 28
    s_add_u32 s{sTAU}, s{sTAU}, s{sI}
    s_lshl_b32 s{sT0}, s{sX}, 2
    s_add_u32 s{sT0}, s{sT0}, s{sI}
    s_mul_i32 s{sT0}, s{sT0}, 3
    s_add_u32 s{sT0}, s{sT0}, 140
    s_cmp_lt_u32 s{sI}, 28
    s_cselect_b32 s{sTAU}, s{sTAU}, s{sT0}
    s_cselect_b32 s{sNT}, 1, 3
    v_mov_b32 v20, {OOB}
    v_lshrrev_b32 v21, 3, v0
    v_and_b32 v22, 7, v0
    s_cmp_ge_u32 s{sW}, 4
    s_waitcnt lgkmcnt(0)
    """)
    src = {sQ: 72, sK: 74, sV: 76, sSHK: 78, sSSMK: 80, sSSMD: 82, sW1: 86, sB1: 88, sW2: 90, sB2: 92, sOUT: 94, sWS: 96}
    for b, s in src.items():
        a(f"s_mov_b64 s[{b}:{b+1}], s[{s}:{s+1}]")
    wsb = [int(k[4:], 0) for k in opt if k.startswith("wsb:")]
    if wsb:
        a(f"s_cselect_b32 s{sT0}, 1, 0\ns_add_u32 s{sWS}, s{sWS}, {wsb[0]}\ns_addc_u32 s{sWS+1}, s{sWS+1}, 0\ns_cmp_eq_u32 s{sT0}, 1")
    a(f"s_load_dword s{sNON}, s[{sWS}:{sWS+1}], {NONCE_OFF}")
    stamp(0)
    a("s_cbranch_scc1 L_role_L")
    if not opt.get("noprio"): a("s_setprio 1")
    BX, BW = 4, 6
    FS0, FS1, ACC, CS, ONES, B1R = 104, 144, 184, 248, 100, 84
    SWT, SW, KR, VR_, WPK, KU, U, PK = 144, 24, 28, 40, 48, 56, 80, 56
    a(f"""
    v_mul_u32_u24 v23, 1280, v21
    v_lshl_add_u32 v23, v22, 4, v23
    v_cmp_gt_u32 vcc, 24, v0
    v_cndmask_b32 v17, v20, v23, vcc
    v_lshlrev_b32 v14, 4, v16
    s_mul_i32 s{sXO}, s{sW}, 5120
    s_mul_i32 s{sL}, s{sW}, {16*1280}
    s_mov_b32 s{sC}, 0
L_stg:
    """)
    tile_base(sM0, sC)
    a(f"""
    s_add_u32 s{sM0}, s{sM0}, s{sXO}
    s_add_u32 s{sT0}, s{sTAU}, s{sC}
    s_and_b32 s{sT1}, s{sT0}, 31
    s_mul_i32 s{sT1}, s{sT1}, {64*1280}
    s_add_u32 s{sT1}, s{sT1}, s{sL}
    s_cmp_eq_u32 s{sT1}, 0
    s_cselect_b32 s{sT3}, 3840, 0
    s_lshr_b32 s{sT0}, s{sT0}, 5
    s_lshl_b32 s{sT2}, s{sT0}, 7
    s_add_u32 s{sT1}, s{sT1}, s{sT2}
    v_subrev_u32 v18, s{sT3}, v23
    v_cmp_gt_i32 vcc, 0, v18
    s_add_u32 s{sT2}, s{sT1}, s{sT3}
    s_sub_u32 s{sT2}, s{sT2}, 3840
    v_cndmask_b32 v18, v18, v20, vcc
    s_mov_b32 m0, s{sM0}
    s_lshl_b32 s{sT0}, s{sT0}, 9
    buffer_load_dwordx4 v18, {srd(sK)}, s{sT2} offen lds
    s_add_u32 s{sT2}, s{sT1}, {10240-3840}
    s_add_u32 m0, s{sM0}, 1024
    s_add_u32 s{sT3}, s{sT1}, {20480-3840}
    buffer_load_dwordx4 v23, {srd(sK)}, s{sT2} offen lds
    s_add_u32 m0, s{sM0}, 2048
    s_add_u32 s{sT2}, s{sT1}, 10240
    buffer_load_dwordx4 v17, {srd(sK)}, s{sT3} offen lds
    s_add_u32 m0, s{sM0}, 3072
    s_add_u32 s{sC}, s{sC}, 1
    buffer_load_dwordx4 v23, {srd(sV)}, s{sT1} offen lds
    s_add_u32 m0, s{sM0}, 4096
    s_cmp_eq_u32 s{sC}, 2
    buffer_load_dwordx4 v23, {srd(sV)}, s{sT2} offen lds
    s_cbranch_scc1 L_stg_b
    s_cmp_eq_u32 s{sC}, 3
    s_cbranch_scc1 L_stg_c
    buffer_load_dwordx4 {vr(SWT,4)}, v14, {srd(sSHK)}, s{sT0} offen
    s_cmp_eq_u32 s{sNT}, 1
    s_cbranch_scc1 L_stg_done
    s_branch L_stg
L_stg_b:
    buffer_load_dwordx4 {vr(SWT+4,4)}, v14, {srd(sSHK)}, s{sT0} offen
    s_branch L_stg
L_stg_c:
    buffer_load_dwordx4 {vr(SWT+8,4)}, v14, {srd(sSHK)}, s{sT0} offen
L_stg_done:
    v_and_b32 v21, 7, v1
    v_xor_b32 v21, v21, v2
    v_lshlrev_b32 v21, 4, v21
    v_lshl_add_u32 v21, v1, 7, v21
    s_lshl_b32 s{sT0}, s{sW}, 12
    v_add_u32 v{BX}, s{sT0}, v21
    v_xor_b32 v{BX+1}, 64, v{BX}
    ; w read bases: row = 8g + i ; slot tile T holds physical tile T ^ 2w, stored at position tile ^ f, f = i | (g&1)<<2
    v_lshrrev_b32 v21, 2, v0
    v_and_b32 v22, 7, v21
    s_lshl_b32 s{sT0}, s{sW}, 1
    v_xor_b32 v22, s{sT0}, v22
    v_lshlrev_b32 v22, 5, v22
    v_and_b32 v21, 3, v21
    v_lshl_add_u32 v21, v2, 3, v21
    v_lshl_add_u32 v22, v21, 8, v22
    v_and_b32 v21, 3, v0
    v_lshl_add_u32 v22, v21, 3, v22
    v_add_u32 v{BW}, {WP_O}, v22
    v_and_b32 v14, 1, v15
    v_lshlrev_b32 v14, 10, v14
    v_lshl_add_u32 v14, v16, 2, v14
    v_add_u32 v14, s{sXO}, v14
    v_sub_u32 v17, 7, v15
    v_xor_b32 v17, v17, v16
    v_and_b32 v17, 7, v17
    v_lshlrev_b32 v17, 4, v17
    v_lshl_add_u32 v17, v16, 8, v17
    """)
    for T in range(1, 8): a(f"v_xor_b32 v{BW+T}, {32*T}, v{BW}")
    for r in range(ACC, ACC+72): a(f"v_mov_b32 v{r}, 0")
    for r in range(4): a(f"v_mov_b32 v{ONES+r}, 0x3f803f80")
    a(f"s_mov_b32 s{sC}, 0\ns_waitcnt vmcnt(0)")
    stamp(1)
    a("L_kv:")
    tile_base(sM0, sC)
    a(f"v_add_u32 v21, s{sM0}, v14\nv_add_u32 v22, 1024, v21\nv_add_u32 v23, 3072, v21")
    for q in range(4): a(f"ds_read2_b32 {vr(KR+2*q,2)}, v21 offset0:{64*q} offset1:{64*q+32}")
    a(f"ds_read2_b32 {vr(KR+8,2)}, v22 offset0:0 offset1:32\nds_read_b32 v{KR+10}, v22 offset:256")
    for q in range(4): a(f"ds_read2_b32 {vr(VR_+2*q,2)}, v23 offset0:{64*q} offset1:{64*q+32}")
    for j in range(4):
        for c in range(2):
            r = SWT + 2*c + (j >> 1)
            if j & 1: a(f"v_and_b32 v{WPK+2*j+c}, 0xffff0000, v{r}")
            else: a(f"v_lshlrev_b32 v{WPK+2*j+c}, 16, v{r}")
    a(f"v_add_u32 v21, s{sM0}, v17\ns_waitcnt lgkmcnt(4)")
    unp(KU, KR, 11)
    for s in range(8): a(f"v_pk_mul_f32 {vr(U+2*s,2)}, {vr(KU+2*(s+3),2)}, {vr(WPK,2)}")
    for j in range(1, 4):
        for s in range(8): a(f"v_pk_fma_f32 {vr(U+2*s,2)}, {vr(KU+2*(s+3-j),2)}, {vr(WPK+2*j,2)}, {vr(U+2*s,2)}")
    a("s_waitcnt lgkmcnt(0)")
    unp(KU+8, VR_, 8)
    for s in range(8): a(f"v_pk_mul_f32 {vr(U+2*s,2)}, {vr(U+2*s,2)}, {vr(KU+8+2*s,2)}")
    for c in range(2):
        for d in range(4):
            a(f"v_cvt_pk_bf16_f32 v{PK+4*c+d}, v{U+2*(7-2*d)+c}, v{U+2*(6-2*d)+c}")
        a(f"ds_write_b128 v21, {vr(PK+4*c,4)} offset:{OST+128*c}")
    a(f"""
    s_add_u32 s{sC}, s{sC}, 1
    s_cmp_ge_u32 s{sC}, s{sNT}
    s_cbranch_scc1 L_kv_done
    """)
    for r in range(8): a(f"v_mov_b32 v{SWT+r}, v{SWT+4+r}")
    a(f"""
    s_branch L_kv
L_kv_done:
    s_lshl_b32 s{sT0}, s{sCJ}, 8
    v_lshlrev_b32 v17, 3, v2
    s_cmp_eq_u32 s{sNT}, 1
    s_waitcnt lgkmcnt(0)
    s_barrier
    s_cbranch_scc1 L_c_busy
    s_barrier
    {nonce}
    """)
    lds_inc(XCNT)
    lds_inc(GW, perwave=True, wait=False)
    a("s_branch L_g2_pro\nL_c_busy:")
    def reads(sig):
        F = FS1 if sig else FS0
        l = [f"ds_read_b128 {vr(F+4*mt,4)}, v{BX+sig} offset:{2048*mt}" for mt in range(2)]
        for T in range(8):
            for j in range(2):
                l.append(f"ds_read_b64_tr_b16 {vr(F+8+4*T+2*j,2)}, v{BW+T} offset:{8192*sig+1024*j}")
        return l
    r0 = reads(0)
    for x in r0[:12]: a(x)
    for P in range(4):
        a(f"s_xor_b32 s{sT1}, s{sW}, {P}\ns_lshl_b32 s{sT1}, s{sT1}, 6\ns_add_u32 s{sT1}, s{sT1}, s{sT0}")
        for h in range(2): a(f"buffer_load_dwordx2 {vr(B1R+4*P+2*h,2)}, v17, {srd(sB1)}, s{sT1} offen offset:{32*h}")
        if P == 0:
            a("s_waitcnt lgkmcnt(4)")
            for x in r0[12:]: a(x)
    a(nonce)
    stamp(2)
    a(f"s_mov_b32 s{sC}, 0\ns_mov_b32 s{sNP}, 1\ns_mov_b32 s{sT0}, {SLOT}\ns_mov_b32 s{sT3}, {SLOT}\ns_mov_b32 s{sT2}, {-2*SLOT}\nL_g1:")
    def step(sig, plan):
        F = FS1 if sig else FS0
        ms = [(vr(ACC+(mt*8+T)*4, 4), vr(F+8+4*T, 4), vr(F+4*mt, 4)) for T in range(8) for mt in range(2)]
        ms += [(vr(CS+4*k, 4), vr(F+8+4*k, 4), vr(ONES, 4)) for k in range(2)]
        for k, (ac, A_, B_) in enumerate(ms):
            if not (opt.get("x_halfmfma") and k & 1): a(f"{MF} {ac}, {A_}, {B_}, {ac}")
            for x in plan[k]: a(x)
    rd1, rd0 = reads(1), reads(0)
    n1 = [2, 1, 1, 1, 2, 1, 1, 1, 2, 1, 1, 1, 2, 1, 0, 0, 0, 0]
    n0 = [0, 0, 0, 0, 2, 2, 2, 1, 1, 1, 1, 1, 1, 1, 1, 1, 1, 2]
    n0[17] = 1; n0[7] = 2
    assert sum(n1) == 18 and sum(n0) == 18
    plan = [[] for _ in range(18)]; issued = 0
    for k in range(18):
        for _ in range(n1[k]): plan[k].append(rd1.pop(0)); issued += 1
        if k in (3, 7, 11):
            plan[k].append(f"s_waitcnt lgkmcnt({min(14, 18 - (k + 7) + issued)})")
    vadd = [f"v_add_u32 v{r}, s{sT0}, v{r}" for r in range(BX, BX+10)]
    for k in (14, 15, 16, 17):
        plan[k] += [vadd.pop(0), vadd.pop(0)]
    plan[17].append("s_waitcnt lgkmcnt(12)")
    a("s_waitcnt lgkmcnt(12)")
    step(0, plan)
    plan = [[] for _ in range(18)]; issued = 0
    plan[0] = [vadd.pop(0), vadd.pop(0)]
    plan[1] = [f"s_add_u32 s{sNP}, s{sNP}, 1", f"s_cmp_eq_u32 s{sNP}, 3"]
    plan[2] = [f"s_cselect_b32 s{sNP}, 0, s{sNP}", f"s_cselect_b32 s{sT0}, s{sT2}, s{sT3}", f"s_cmp_ge_u32 s{sC}, 8"]
    plan[3] = ["s_waitcnt lgkmcnt(0)", "s_cbranch_scc1 L_g1_nobar", "s_barrier", "L_g1_nobar:"]
    for k in range(18):
        for _ in range(n0[k]): plan[k].append(rd0.pop(0))
    plan[15].append(f"s_add_u32 s{sC}, s{sC}, 1")
    plan[16].append(f"s_cmp_lt_u32 s{sC}, 10")
    step(1, plan)
    a("s_cbranch_scc1 L_g1")
    stamp(3)
    CSR, MN, NM = 24, 56, 60
    a(f"""
    s_lshl_b32 s{sT0}, s{sW}, 7
    s_add_u32 s{sT1}, s{sT0}, {XCH}
    v_add_u32 v17, s{sT1}, v0
    v_lshl_add_u32 v16, v2, 4, s{sT0}
    s_mov_b32 exec_lo, 0x10001
    s_mov_b32 exec_hi, 0x10001
    ds_write_b128 v17, {vr(CS,4)}
    ds_write_b128 v17, {vr(CS+4,4)} offset:64
    s_mov_b64 exec, -1
    """)
    lds_inc(XCNT)
    a(f"""
    s_lshl_b32 s{sT0}, s{sRB}, 1
    s_lshr_b32 s{sT1}, s{sW}, 1
    s_add_u32 s{sT0}, s{sT0}, s{sT1}
    s_mul_i32 s{sT0}, s{sT0}, {54*4096}
    s_and_b32 s{sT1}, s{sW}, 1
    s_lshl_b32 s{sT1}, s{sT1}, 11
    s_add_u32 s{sT0}, s{sT0}, s{sT1}
    s_add_u32 s{sXO}, s{sT0}, {H_OFF}
    s_lshl_b32 s{sL}, s{sCJ}, 2
    s_lshl_b32 s{sT0}, s{sW}, 8
    s_add_u32 s{sT0}, s{sT0}, {XST}
    v_lshl_add_u32 v17, v1, 3, s{sT0}
    """)
    for P in range(4): a(f"v_xor_b32 v{8+P}, {128*P}, v16\nv_add_u32 v{8+P}, {XCH}, v{8+P}")
    k0 = -2.0 * math.log2(math.e) * math.sqrt(2.0/math.pi)
    C0, C1, ONE, B1F, TT = 64, 66, 68, 70, 74
    for q in range(2): a(f"v_mov_b32 v{C0+q}, {f2u(k0):#x}\nv_mov_b32 v{C1+q}, {f2u(k0*0.044715):#x}\nv_mov_b32 v{ONE+q}, 1.0")
    lds_wait("C", XCNT, 8)
    for mt in range(2): a(f"ds_read_b64 {vr(MN+2*mt,2)}, v17 offset:{128*mt}")
    for T in range(8): a(f"ds_read_b128 {vr(CSR+4*T,4)}, v{8+(T>>1)} offset:{64*(T&1)}")
    a(f"""
    s_lshl_b32 s{sT0}, s{sRB}, 10
    s_lshl_b32 s{sT1}, s{sW}, 8
    s_add_u32 s{sT0}, s{sT0}, s{sT1}
    s_add_u32 s{sT0}, s{sT0}, {ST_OFF}
    s_cmp_eq_u32 s{sCJ}, 0
    s_cselect_b32 s{sT0}, s{sT0}, {OOB}
    v_lshlrev_b32 v17, 3, v0
    s_waitcnt vmcnt(0) lgkmcnt(8)
    s_mov_b64 exec, 0xffff
    buffer_store_dwordx2 {vr(MN,2)}, v17, {srd(sWS)}, s{sT0} offen sc0 sc1
    buffer_store_dwordx2 {vr(MN+2,2)}, v17, {srd(sWS)}, s{sT0} offen offset:128 sc0 sc1
    s_mov_b64 exec, -1
    v_mul_f32 v{NM}, -v{MN}, v{MN+1}
    v_mul_f32 v{NM+2}, -v{MN+2}, v{MN+3}
    v_mov_b32 v{MN}, v{MN+1}
    v_mov_b32 v{MN+2}, v{MN+3}
    v_mov_b32 v{NM+1}, v{NM}
    v_mov_b32 v{NM+3}, v{NM+2}
    s_waitcnt lgkmcnt(0)
    """)
    stamp(4)
    HP = 104
    for T in range(8):
        if T & 1:
            a(f"""
    s_xor_b32 s{sT1}, s{sW}, {T>>1}
    s_add_u32 s{sT1}, s{sT1}, s{sL}
    s_lshl_b32 s{sT2}, s{sT1}, 12
    s_add_u32 s{sT2}, s{sT2}, s{sXO}
    s_cmp_lt_u32 s{sT1}, 54
    s_cselect_b32 s{sT2}, s{sT2}, {OOB}
    """)
        unp(B1F, B1R + 2*T)
        for mt in range(2):
            ac = ACC + (mt*8+T)*4
            for h in range(2):
                a(f"v_pk_fma_f32 {vr(TT+2*h,2)}, {vr(CSR+4*T+2*h,2)}, {vr(NM+2*mt,2)}, {vr(B1F+2*h,2)}")
            for h in range(2):
                a(f"v_pk_fma_f32 {vr(ac+2*h,2)}, {vr(ac+2*h,2)}, {vr(MN+2*mt,2)}, {vr(TT+2*h,2)}")
            for h in range(2): a(f"v_pk_mul_f32 {vr(TT+2*h,2)}, {vr(ac+2*h,2)}, {vr(ac+2*h,2)}")
            for h in range(2): a(f"v_pk_fma_f32 {vr(TT+2*h,2)}, {vr(TT+2*h,2)}, {vr(C1,2)}, {vr(C0,2)}")
            for h in range(2): a(f"v_pk_mul_f32 {vr(TT+2*h,2)}, {vr(TT+2*h,2)}, {vr(ac+2*h,2)}")
            for r in range(4): a(f"v_exp_f32 v{TT+r}, v{TT+r}")
            for h in range(2): a(f"v_pk_add_f32 {vr(TT+2*h,2)}, {vr(TT+2*h,2)}, {vr(ONE,2)}")
            for r in range(4): a(f"v_rcp_f32 v{TT+r}, v{TT+r}")
            for h in range(2): a(f"v_pk_mul_f32 {vr(ac+2*h,2)}, {vr(ac+2*h,2)}, {vr(TT+2*h,2)}")
            for h in range(2): a(f"v_cvt_pk_bf16_f32 v{HP+(mt*8+T)*2+h}, v{ac+2*h}, v{ac+2*h+1}")
            if T & 1:
                a(f"buffer_store_dwordx4 {vr(HP+(mt*8+T-1)*2,4)}, v3, {srd(sWS)}, s{sT2} offen offset:{1024*mt} sc0 sc1")
    lds_inc(GW, perwave=True, wait=False)
    a("L_g2_pro:")
    def h_again():
        a(f"s_cmp_eq_u32 s{sNT}, 1\ns_cbranch_scc0 L_noagain")
        for P in range(4):
            a(f"""
    s_xor_b32 s{sT1}, s{sW}, {P}
    s_add_u32 s{sT1}, s{sT1}, s{sC}
    s_lshl_b32 s{sT3}, s{sT1}, 12
    s_add_u32 s{sT3}, s{sT3}, s{sXO}
    s_cmp_lt_u32 s{sT1}, 54
    s_cselect_b32 s{sT3}, s{sT3}, {OOB}
    """)
            for mt in range(2): a(f"buffer_store_dwordx4 {vr(HP+(mt*8+2*P)*2,4)}, v3, {srd(sWS)}, s{sT3} offen offset:{1024*mt}")
        a("L_noagain:")
    if not opt.get("noprio"): a("s_setprio 0")
    stamp(5)
    GA, HF, WR, HD, WD = 20, 100, 148, 3, 5
    a(f"""
    v_lshlrev_b32 v12, 12, v2
    v_lshl_add_u32 v12, v1, 7, v12
    s_lshl_b32 s{sT2}, s{sL}, 12
    s_add_u32 s{sT2}, s{sT2}, s{sXO}
    s_sub_u32 s{sT1}, 54, s{sL}
    v_cmp_gt_u32 vcc, s{sT1}, v2
    v_mov_b32 v13, {OOB}
    v_cndmask_b32 v12, v13, v12, vcc
    s_mov_b32 s{sC}, s{sL}
    s_sub_u32 s{sL}, 3, s{sW}
    s_mul_i32 s{sT0}, s{sNI}, 54
    s_add_u32 s{sT0}, s{sT0}, s{sL}
    s_mul_i32 s{sWO}, s{sT0}, 5120
    s_add_u32 s{sWO}, s{sWO}, {W2T_OFF}
    v_add_u32 v4, 4096, v3
    s_lshl_b32 s{sT0}, s{sRB}, 4
    s_add_u32 s{sT0}, s{sT0}, s{sCJ}
    s_lshl_b32 s{sT0}, s{sT0}, 2
    s_add_u32 s{sT0}, s{sT0}, s{sW}
    s_lshl_b32 s{sT0}, s{sT0}, 7
    s_add_u32 s{sT0}, s{sT0}, {FH_OFF}
    s_cmp_eq_u32 s{sNT}, 1
    s_cselect_b32 s{sT0}, s{sT0}, {OOB}
    s_cselect_b32 s{sT2}, s{sT2}, {OOB}
    """)
    qord = [0, 1, 2, 3, 4, 9, 10, 11, 12, 5, 6, 7, 8, 13]
    wslot = [0, 1, 2, 3, 4, 0, 1, 2, 3, 4, 0, 1, 2, 3]
    def wload(j):
        if j == 13: a(f"s_cmp_ge_u32 s{sW}, 2\ns_cselect_b32 s{sWO}, s{sWO}, {OOB}")
        for t in range(5):
            a(f"buffer_load_dwordx4 {vr(WR+20*wslot[j]+4*t,4)}, v{3 if t<4 else 4}, {srd(sWS)}, s{sWO} offen offset:{1024*(t%4)} sc1")
        if j < 13: a(f"s_add_u32 s{sWO}, s{sWO}, {(5 if j == 4 else 1)*4*5120}")
    a("s_waitcnt vmcnt(0)")
    flag_store(sT0)
    if opt.get("htouch"): a(f"buffer_load_dword v14, v12, {srd(sWS)}, s{sT2} offen sc1")
    if opt.get("hagain"): h_again()
    if not opt.get("x_nofc"):
        lds_inc(FCNT, wait=False)
        lds_wait("F", FCNT, 4)
    lds_wait("A", ACNT, 1, sleep=1)
    for j in range(WD):
        if j >= 2 and opt.get("thr"): a("s_waitcnt vmcnt(5)")
        wload(j)
    a(f"""
    s_mul_i32 s{sT1}, s{sMB}, 54
    s_add_u32 s{sT1}, s{sT1}, s{sL}
    s_lshl_b32 s{sXO}, s{sT1}, 12
    s_add_u32 s{sXO}, s{sXO}, {H_OFF}
    s_lshr_b32 s{sT0}, s{sMB}, 1
    s_lshl_b32 s{sT0}, s{sT0}, 13
    s_and_b32 s{sT1}, s{sMB}, 1
    s_lshl_b32 s{sT1}, s{sT1}, 8
    s_add_u32 s{sT0}, s{sT0}, s{sT1}
    s_add_u32 s{sT0}, s{sT0}, {FH_OFF}
    v_min_u32 v13, 27, v0
    v_lshrrev_b32 v15, 1, v13
    v_and_b32 v13, 1, v13
    v_lshlrev_b32 v13, 7, v13
    v_lshl_add_u32 v13, v15, 9, v13
    s_mul_i32 s{sT1}, s{sW}, 20480
    v_add_u32 v7, s{sT1}, v3
    s_lshl_b32 s{sT2}, s{sMB}, 6
    s_lshl_b32 s{sT1}, s{sW}, 4
    s_add_u32 s{sT2}, s{sT2}, s{sT1}
    s_mul_i32 s{sT2}, s{sT2}, 1280
    s_mul_i32 s{sCJ}, s{sNI}, 160
    s_add_u32 s{sCJ}, s{sCJ}, s{sT2}
    """)
    for j, r in enumerate((5, 6, 12)):
        divmod10(15, 16, 17, 64*j)
        a(f"v_mul_u32_u24 v15, 1280, v15\nv_lshl_add_u32 v{r}, v16, 4, v15")
    for mu in range(4):
        a(f"s_xor_b32 s{sT1}, s{sW}, {mu}\ns_lshl_b32 s{sT1}, s{sT1}, 10\nv_add_u32 v{8+mu}, s{sT1}, v3")
    stamp(6)
    a(f"s_cmp_eq_u32 s{sW}, 0\ns_cbranch_scc0 L_hwait")
    poll("H", [(13, sT0)], sleep=2)
    lds_inc(HCNT, wait=False)
    a("s_branch L_hready\nL_hwait:")
    lds_wait("HC", HCNT, 1, sleep=1)
    a("L_hready:")
    def hload(j):
        l = []
        if j == 13: l.append(f"s_cmp_ge_u32 s{sW}, 2\ns_cselect_b32 s{sXO}, s{sXO}, {OOB}")
        for mu in range(4):
            l.append(f"buffer_load_dwordx4 {vr(HF+16*(j%HD)+4*mu,4)}, v{8+mu}, {srd(sWS)}, s{sXO} offen sc1")
        if j < 13: l.append(f"s_add_u32 s{sXO}, s{sXO}, {16384*(qord[j+1]-qord[j])}")
        return l
    fifo = []
    for j in range(HD):
        for x in hload(j): a(x)
        fifo += [("h", j)] * 4
    stamp(7)
    for j in range(14):
        need = [i for i, e in enumerate(fifo) if e in (("h", j), ("w", j))]
        a(f"s_waitcnt vmcnt({len(fifo)-1-max(need)})" + (" lgkmcnt(0)" if j == 9 else ""))
        if j == 9: lds_inc(GCNT, wait=False)
        if j == 13: a(f"s_cmp_lt_u32 s{sW}, 2\ns_cbranch_scc1 L_g2_done")
        for mu in range(4):
            for t in range(5):
                ac = vr(GA + (mu*5+t)*4, 4)
                a(f"{MF} {ac}, {vr(WR+20*wslot[j]+4*t,4)}, {vr(HF+16*(j%HD)+4*mu,4)}, {'0' if j==0 else ac}")
                if t == 0 and mu > 0 and j + HD < 14:
                    if mu == 1:
                        hl = hload(j + HD)
                        if j + HD == 13: a(hl.pop(0))
                    a(hl.pop(0)); fifo.append(("h", j+HD))
        if j + HD < 14:
            for x in hl: a(x)
            fifo.append(("h", j+HD))
        if 4 <= j < 8:
            if j == 4: lds_wait("W", WW, 1, perwave=True)
            if j == 7: a("s_waitcnt lgkmcnt(10)")
            for t in range(5): a(f"ds_read_b128 {vr(WR+20*wslot[j]+4*t,4)}, v7 offset:{5120*(j-4)+1024*t}")
        elif j < 9:
            wload(j + 5); fifo += [("w", j + 5)] * 5
    a("L_g2_done:")
    stamp(8)
    for mu in range(1, 4):
        a(f"s_xor_b32 s{sT0}, s{sW}, {mu}\ns_mul_i32 s{sT0}, s{sT0}, 15360\ns_add_u32 s{sT0}, s{sT0}, {(mu-1)*5120}\nv_add_u32 v{8+mu}, s{sT0}, v3")
    lds_wait("G", GCNT, 4)
    for mu in range(1, 4):
        for t in range(5): a(f"ds_write_b128 v{8+mu}, {vr(GA+(mu*5+t)*4,4)} offset:{1024*t}")
    a(f"""
    s_mul_i32 s{sT1}, s{sW}, 15360
    v_add_u32 v15, s{sT1}, v3
    s_mul_i32 s{sT0}, s{sW}, 5120
    s_add_u32 s{sT0}, s{sT0}, {RG}
    v_add_u32 v16, s{sT0}, v3
    s_waitcnt lgkmcnt(0)
    s_barrier
    """)
    stamp(9)
    for t in range(5): a(f"ds_read_b128 {vr(GA+80+4*t,4)}, v16 offset:{1024*t}")
    for mu in range(1, 3):
        for t in range(5): a(f"ds_read_b128 {vr(GA+(mu*5+t)*4,4)}, v15 offset:{(mu-1)*5120+1024*t}")
    for k, mu in enumerate((4, 1, 2, 3)):
        a(f"s_waitcnt lgkmcnt({(10, 10, 5, 0)[k]})")
        if k == 0:
            for t in range(5): a(f"ds_read_b128 {vr(GA+(15+t)*4,4)}, v15 offset:{2*5120+1024*t}")
        for t in range(5):
            for h in range(2):
                a(f"v_pk_add_f32 {vr(GA+4*t+2*h,2)}, {vr(GA+4*t+2*h,2)}, {vr(GA+(mu*5+t)*4+2*h,2)}")
    XR = 124
    a(f"v_mul_u32_u24 v16, 160, v1\nv_add_u32 v16, s{sT1}, v16\nv_lshl_add_u32 v17, v2, 4, v16\nv_lshl_add_u32 v16, v2, 3, v16")
    for t in range(5):
        for h in range(2): a(f"v_cvt_pk_bf16_f32 v{XR+2*t+h}, v{GA+4*t+2*h}, v{GA+4*t+2*h+1}")
        if t == 1: a(f"ds_write_b128 v17, {vr(XR,4)}")
        if t == 3: a(f"ds_write_b128 v17, {vr(XR+4,4)} offset:64")
    a(f"""
    ds_write_b64 v16, {vr(XR+8,2)} offset:128
    s_waitcnt lgkmcnt(0)
    ds_read_b128 {vr(XR,4)}, v15
    ds_read_b128 {vr(XR+4,4)}, v15 offset:1024
    ds_read_b128 {vr(XR+8,4)}, v15 offset:2048
    s_waitcnt lgkmcnt(2)
    buffer_store_dwordx4 {vr(XR,4)}, v5, {srd(sOUT)}, s{sCJ} offen
    s_waitcnt lgkmcnt(1)
    buffer_store_dwordx4 {vr(XR+4,4)}, v6, {srd(sOUT)}, s{sCJ} offen
    s_waitcnt lgkmcnt(0)
    s_mov_b32 exec_hi, 0
    buffer_store_dwordx4 {vr(XR+8,4)}, v12, {srd(sOUT)}, s{sCJ} offen
    s_mov_b32 exec_hi, -1
    s_branch L_fin
    """)
    a(f"""
L_role_L:
    s_sub_u32 s{sW}, s{sW}, 4
    v_and_b32 v8, 7, v1
    v_xor_b32 v8, v8, v2
    v_lshlrev_b32 v8, 4, v8
    v_lshl_add_u32 v8, v1, 7, v8
    s_lshl_b32 s{sT0}, s{sW}, 12
    v_add_u32 v8, s{sT0}, v8
    v_xor_b32 v9, 64, v8
    """)
    for r in range(4): a(f"v_mov_b32 v{40+r}, 0x3f803f80")
    for r in list(range(60, 68)) + list(range(112, 120)): a(f"v_mov_b32 v{r}, 0")
    a(f"""
    s_mov_b32 s3, 0
    s_cmp_ge_u32 s{sW}, 2
    s_cbranch_scc1 L_aux
    s_cmp_eq_u32 s{sNT}, 1
    s_cbranch_scc1 L_loader
    s_waitcnt lgkmcnt(0)
    s_barrier
    s_barrier
    ; no GEMM1 tile: pull the filter rows of this channel group into the L2
    s_mul_i32 s{sT0}, s{sX}, {80*4096}
    s_sub_u32 s{sT1}, s{sI}, 28
    s_lshl_b32 s{sT1}, s{sT1}, 1
    s_add_u32 s{sT1}, s{sT1}, s{sW}
    s_mul_i32 s{sT1}, s{sT1}, {10*4096}
    s_add_u32 s{sT0}, s{sT0}, s{sT1}
    v_lshlrev_b32 v21, 7, v0
    """)
    if not opt.get("x_noktouch"):
        for j in range(5): a(f"buffer_load_dword v22, v21, {srd(sSSMK)}, s{sT0} offen\ns_add_u32 s{sT0}, s{sT0}, 8192")
    a(f"""
    s_branch L_g1_over
L_loader:
    s_lshl_b32 s{sT0}, s{sRB}, 7
    s_lshl_b32 s{sT1}, s{sW}, 6
    s_add_u32 s{sT0}, s{sT0}, s{sT1}
    v_xor_b32 v22, v22, v21
    v_add_u32 v21, s{sT0}, v21
    v_mul_u32_u24 v21, 1280, v21
    v_lshl_add_u32 v24, v22, 4, v21
    s_lshl_b32 s{sT0}, s{sCJ}, 8
    s_mul_i32 s{sT1}, s{sW}, {32*3456}
    s_add_u32 s{sT0}, s{sT0}, s{sT1}
    s_cmp_eq_u32 s{sCJ}, 13
    s_cselect_b32 s{sT1}, 8, 16
    v_lshlrev_b32 v21, 1, v2
    v_xor_b32 v21, v21, v1
    v_mul_u32_u24 v22, 3456, v2
    v_add_u32 v22, s{sT0}, v22
    v_lshl_add_u32 v32, v21, 4, v22
    v_cmp_gt_u32 vcc, s{sT1}, v21
    v_xor_b32 v21, 8, v21
    v_add_u32 v22, {8*3456}, v22
    v_cndmask_b32 v32, v20, v32, vcc
    v_lshl_add_u32 v34, v21, 4, v22
    v_cmp_gt_u32 vcc, s{sT1}, v21
    s_mov_b32 s{sLD}, 0
    s_lshl_b32 s{sNP}, s{sW}, 13
    v_cndmask_b32 v34, v20, v34, vcc
    """)
    for j in range(1, 8):
        a(f"v_add_u32 v{24+j}, {10240*j}, v24")
        if j != 2: a(f"v_add_u32 v{32+j}, {3456*(4*j - (8 if j & 2 else 0))}, v{34 if j & 2 else 32}")
    if opt.get("rot"):
        a(f"""
    s_mul_i32 s{sT1}, s{sRB}, 3
    s_add_u32 s{sLD}, s{sCJ}, s{sT1}
    s_mul_i32 s{sT1}, s{sLD}, 26
    s_lshr_b32 s{sT1}, s{sT1}, 8
    s_mul_i32 s{sT1}, s{sT1}, 10
    s_sub_u32 s{sLD}, s{sLD}, s{sT1}
    """)
    def stats_chunk():
        for sg in range(2):
            for mt in range(2): a(f"ds_read_b128 {vr(44+8*sg+4*mt,4)}, v{8+sg} offset:{2048*mt}")
        a(f"""
    s_add_u32 s3, s3, 1
    s_cmp_eq_u32 s3, 3
    s_cselect_b32 s3, 0, s3
    s_mov_b32 s{sT3}, {SLOT}
    s_cselect_b32 s{sT3}, {-2*SLOT}, s{sT3}
    v_add_u32 v8, s{sT3}, v8
    v_add_u32 v9, s{sT3}, v9
    """)
        for sg in range(2):
            a(f"s_waitcnt lgkmcnt({2-2*sg})")
            for mt in range(0 if opt.get("x_nostats") else 2):
                x = vr(44+8*sg+4*mt, 4)
                a(f"{MF} {vr(60+4*mt,4)}, v[40:43], {x}, {vr(60+4*mt,4)}\n{MF} {vr(112+4*mt,4)}, {x}, {x}, {vr(112+4*mt,4)}")
    def ld_body():
        a(f"""
    s_lshl_b32 s{sT0}, s{sLD}, 7
    s_mul_i32 s{sT1}, s{sLD}, {64*3456}
    """)
        if opt.get("x_samechunk"): a(f"s_mov_b32 s{sT0}, 0\ns_mov_b32 s{sT1}, 0")
        for j in range(8):
            if opt.get("x_half") and j >= 4: a("s_nop 0\nbuffer_load_dword v60, off, s[4:7], 0\nbuffer_load_dword v60, off, s[4:7], 0"); continue
            a(f"s_add_u32 m0, s{sNP}, {1024*j}\nbuffer_load_dwordx4 v{24+j}, {srd(sQ)}, s{sT0} offen lds")
            a(f"s_add_u32 m0, s{sNP}, {WP_O+1024*j}\nbuffer_load_dwordx4 v{32+j}, {srd(sW1)}, s{sT1} offen lds")
        a(f"""
    s_add_u32 s{sLD}, s{sLD}, 1
    s_cmp_eq_u32 s{sLD}, 10
    s_cselect_b32 s{sLD}, 0, s{sLD}
    s_add_u32 s{sNP}, s{sNP}, {SLOT}
    s_cmp_ge_u32 s{sNP}, {3*SLOT}
    s_cselect_b32 s{sT0}, {3*SLOT}, 0
    s_sub_u32 s{sNP}, s{sNP}, s{sT0}
    """)
    if opt.get("ldstamps"):
        for c in range(10):
            ld_body()
            if c >= 2: stats_chunk()
            if c >= 1:
                a(f"s_waitcnt vmcnt({16 if c < 9 else 0}) lgkmcnt(0)\ns_barrier")
                stamp(c)
        a("s_branch L_g1_over")
    else:
        a(f"s_mov_b32 s{sC}, 0\nL_ld:")
        ld_body()
        a(f"""
    s_add_u32 s{sC}, s{sC}, 1
    s_cmp_eq_u32 s{sC}, 1
    s_cbranch_scc1 L_ld
    s_cmp_eq_u32 s{sC}, 2
    s_cbranch_scc1 L_ld_nost
    """)
        stats_chunk()
        a(f"""
L_ld_nost:
    s_cmp_eq_u32 s{sC}, 10
    s_cbranch_scc1 L_ld_done
    s_waitcnt vmcnt(16)
    s_barrier
    s_branch L_ld
L_ld_done:
    s_waitcnt vmcnt(0) lgkmcnt(0)
    s_barrier
    s_branch L_g1_over
    """)
    W2R = 72
    a(f"""
L_aux:
    s_and_b32 s{sLD}, s{sW}, 1
    v_mov_b32 v23, {XCH+1536}
    v_lshl_add_u32 v23, v1, 2, v23
    v_mov_b32 v24, 0
    ds_write_b32 v23, v24
    s_lshl_b32 s{sT0}, s{sLD}, 5
    v_add_u32 v21, s{sT0}, v21
    v_lshrrev_b32 v23, 1, v21
    v_xor_b32 v23, v23, v22
    v_and_b32 v23, 7, v23
    v_lshlrev_b32 v23, 4, v23
    v_lshl_add_u32 v12, v21, 7, v23
    v_xor_b32 v13, 64, v12
    v_lshlrev_b32 v4, 12, v21
    v_lshl_add_u32 v4, v22, 4, v4
    v_add_u32 v5, {8*4096}, v4
    v_add_u32 v6, {16*4096}, v4
    v_add_u32 v7, {24*4096}, v4
    """)
    for j in range(5):
        divmod10(22, 23, 21, 64*j)
        a(f"v_mul_u32_u24 v22, 1280, v22\nv_lshl_add_u32 v{104+j}, v23, 4, v22")
    a(f"""
    s_lshl_b32 s{sWO}, s{sLD}, 5
    s_add_u32 s{sWO}, s{sWO}, s{sI}
    s_cmp_eq_u32 s{sNT}, 1
    s_mov_b32 s{sT0}, {2*TILE_ST}
    s_cselect_b32 s{sT0}, {W2ST}, s{sT0}
    s_mul_i32 s{sXO}, s{sLD}, 5120
    s_add_u32 s{sXO}, s{sXO}, s{sT0}
    v_lshrrev_b32 v21, 2, v0                  ; 4g + ((l>>2)&3)
    v_mul_u32_u24 v21, 160, v21
    v_add_u32 v21, s{sXO}, v21
    v_and_b32 v22, 3, v0
    v_lshl_add_u32 v15, v22, 3, v21
    v_lshl_add_u32 v14, v22, 4, v21
    v_add_u32 v11, 4096, v3
    s_mov_b32 s{sL}, 0
    s_waitcnt lgkmcnt(0)
    {nonce}
    s_barrier
L_aux_seg:
    s_cmp_eq_u32 s{sL}, 0
    s_cbranch_scc1 L_hook0
    s_cmp_eq_u32 s{sL}, 3
    s_cbranch_scc1 L_hook3
    s_cmp_eq_u32 s{sL}, 5
    s_cbranch_scc1 L_hook5
L_aux_st:
    s_cmp_eq_u32 s{sNT}, 1
    s_cbranch_scc0 L_aux_nost
    """)
    stats_chunk()
    a(f"""
L_aux_nost:
    s_add_u32 s{sL}, s{sL}, 1
    s_cmp_eq_u32 s{sL}, 3
    s_cbranch_scc1 L_aux_ack
    s_cmp_eq_u32 s{sL}, 8
    s_cbranch_scc1 L_aux_last
    s_cmp_eq_u32 s{sNT}, 1
    s_cbranch_scc0 L_aux_seg
    s_barrier
    s_branch L_aux_seg
L_aux_ack:
    s_waitcnt vmcnt(0)
    s_barrier
    s_branch L_aux_seg
L_hook0:
    s_mov_b32 s{sC}, 0
L_rb:
    """)
    tile_base(sM0, sC)
    a(f"v_add_u32 v21, s{sM0}, v12\nv_add_u32 v22, s{sM0}, v13")
    for q in range(4): a(f"ds_read_b128 {vr(72+4*q,4)}, v{22 if q & 1 else 21} offset:{OST+1024*q}")
    a(f"""
    s_add_u32 s{sT0}, s{sTAU}, s{sC}
    s_and_b32 s{sT1}, s{sT0}, 31
    s_lshr_b32 s{sT0}, s{sT0}, 5
    s_lshl_b32 s{sT0}, s{sT0}, 18
    s_lshl_b32 s{sT1}, s{sT1}, 7
    s_sub_u32 s{sT0}, s{sT0}, s{sT1}
    s_add_u32 s{sT0}, s{sT0}, {KVT_OFF + 1984*2}
    s_add_u32 s{sC}, s{sC}, 1
    s_waitcnt lgkmcnt(0)
    """)
    for q in range(4): a(f"buffer_store_dwordx4 {vr(72+4*q,4)}, v{4+q}, {srd(sWS)}, s{sT0} offen sc0 sc1")
    a(f"""
    s_cmp_lt_u32 s{sC}, s{sNT}
    s_cbranch_scc1 L_rb
    s_branch L_aux_st
L_hook3:
    s_lshl_b32 s{sT0}, s{sTAU}, 7
    s_add_u32 s{sT0}, s{sT0}, {FP_OFF}
    s_cmp_eq_u32 s{sW}, 2
    s_cselect_b32 s{sT0}, s{sT0}, {OOB}
    s_bfm_b32 s{sT1}, s{sNT}, 0
    v_lshlrev_b32 v21, 7, v0
    v_mov_b32 v19, s{sNON}
    s_mul_i32 s{sT2}, s{sWO}, {32*1280}
    s_mul_i32 s{sT3}, s{sX}, 160
    s_add_u32 s{sT2}, s{sT2}, s{sT3}
    s_mov_b32 exec_lo, s{sT1}
    s_mov_b32 exec_hi, 0
    buffer_store_dword v19, v21, {srd(sWS)}, s{sT0} offen sc0 sc1
    s_mov_b64 exec, -1
    """)
    for j in range(5): a(f"s_add_u32 m0, s{sXO}, {1024*j}\nbuffer_load_dwordx4 v{104+j}, {srd(sW2)}, s{sT2} offen lds")
    a(f"""
    s_branch L_aux_st
L_hook5:
    s_mul_i32 s{sT3}, s{sX}, 54
    s_add_u32 s{sT3}, s{sT3}, s{sWO}
    s_mul_i32 s{sT3}, s{sT3}, 5120
    s_add_u32 s{sT3}, s{sT3}, {W2T_OFF}
    s_cmp_ge_u32 s{sWO}, 54
    s_cselect_b32 s{sT2}, {OOB}, s{sT3}
    s_waitcnt vmcnt(0)
    """)
    for t in range(5):
        for j in range(2):
            if t < 4: a(f"ds_read_b64_tr_b16 {vr(W2R+4*t+2*j,2)}, v14 offset:{2560*j + 8*(t&1) + 64*(t>>1)}")
            else: a(f"ds_read_b64_tr_b16 {vr(W2R+4*t+2*j,2)}, v15 offset:{2560*j + 128}")
    a("s_waitcnt lgkmcnt(0)")
    for t in range(5):
        a(f"buffer_store_dwordx4 {vr(W2R+4*t,4)}, v{3 if t<4 else 11}, {srd(sWS)}, s{sT2} offen offset:{1024*(t%4)} sc0 sc1")
    a(f"""
    s_branch L_aux_st
L_aux_last:
    s_lshl_b32 s{sT0}, s{sX}, 5
    s_add_u32 s{sT0}, s{sT0}, s{sI}
    s_lshl_b32 s{sT0}, s{sT0}, 1
    s_add_u32 s{sT0}, s{sT0}, s{sLD}
    s_lshl_b32 s{sT0}, s{sT0}, 7
    s_add_u32 s{sT0}, s{sT0}, {FA_OFF}
    s_cmp_eq_u32 s{sNT}, 1
    s_cbranch_scc0 L_aux_nob8
    s_barrier
L_aux_nob8:
    s_waitcnt vmcnt(0)
    """)
    flag_store(sT0)
    a(f"""
    s_branch L_aux_over
L_g1_over:
    {nonce}
L_aux_over:
    v_and_b32 v12, 31, v0
    v_lshlrev_b32 v12, 7, v12
    s_mul_i32 s{sT0}, s{sI}, 5
    s_lshr_b32 s{sT0}, s{sT0}, 1
    s_mul_i32 s{sCH}, s{sX}, 80
    s_add_u32 s{sCH}, s{sCH}, s{sT0}
    s_and_b32 s{sCNT}, s{sI}, 1
    s_add_u32 s{sCNT}, s{sCNT}, 2
    s_cmp_eq_u32 s{sW}, 3
    s_cbranch_scc1 L_a3
    s_cmp_ge_u32 s{sW}, s{sCNT}
    s_cbranch_scc1 L_adone
    s_add_u32 s{sCH}, s{sCH}, s{sW}
    s_mul_i32 s{sM0}, s{sW}, {CONV_STRIDE}
    s_add_u32 s{sM0}, s{sM0}, {RG}
    s_lshl_b32 s{sT0}, s{sCH}, 12
    s_lshr_b32 s{sL}, s{sCH}, 6
    s_lshl_b32 s{sL}, s{sL}, 12
    s_add_u32 s{sL}, s{sL}, {FP_OFF}
    s_lshl_b32 s{sT1}, s{sCH}, 1
    buffer_load_dword v16, v12, {srd(sWS)}, s{sL} offen sc1
    buffer_load_dwordx2 v[36:37], off, {srd(sSSMK)}, s{sT0}
    buffer_load_ushort v38, off, {srd(sSSMD)}, s{sT1}
    s_branch L_adone
L_a3:
    v_lshlrev_b32 v12, 7, v0
    s_lshl_b32 s{sL}, s{sNI}, 13
    s_add_u32 s{sL}, s{sL}, {FA_OFF}
    s_lshl_b32 s{sT0}, s{sCH}, 1
    v_lshlrev_b32 v14, 1, v0
    buffer_load_dword v16, v12, {srd(sWS)}, s{sL} offen sc1
    buffer_load_ushort v38, v14, {srd(sSSMD)}, s{sT0} offen
L_adone:
    s_cmp_eq_u32 s{sNT}, 1
    s_cbranch_scc0 L_st_done
    {'s_setprio 2' if not opt.get("noprio") else ''}
    s_mov_b32 s{sC}, 0
L_st_tail:
    """)
    stats_chunk()
    a(f"""
    s_add_u32 s{sC}, s{sC}, 1
    s_cmp_lt_u32 s{sC}, 2
    s_cbranch_scc1 L_st_tail
    s_mov_b32 s{sT0}, 0x3acccccd
    s_mov_b32 s{sT1}, 0x3727c5ac
    v_and_b32 v21, 3, v1
    v_lshrrev_b32 v22, 2, v1
    v_lshl_add_u32 v22, v22, 4, v1
    v_lshlrev_b32 v22, 2, v22
    """)
    for r in range(1, 4):
        a(f"v_cmp_eq_u32 vcc, {r}, v21")
        for mt in range(2): a(f"v_cndmask_b32 v{112+4*mt}, v{112+4*mt}, v{112+4*mt+r}, vcc")
    a("ds_bpermute_b32 v41, v22, v112\nds_bpermute_b32 v43, v22, v116")
    a(f"v_mul_f32 v40, s{sT0}, v60\nv_mul_f32 v42, s{sT0}, v64\ns_waitcnt lgkmcnt(0)\nv_mul_f32 v41, s{sT0}, v41\nv_mul_f32 v43, s{sT0}, v43")
    for m in (40, 42): a(f"v_fma_f32 v{m+1}, -v{m}, v{m}, v{m+1}")
    for m in (40, 42): a(f"v_max_f32 v{m+1}, 0, v{m+1}")
    for m in (40, 42): rbf(m+1)
    for m in (40, 42): a(f"v_add_f32 v{m+1}, s{sT1}, v{m+1}")
    for m in (40, 42): rbf(m+1)
    for m in (40, 42): a(f"v_sqrt_f32 v{m+1}, v{m+1}")
    for m in (40, 42): rbf(m)
    for m in (40, 42): rbf(m+1)
    for m in (40, 42): a(f"v_rcp_f32 v{m+1}, v{m+1}")
    a(f"""
    s_lshl_b32 s{sT0}, s{sW}, 8
    s_add_u32 s{sT0}, s{sT0}, {XST}
    v_lshl_add_u32 v21, v1, 3, s{sT0}
    ds_write_b64 v21, v[40:41]
    ds_write_b64 v21, v[42:43] offset:128
L_st_done:
    """)
    lds_inc(XCNT)
    if not opt.get("noprio"): a("s_setprio 0")
    if opt.get("ldstamps"):
        stamp0 = stamp
        stamp = lambda k: stamp0(k) if k == 10 else None
    stamp(1)
    KVR, K0R, DR = 20, 36, 38
    a(f"""
    v_add_u32 v15, 1, v1
    v_and_b32 v17, 3, v15
    v_mul_u32_u24 v17, 4160, v17
    v_and_b32 v15, 28, v15
    v_lshl_add_u32 v17, v15, 1, v17
    v_lshl_add_u32 v5, v2, 4, v17
    v_lshlrev_b32 v15, 5, v1
    s_lshl_b32 s{sT0}, s{sW}, 12
    s_add_u32 s{sT0}, s{sT0}, {ZST}
    v_lshl_add_u32 v8, v2, 3, v15
    v_add_u32 v8, s{sT0}, v8
    v_add_u32 v9, s{sT0}, v3
    v_sub_u32 v15, {16640+480}, v15
    v_lshl_add_u32 v6, v2, 4, v15
    v_lshlrev_b32 v17, 3, v2
    v_sub_u32 v7, v15, v17
    v_add_u32 v7, 24, v7
    s_cmp_eq_u32 s{sW}, 3
    s_cbranch_scc1 L_w3
    s_cmp_ge_u32 s{sW}, s{sCNT}
    s_cbranch_scc1 L_staged
    """)
    a(f"s_lshl_b32 s{sT0}, s{sCH}, 12")
    for cp in range(4):
        a(f"s_add_u32 m0, s{sM0}, {cp*4160+32}\ns_add_u32 s{sT1}, s{sT0}, {2*cp}")
        for j in range(4): a(f"buffer_load_dwordx4 v3, {srd(sSSMK)}, s{sT1} offen offset:{1024*j} lds")
    poll("K", [(12, sL)], pre=18)
    a(f"s_lshl_b32 s{sT1}, s{sCH}, 12\ns_add_u32 s{sT1}, s{sT1}, {KVT_OFF}")
    for j in range(4): a(f"buffer_load_dwordx4 {vr(KVR+4*j,4)}, v3, {srd(sWS)}, s{sT1} offen offset:{1024*j} sc1")
    a(f"""
    s_add_u32 s{sT0}, s{sM0}, 16640
    v_add_u32 v15, s{sT0}, v3
    v_add_u32 v5, s{sM0}, v5
    v_add_u32 v6, s{sM0}, v6
    v_add_u32 v7, s{sM0}, v7
    v_mov_b32 v40, 0
    v_mov_b32 v41, 0
    v_mov_b32 v42, 0
    v_mov_b32 v43, 0
    s_mov_b64 exec, 0x3fffffff
    ds_write_b128 v15, v[40:43] offset:4096
    s_mov_b64 exec, -1
    v_lshrrev_b32 v16, 1, v0
    v_lshlrev_b32 v17, 4, v16
    v_sub_u32 v17, 48, v17
    v_and_b32 v18, 1, v0
    v_mul_u32_u24 v16, 4160, v16
    v_lshl_add_u32 v16, v18, 4, v16
    v_add_u32 v16, s{sM0}, v16
    v_cmp_eq_u32 vcc, 1, v18
    s_waitcnt vmcnt(20)
    v_lshlrev_b64 v[42:43], v17, {vr(K0R,2)}
    v_lshlrev_b64 v[42:43], 16, v[42:43]
    v_lshlrev_b32 v{DR}, 16, v{DR}
    v_cndmask_b32 v42, 0, v42, vcc
    v_cndmask_b32 v43, 0, v43, vcc
    v_mov_b32 v{DR+1}, v{DR}
    s_mov_b64 exec, 0xff
    ds_write_b128 v16, v[40:43]
    s_mov_b64 exec, -1
    s_waitcnt vmcnt(0)
    """)
    for j in range(4): a(f"ds_write_b128 v15, {vr(KVR+4*j,4)} offset:{1024*j}")
    lds_inc(SCNT)
    a(f"""
    s_branch L_staged
L_w3:
    """)
    poll("P", [(12, sL)], pre=1)
    a(f"s_waitcnt vmcnt(0)\nv_lshlrev_b32 v{DR}, 16, v{DR}")
    lds_inc(ACNT, wait=False)
    a(f"""
    s_cmp_lg_u32 s2, 0
    s_cbranch_scc1 L_staged
    v_lshlrev_b32 v13, 8, v0
    s_mov_b32 s{sT0}, {FA_OFF}
    s_mov_b32 s{sT1}, {FA_OFF+16384}
    s_mov_b32 s{sT2}, {FA_OFF+32768}
    s_mov_b32 s{sT3}, {FA_OFF+49152}
    """)
    poll("N", [(13, sT0), (13, sT1), (13, sT2), (13, sT3)])
    a(f"s_mov_b32 s{sT0}, {NONCE_OFF}")
    flag_store(sT0)
    a("L_staged:")
    stamp(2)
    lds_wait("A2", ACNT, 1, sleep=1)
    a(f"""
    s_mul_i32 s{sWO}, s{sNI}, 54
    s_sub_u32 s{sWO}, s{sWO}, s{sW}
    s_add_u32 s{sWO}, s{sWO}, 23
    s_mul_i32 s{sWO}, s{sWO}, 5120
    s_add_u32 s{sWO}, s{sWO}, {W2T_OFF}
    s_mul_i32 s{sXO}, s{sW}, 20480
    v_add_u32 v4, 4096, v3
    s_mov_b32 s{sNP}, 0
    """)
    if not opt.get("xburst"): a(f"s_cmp_lt_u32 s{sW}, s{sCNT}\ns_cbranch_scc1 L_convX")
    w2dma = [f"s_mov_b32 m0, s{sXO}", f"s_add_u32 s{sXO}, s{sXO}, 4096"]
    w2dma += [f"buffer_load_dwordx4 v3, {srd(sWS)}, s{sWO} offen offset:{1024*t} sc1 lds" for t in range(4)]
    w2dma += [f"s_mov_b32 m0, s{sXO}", f"s_add_u32 s{sXO}, s{sXO}, 1024", f"buffer_load_dwordx4 v4, {srd(sWS)}, s{sWO} offen sc1 lds", f"s_add_u32 s{sWO}, s{sWO}, 20480"]
    lds_wait("X", XCNT, 8, sleep=1)
    for j in range(4):
        for x in w2dma: a(x)
    stamp(3)
    if opt.get("xburst"): a(f"s_cmp_lt_u32 s{sW}, s{sCNT}\ns_cbranch_scc1 L_convX")
    a(f"s_cmp_eq_u32 s{sW}, 3\ns_cbranch_scc1 L_convY\ns_waitcnt vmcnt(0)")
    lds_inc(WW, perwave=True, wait=False)
    a("s_branch L_conv_done\nL_convX:")
    stamp(3)
    CA, CB, CACC, UR = (40, 104), (72, 136), 168, 200
    def creads(par, off, ai, bi):
        A_, B_ = CA[par], CB[par]
        l = []
        for i, ip in zip(ai, bi):
            l.append(f"ds_read_b128 {vr(B_+4*ip,4)}, v11 offset:{off+512*ip}")
            l.append(f"ds_read_b64 {vr(A_+4*i,2)}, v10 offset:{off+512*i}")
            l.append(f"ds_read_b64 {vr(A_+4*i+2,2)}, v10 offset:{off+512*i+8}")
        return l
    def conv_first(ai, bi):
        first = creads(0, 0, ai, bi)
        for x in first[:12]: a(x)
        if len(first) > 12: a("s_waitcnt lgkmcnt(3)")
        for x in first[12:]: a(x)
    def conv_loop(tag, ds, ai, bi):
        for d in ds:
            for r in range(4): a(f"v_mov_b32 v{CACC+4*(7-d)+r}, 0")
        a(f"s_mov_b32 s{sC}, {3 if opt.get('x_noconv') else 0}\nL_cv{tag}:")
        for par in range(2):
            A_, B_ = CA[par], CB[par]
            nxt = creads(par ^ 1, 64*(par+1), ai, bi); nr = len(nxt)
            oth = []
            if par == 0 and tag == "Y":
                late = [f"s_cmp_eq_u32 s{sC}, 3", f"s_cselect_b32 s{sT2}, {CONV_STRIDE-512}, 0", f"v_add_u32 v10, s{sT2}, v10", f"v_add_u32 v11, s{sT2}, v11"]
            elif par == 1: late = ["v_add_u32 v10, 128, v10", "v_add_u32 v11, 128, v11", f"s_add_u32 s{sC}, s{sC}, 1", f"s_cmp_lt_u32 s{sC}, 4"]
            else: late = []
            if par == 0 and tag == "X" and not opt.get("xburst"): oth = list(w2dma)
            ms = [(ip, ip - d) for ip in range(8) for d in reversed(ds) if ip - d >= 0]
            issued = 0; last = None
            for k, (ip, i) in enumerate(ms):
                if ip != last:
                    a(f"s_waitcnt lgkmcnt({min(14, nr - 3*(list(bi).index(ip)+1) + issued)})"); last = ip
                ac = vr(CACC + 4*(7-(ip-i)), 4)
                a(f"{MF} {ac}, {vr(A_+4*i,4)}, {vr(B_+4*ip,4)}, {ac}")
                for _ in range(1 if tag == "X" else 2):
                    if nxt: a(nxt.pop(0)); issued += 1
                    elif late: a(late.pop(0))
                if oth and k % 2 == 1: a(oth.pop(0))
                elif not nxt and late: a(late.pop(0))
            assert not nxt and not late and not oth, (tag, par, nxt, late, oth)
        if tag == "X":
            a(f"s_cbranch_scc1 L_cvX\ns_waitcnt vmcnt(0) lgkmcnt(0)")
            lds_inc(WW, perwave=True, wait=False)
        else:
            a(f"s_cbranch_scc0 L_cvd{tag}\ns_or_b32 s{sT1}, s{sC}, s{sNP}\ns_cmp_lg_u32 s{sT1}, 2\ns_cbranch_scc1 L_cv{tag}\ns_waitcnt vmcnt(0)\ns_mov_b32 s{sNP}, 8")
            lds_inc(WW, perwave=True, wait=False)
            a(f"s_branch L_cv{tag}\nL_cvd{tag}:\ns_waitcnt lgkmcnt(0)")
    def z_tiles(tiles, ubase, dreg, slot0):
        for k, jt in enumerate(tiles): a(f"ds_read_b64 {vr(UR+2*k,2)}, v{ubase} offset:{512*(7-jt)}")
        a("s_waitcnt lgkmcnt(0)")
        for k, jt in enumerate(tiles):
            ac = CACC + 4*jt; u = UR + 2*k
            a(f"""
    v_and_b32 v212, 0xffff0000, v{u+1}
    v_lshlrev_b32 v213, 16, v{u+1}
    v_and_b32 v214, 0xffff0000, v{u}
    v_lshlrev_b32 v215, 16, v{u}
    v_pk_fma_f32 {vr(ac,2)}, v[212:213], {vr(dreg,2)}, {vr(ac,2)}
    v_pk_fma_f32 {vr(ac+2,2)}, v[214:215], {vr(dreg,2)}, {vr(ac+2,2)}
    v_cvt_pk_bf16_f32 v{u}, v{ac}, v{ac+1}
    v_cvt_pk_bf16_f32 v{u+1}, v{ac+2}, v{ac+3}
    ds_write_b64 v8, {vr(u,2)} offset:{512*(slot0+k)}
    """)
    a("v_mov_b32 v10, v5\nv_mov_b32 v11, v6")
    conv_first(range(8), range(8))
    lds_wait("GX", GW, 1, perwave=True, sleep=1)
    if not opt.get("noprio"): a("s_setprio 2")
    stamp(4)
    conv_loop("X", [0, 1, 2, 3, 7], range(8), range(8))
    stamp(5)
    z_tiles([4, 5, 6, 7, 0], 7, DR, 0)
    a(f"""
    s_lshl_b32 s{sT0}, s{sCH}, 12
    s_add_u32 s{sT0}, s{sT0}, {Z_OFF}
    s_waitcnt lgkmcnt(0)
    """)
    for j in range(3): a(f"ds_read_b128 {vr(220+4*j,4)}, v9 offset:{1024*j}")
    for j in range(2):
        a(f"s_waitcnt lgkmcnt({2-j})\nbuffer_store_dwordx4 {vr(220+4*j,4)}, v3, {srd(sWS)}, s{sT0} offen offset:{2048+1024*j} sc0 sc1")
    a(f"""
    s_waitcnt lgkmcnt(0)
    s_mov_b32 exec_hi, 0
    buffer_store_dwordx4 {vr(228,4)}, v3, {srd(sWS)}, s{sT0} offen sc0 sc1
    s_mov_b32 exec_hi, -1
    s_branch L_conv_sig
L_convY:
    """)
    lds_wait("S", SCNT, f"s{sCNT}", sleep=1)
    a(f"""
    s_mov_b32 s{sLD}, 0
    v_add_u32 v10, {RG}, v5
    v_add_u32 v11, {RG}, v6
    v_add_u32 v12, {RG}, v7
    """)
    conv_first(range(4), range(4, 8))
    lds_wait("GY", GW, 1, perwave=True, sleep=1)
    if not opt.get("noprio"): a("s_setprio 2")
    stamp(4)
    if opt.get("x_noconv"):
        a("s_waitcnt vmcnt(0)"); lds_inc(WW, perwave=True, wait=False)
    a(f"L_cy:\nv_readlane_b32 s{sT0}, v{DR}, s{sLD}")
    conv_loop("Y", [4, 5, 6], range(4), range(4, 8))
    a(f"v_mov_b32 v216, s{sT0}\nv_mov_b32 v217, s{sT0}")
    z_tiles([1, 2, 3], 12, 216, 0)
    a(f"""
    s_add_u32 s{sT0}, s{sCH}, s{sLD}
    s_lshl_b32 s{sT0}, s{sT0}, 12
    s_add_u32 s{sT0}, s{sT0}, {Z_OFF+512}
    v_add_u32 v12, {CONV_STRIDE}, v12
    s_waitcnt lgkmcnt(0)
    ds_read_b128 v[220:223], v9
    ds_read_b128 v[224:227], v9 offset:1024
    s_add_u32 s{sLD}, s{sLD}, 1
    s_cmp_lt_u32 s{sLD}, s{sCNT}
    s_waitcnt lgkmcnt(0)
    buffer_store_dwordx4 v[220:223], v3, {srd(sWS)}, s{sT0} offen sc0 sc1
    s_mov_b32 exec_hi, 0
    buffer_store_dwordx4 v[224:227], v3, {srd(sWS)}, s{sT0} offen offset:1024 sc0 sc1
    s_mov_b32 exec_hi, -1
    s_cbranch_scc1 L_cy
    """)
    stamp(5)
    a(f"""
L_conv_sig:
    {'s_setprio 0' if not opt.get("noprio") else ''}
    s_lshl_b32 s{sT0}, s{sX}, 5
    s_add_u32 s{sT0}, s{sT0}, s{sI}
    s_lshl_b32 s{sT0}, s{sT0}, 7
    s_add_u32 s{sT0}, s{sT0}, {FZ_OFF}
    v_mov_b32 v16, {ZCNT}
    v_mov_b32 v17, 1
    s_waitcnt vmcnt(0)
    s_mov_b64 exec, 1
    ds_add_rtn_u32 v17, v16, v17
    s_waitcnt lgkmcnt(0)
    s_mov_b64 exec, -1
    v_readfirstlane_b32 s{sT1}, v17
    s_cmp_lg_u32 s{sT1}, s{sCNT}
    s_cbranch_scc1 L_conv_done
    """)
    flag_store(sT0)
    a(f"L_conv_done:\ns_add_u32 s{sCNT}, s{sCNT}, 1")
    stamp(6)
    lds_wait("Z", ZCNT, f"s{sCNT}", sleep=2)
    XR, B2R, STR, ZR, ZT, PR = 20, 30, 40, 44, 56, 68
    a(f"""
    s_lshl_b32 s{sT0}, s{sMB}, 6
    s_lshl_b32 s{sT1}, s{sW}, 4
    s_add_u32 s{sL}, s{sT0}, s{sT1}
    s_mul_i32 s{sT0}, s{sL}, 1280
    s_mul_i32 s{sT2}, s{sNI}, 160
    s_add_u32 s{sT0}, s{sT0}, s{sT2}
    s_mul_i32 s{sM0}, s{sW}, 5120
    s_add_u32 s{sM0}, s{sM0}, {RG}
    """)
    for j in range(3):
        divmod10(22, 23, 21, 64*j)
        a(f"""
    v_mul_u32_u24 v22, 1280, v22
    v_lshl_add_u32 v22, v23, 4, v22
    s_add_u32 m0, s{sM0}, {2560+1024*j}
    {'s_mov_b32 exec_hi, 0' if j == 2 else ''}
    buffer_load_dwordx4 v22, {srd(sQ)}, s{sT0} offen lds
    """)
    a(f"""
    s_mov_b32 exec_hi, -1
    v_lshlrev_b32 v17, 4, v2
    v_lshlrev_b32 v18, 3, v2
    v_lshlrev_b32 v12, 3, v1
    s_lshl_b32 s{sT1}, s{sL}, 3
    s_add_u32 s{sT1}, s{sT1}, {ST_OFF}
    buffer_load_dwordx4 {vr(B2R,4)}, v17, {srd(sB2)}, s{sT2} offen
    buffer_load_dwordx4 {vr(B2R+4,4)}, v17, {srd(sB2)}, s{sT2} offen offset:64
    buffer_load_dwordx2 {vr(B2R+8,2)}, v18, {srd(sB2)}, s{sT2} offen offset:128
    s_lshl_b32 s{sT0}, s{sNI}, 12
    s_add_u32 s{sT0}, s{sT0}, {FZ_OFF}
    v_and_b32 v14, 31, v0
    v_lshlrev_b32 v14, 7, v14
    """)
    lds_wait("H", HCNT, 1, sleep=2)
    a(f"buffer_load_dwordx2 {vr(STR,2)}, v12, {srd(sWS)}, s{sT1} offen sc1")
    ZS2 = RG + 20480
    a(f"""
    v_add_u32 v15, s{sM0}, v3
    v_mul_u32_u24 v16, 160, v1
    v_add_u32 v16, s{sM0}, v16
    v_lshl_add_u32 v17, v2, 4, v16
    v_lshl_add_u32 v16, v2, 3, v16
    s_waitcnt vmcnt(0)
    ds_read_b128 {vr(XR,4)}, v17 offset:2560
    ds_read_b128 {vr(XR+4,4)}, v17 offset:{2560+64}
    ds_read_b64 {vr(XR+8,2)}, v16 offset:{2560+128}
    v_lshrrev_b32 v16, 2, v0
    v_and_b32 v17, 3, v0
    v_lshlrev_b32 v17, 3, v17
    v_add_u32 v17, {ZS2}, v17
    v_lshl_add_u32 v13, v16, 7, v17
    v_lshl_add_u32 v12, v2, 9, v13
    v_lshrrev_b32 v16, 3, v0
    v_and_b32 v17, 3, v16
    v_xor_b32 v17, s{sW}, v17
    v_lshl_add_u32 v12, v17, 5, v12
    v_and_b32 v16, 1, v16
    v_and_b32 v17, 2, v2
    v_or_b32 v17, v17, v16
    v_xor_b32 v17, s{sW}, v17
    v_lshl_add_u32 v13, v17, 5, v13
    v_mov_b32 v{STR+2}, v{STR+1}
    v_mov_b32 v{STR+3}, v{STR+1}
    v_mov_b32 v{STR+1}, v{STR}
    s_waitcnt lgkmcnt(0)
    """)
    for t in range(5):
        x = PR + 4*t; xn = 104 + 4*t
        unp(x, XR + 2*t); unp(96, B2R + 2*t)
        for h in range(2): a(f"v_pk_add_f32 {vr(xn+2*h,2)}, {vr(x+2*h,2)}, {vr(STR,2)} neg_lo:[0,1] neg_hi:[0,1]")
        for h in range(2): a(f"v_pk_add_f32 {vr(x+2*h,2)}, {vr(x+2*h,2)}, {vr(96+2*h,2)}")
        for h in range(2): a(f"v_pk_mul_f32 {vr(xn+2*h,2)}, {vr(xn+2*h,2)}, {vr(STR+2,2)}")
    a(f"s_cmp_eq_u32 s{sW}, 0\ns_cbranch_scc0 L_zwait")
    a(f"""
    v_lshrrev_b32 v21, 3, v0
    v_lshrrev_b32 v22, 3, v0
    v_and_b32 v22, 2, v22
    v_and_b32 v23, 7, v0
    v_xor_b32 v23, v23, v22
    v_lshlrev_b32 v21, 12, v21
    v_lshl_add_u32 v21, v23, 4, v21
    v_xor_b32 v22, 64, v21
    s_mul_i32 s{sT2}, s{sNI}, {80*4096}
    s_lshl_b32 s{sT1}, s{sMB}, 7
    s_add_u32 s{sT2}, s{sT2}, s{sT1}
    s_add_u32 s{sT2}, s{sT2}, {Z_OFF}
    """)
    poll("Z", [(14, sT0)], sleep=2)
    stamp(7)
    for q in range(10):
        a(f"s_mov_b32 m0, {ZS2+1024*q}\ns_add_u32 s{sT1}, s{sT2}, {8*4096*q}\nbuffer_load_dwordx4 v{22 if q & 1 else 21}, {srd(sWS)}, s{sT1} offen sc1 lds")
    a("s_waitcnt vmcnt(0)")
    lds_inc(ZRDY, wait=False)
    a("s_branch L_zready\nL_zwait:")
    lds_wait("ZR", ZRDY, 1, sleep=1)
    stamp(7)
    a("L_zready:")
    for t in range(5):
        if t < 4: a(f"ds_read_b64_tr_b16 {vr(ZT+2*t,2)}, v12 offset:{128*(32*(t>>1)+4*(t&1))}")
        else: a(f"ds_read_b64_tr_b16 {vr(ZT+2*t,2)}, v13 offset:{128*64}")
    a("s_waitcnt lgkmcnt(0)")
    for t in range(5):
        x = PR + 4*t; xn = 104 + 4*t
        unp(92, ZT + 2*t)
        for h in range(2): a(f"v_pk_fma_f32 {vr(x+2*h,2)}, {vr(xn+2*h,2)}, {vr(92+2*h,2)}, {vr(x+2*h,2)}")
        a(f"ds_write_b128 v15, {vr(x,4)} offset:{1024*t}")
    a("s_waitcnt lgkmcnt(0)")
    stamp(8)
    a(f"s_barrier\ns_add_u32 s{sW}, s{sW}, 4")
    stamp(9)
    a("L_fin:")
    dbl = [k for k in opt if k.startswith("dbl:")]
    if dbl:
        _, i, j, mult = dbl[0].split(":"); i, j, mult = int(i), int(j), int(mult)
        a("s_waitcnt vmcnt(0)")
        stamp(10)
        a(f"""
    s_waitcnt lgkmcnt(0)
    s_cmp_ge_u32 s{sW}, 4
    s_cbranch_scc1 L_end
    s_cmp_lg_u32 s{sNT}, 1
    s_cbranch_scc1 L_end
    s_sub_u32 s{sT0}, s{sTS+2*j}, s{sTS+2*i}
    s_mul_i32 s{sT0}, s{sT0}, {mult}
    s_min_u32 s{sT0}, s{sT0}, 100000
L_dbl:
    s_memrealtime s[{sT4}:{sT5}]
    s_waitcnt lgkmcnt(0)
    s_sub_u32 s{sT1}, s{sT4}, s{sTS+20}
    s_cmp_lt_u32 s{sT1}, s{sT0}
    s_cbranch_scc1 L_dbl
    """)
    elif stamps:
        a("s_waitcnt vmcnt(0)")
        stamp(10)
        a("s_waitcnt lgkmcnt(0)")
        for k in range(12):
            a(f"v_mov_b32 v{40+k}, s{sTS+2*k}" if k < 11 else f"v_mov_b32 v{40+k}, 0")
        a(f"""
    s_lshl_b32 s{sT0}, s2, 3
    s_add_u32 s{sT0}, s{sT0}, s{sW}
    s_lshl_b32 s{sT0}, s{sT0}, 6
    s_add_u32 s{sT0}, s{sT0}, {TS_OFF}
    s_mov_b64 exec, 1
    buffer_store_dwordx4 v[40:43], off, {srd(sWS)}, s{sT0}
    buffer_store_dwordx4 v[44:47], off, {srd(sWS)}, s{sT0} offset:16
    buffer_store_dwordx4 v[48:51], off, {srd(sWS)}, s{sT0} offset:32
    """)
    a("""
L_end:
    s_endpgm
.section .rodata,"a"
.p2align 6
""")
    def add_nt(srds):
        out = []
        for x in a.l:
            if "buffer_load" in x and any(srd(b) in x for b in srds) and " nt" not in x:
                x = x.replace(" lds", " nt lds") if x.rstrip().endswith(" lds") else x + " nt"
            out.append(x)
        a.l = out
    for fl, txt in (("outsc", " sc0 sc1"), ("outnt", " nt"), ("outsc1", " sc1")):
        if opt.get(fl): a.l = [x + txt if ("buffer_store" in x and srd(sOUT) in x) else x for x in a.l]
    if opt.get("ntkv"): add_nt([sK, sV])
    if opt.get("nt1"): add_nt([sK, sV, sW2, sSSMK])
    if opt.get("ntx"): add_nt([sQ])
    if opt.get("ntw"): add_nt([sW1])
    a(kd(NAME, 256, accum=256))
    return a.text(dopad=True), a

if __name__ == "__main__":
    out = sys.argv[1] if len(sys.argv) > 1 else "k.s"
    opt = {k: 1 for k in sys.argv[2:]}
    t, a = gen(stamps=bool(opt.get("stamps")), opt=opt)
    open(out, "w").write(t)
    print("nops inserted:", a.nops, "lines", len(t.split("\n")))
```

```python
import sys, struct, math
from asm import *

NAME = "parallel_sum__ssm_conv_h3__dense_activation_gelu__prompt_kernel"
NONCE_OFF, FP_OFF, FA_OFF, FZ_OFF, FH_OFF = 0x0, 0x1080000, 0x1090000, 0x10a0000, 0x10b0000
H_OFF, W2T_OFF, KVT_OFF, Z_OFF, ST_OFF, TS_OFF, WS_REC = 0x10000, 0x700000, 0xA00000, 0xD00000, 0x1000000, 0x1010000, 0x1100000
OOB = 0x40000000
LDS_BYTES = 163840
SLOT, WP_O = 32768, 16384
RG = 102400
TILE_ST = 20480
W2ST = RG + TILE_ST
CONV_STRIDE = 21248
ZST_L, ZST_C = RG + 2 * CONV_STRIDE, 4 * CONV_STRIDE
XCH = ZST_L + 10240
XST = XCH + 512
XCNT, ZCNT, HCNT, GCNT, ACNT, ZRDY, FCNT, PCNT, SW, RCNT, GW, WW = [XCH + 1536 + o for o in (0, 4, 8, 12, 16, 20, 24, 28, 32, 40, 48, 64)]
OST = (ZST_L, ZST_C, RG - 8192)
W2ST_I = (ZST_C + 10240, XCH + 1664)
FS_OFF = 0x10d0000
sQ, sK, sV, sSHK, sSSMK, sSSMD, sW1, sB1, sW2, sB2, sOUT, sWS = [4 + 4*i for i in range(12)]
srd = lambda b: f"s[{b}:{b+3}]"
(sW, sX, sI, sRB, sCJ, sNT, sTAU, sMB, sNI, sC, sT0, sT1, sT2, sT3, sCH, sXO, sNON, sSPIN, sL, sCNT) = range(52, 72)
(sWO, sM0, sNP, sLD, sT4, sT5) = range(72, 78)
sTS = 78

def vr(b, n): return f"v[{b}:{b+n-1}]" if n > 1 else f"v{b}"
f2u = lambda x: struct.unpack("<I", struct.pack("<f", x))[0]
MF = "v_mfma_f32_16x16x32_bf16"

def gen(stamps=False, opt=None):
    opt = opt or {}
    a = A()
    def stamp(k):
        if stamps:
            a(f"{'s_memtime' if opt.get('cyc') else 's_memrealtime'} s[{sTS+2*k}:{sTS+2*k+1}]")
    def unp(dst, srcr, n=2):
        for d in range(n):
            a(f"v_lshlrev_b32 v{dst+2*d}, 16, v{srcr+d}\nv_and_b32 v{dst+2*d+1}, 0xffff0000, v{srcr+d}")
    def rbf(r):
        a(f"v_cvt_pk_bf16_f32 v{r}, v{r}, v{r}\nv_and_b32 v{r}, 0xffff0000, v{r}")
    def flag_store(soff):
        a(f"""
    v_mov_b32 v19, s{sNON}
    s_mov_b64 exec, 1
    buffer_store_dword v19, off, {srd(sWS)}, s{soff} sc0 sc1
    s_mov_b64 exec, -1
    """)
    def poll(tag, loads, sleep=4, pre=None):
        if pre is not None:
            a(f"s_waitcnt vmcnt({pre})\nv_cmp_eq_u32 vcc, s{sNON}, v16\ns_cmp_eq_u64 vcc, -1\ns_cbranch_scc1 L_polld{tag}")
        a(f"s_mov_b32 s{sSPIN}, 0\nL_poll{tag}:")
        for k, (vo, so) in enumerate(loads):
            a(f"buffer_load_dword v{16+k}, v{vo}, {srd(sWS)}, s{so} offen sc1")
        a("s_waitcnt vmcnt(0)")
        for k in range(len(loads)):
            if k == 0: a(f"v_cmp_eq_u32 vcc, s{sNON}, v16")
            else: a(f"v_cmp_eq_u32 s[{sT4}:{sT5}], s{sNON}, v{16+k}\ns_and_b64 vcc, vcc, s[{sT4}:{sT5}]")
        a(f"""
    s_cmp_eq_u64 vcc, -1
    s_cbranch_scc1 L_polld{tag}
    s_sleep {sleep}
    s_add_u32 s{sSPIN}, s{sSPIN}, 1
    s_cmp_lt_u32 s{sSPIN}, 0x8000
    s_cbranch_scc1 L_poll{tag}
L_polld{tag}:
    """)
    def lds_addr(addr, perwave):
        if perwave == 2: a(f"s_and_b32 s{sT4}, s{sW}, 1\ns_lshl_b32 s{sT4}, s{sT4}, 2\ns_add_u32 s{sT4}, s{sT4}, {addr}\nv_mov_b32 v18, s{sT4}")
        elif perwave: a(f"s_lshl_b32 s{sT4}, s{sW}, 2\ns_add_u32 s{sT4}, s{sT4}, {addr}\nv_mov_b32 v18, s{sT4}")
        else: a(f"v_mov_b32 v18, {addr}")
    def lds_inc(addr, perwave=False, wait=True):
        lds_addr(addr, perwave)
        a(f"""
    v_mov_b32 v19, 1
    {'s_waitcnt lgkmcnt(0)' if wait else ''}
    s_mov_b64 exec, 1
    ds_add_u32 v18, v19
    s_mov_b64 exec, -1
    """)
    def lds_wait(tag, addr, n, perwave=False, sleep=0):
        lds_addr(addr, perwave)
        a(f"""
    s_mov_b32 s{sSPIN}, 0
L_lw{tag}:
    ds_read_b32 v19, v18
    s_add_u32 s{sSPIN}, s{sSPIN}, 1
    s_waitcnt lgkmcnt(0)
    v_readfirstlane_b32 s{sT4}, v19
    s_cmp_ge_u32 s{sT4}, {n}
    s_cbranch_scc1 L_lwd{tag}
    {'s_sleep %d' % sleep if sleep else ''}
    s_cmp_lt_u32 s{sSPIN}, 0x100000
    s_cbranch_scc1 L_lw{tag}
L_lwd{tag}:
    """)
    def tile_base(dst, t):
        a(f"s_sub_u32 s{dst}, s{t}, 1\ns_mul_i32 s{dst}, s{dst}, {TILE_ST}\ns_cmp_eq_u32 s{t}, 0\ns_cselect_b32 s{dst}, {RG}, s{dst}")
    def out_base(dst, t):
        a(f"s_mul_i32 s{dst}, s{t}, {OST[2]-OST[1]}\ns_add_u32 s{dst}, s{dst}, {2*OST[1]-OST[2]}\ns_cmp_eq_u32 s{t}, 0\ns_cselect_b32 s{dst}, {OST[0]}, s{dst}")
    def divmod10(q, r, tmp, off):
        a(f"v_add_u32 v{tmp}, {off}, v0\nv_mul_u32_u24 v{q}, 6554, v{tmp}\nv_lshrrev_b32 v{q}, 16, v{q}\nv_mul_u32_u24 v{r}, 10, v{q}\nv_sub_u32 v{r}, v{tmp}, v{r}")
    nonce = f"s_mul_i32 s{sNON}, s{sNON}, 1664525\ns_add_u32 s{sNON}, s{sNON}, 1013904223"

    a(f"; @launch {'kernel='+NAME+' ' if not opt.get('final') else ''}grid=(256,1,1) block=(512,1,1) lds={LDS_BYTES}")
    a('.amdgcn_target "amdgcn-amd-amdhsa--gfx950"\n.text')
    a(head(NAME))
    a(f"""
    s_cmp_ge_u32 s2, 256
    s_cbranch_scc1 L_end
    s_load_dwordx16 s[72:87], s[0:1], 0
    s_load_dwordx8 s[88:95], s[0:1], 64
    s_load_dwordx2 s[96:97], s[0:1], 104
    v_lshrrev_b32 v1, 6, v0
    v_lshrrev_b32 v15, 5, v0
    v_and_b32 v16, 31, v0
    v_and_b32 v0, 63, v0
    v_readfirstlane_b32 s{sW}, v1
    v_and_b32 v1, 15, v0
    v_lshrrev_b32 v2, 4, v0
    v_lshlrev_b32 v3, 4, v0
    s_and_b32 s{sX}, s2, 7
    s_lshr_b32 s{sI}, s2, 3
    """)
    sizes = {sQ: 2621440, sK: 2621440, sV: 2621440, sSHK: 5120, sSSMK: 2621440, sSSMD: 1280, sW1: 2211840, sB1: 3456,
             sW2: 2211840, sB2: 1280, sOUT: 2621440, sWS: WS_REC}
    for b, n in sizes.items():
        a(f"s_mov_b32 s{b+2}, {n}\ns_mov_b32 s{b+3}, 0x20000")
    if opt.get("mapP"): a(f"""
    ; GEMM1 tile (i < 28): rb = 2x + i/14, cj = i%14 ; GEMM2 tile: mb = 4x + i/8, ni = i%8
    s_cmp_ge_u32 s{sI}, 14
    s_cselect_b32 s{sT0}, 1, 0
    s_cselect_b32 s{sT1}, 14, 0
    s_sub_u32 s{sCJ}, s{sI}, s{sT1}
    s_lshl_b32 s{sRB}, s{sX}, 1
    s_add_u32 s{sRB}, s{sRB}, s{sT0}
    s_lshl_b32 s{sMB}, s{sX}, 2
    s_lshr_b32 s{sT2}, s{sI}, 3
    s_add_u32 s{sMB}, s{sMB}, s{sT2}
    s_and_b32 s{sNI}, s{sI}, 7
    """)
    else: a(f"""
    ; GEMM1 tile (i < 28): rb = 4(x>>1) + i/7, cj = 7(x&1) + i%7 ; GEMM2 tile: mb = 8(x>>1) + i/4, ni = 4(x&1) + i%4
    s_mul_i32 s{sT2}, s{sI}, 37
    s_lshr_b32 s{sT2}, s{sT2}, 8
    s_lshr_b32 s{sT0}, s{sX}, 1
    s_lshl_b32 s{sRB}, s{sT0}, 2
    s_add_u32 s{sRB}, s{sRB}, s{sT2}
    s_min_u32 s{sRB}, s{sRB}, 15
    s_and_b32 s{sT1}, s{sX}, 1
    s_sub_u32 s{sCJ}, s{sT1}, s{sT2}
    s_mul_i32 s{sCJ}, s{sCJ}, 7
    s_add_u32 s{sCJ}, s{sCJ}, s{sI}
    s_lshl_b32 s{sMB}, s{sT0}, 3
    s_lshr_b32 s{sT2}, s{sI}, 2
    s_add_u32 s{sMB}, s{sMB}, s{sT2}
    s_lshl_b32 s{sNI}, s{sT1}, 2
    s_and_b32 s{sT2}, s{sI}, 3
    s_add_u32 s{sNI}, s{sNI}, s{sT2}
    """)
    a(f"""
    s_mul_i32 s{sTAU}, s{sX}, 28
    s_add_u32 s{sTAU}, s{sTAU}, s{sI}
    s_lshl_b32 s{sT0}, s{sX}, 2
    s_add_u32 s{sT0}, s{sT0}, s{sI}
    s_mul_i32 s{sT0}, s{sT0}, 3
    s_add_u32 s{sT0}, s{sT0}, 140
    s_cmp_lt_u32 s{sI}, 28
    s_cselect_b32 s{sTAU}, s{sTAU}, s{sT0}
    s_cselect_b32 s{sNT}, 1, 3
    v_mov_b32 v20, {OOB}
    v_lshrrev_b32 v21, 3, v0
    v_and_b32 v22, 7, v0
    s_cmp_ge_u32 s{sW}, 4
    s_waitcnt lgkmcnt(0)
    """)
    src = {sQ: 72, sK: 74, sV: 76, sSHK: 78, sSSMK: 80, sSSMD: 82, sW1: 86, sB1: 88, sW2: 90, sB2: 92, sOUT: 94, sWS: 96}
    for b, s in src.items():
        a(f"s_mov_b64 s[{b}:{b+1}], s[{s}:{s+1}]")
    wsb = [int(k[4:], 0) for k in opt if k.startswith("wsb:")]
    if wsb:
        a(f"s_cselect_b32 s{sT0}, 1, 0\ns_add_u32 s{sWS}, s{sWS}, {wsb[0]}\ns_addc_u32 s{sWS+1}, s{sWS+1}, 0\ns_cmp_eq_u32 s{sT0}, 1")
    a(f"s_load_dword s{sNON}, s[{sWS}:{sWS+1}], {NONCE_OFF}")
    stamp(0)
    a("s_cbranch_scc1 L_role_L")
    if not opt.get("noprio"): a("s_setprio 1")
    BX, BW = 4, 6
    FS0, FS1, ACC, CS, ONES, B1R = 104, 144, 184, 248, 100, 84
    SWT, KR, VR_, WPK, KU, U, PK = 144, 28, 40, 48, 56, 80, 56
    a(f"""
    v_mul_u32_u24 v23, 1280, v21
    v_lshl_add_u32 v23, v22, 4, v23
    v_cmp_gt_u32 vcc, 24, v0
    v_cndmask_b32 v17, v20, v23, vcc
    v_lshlrev_b32 v14, 4, v16
    s_mul_i32 s{sXO}, s{sW}, 5120
    s_mul_i32 s{sL}, s{sW}, {16*1280}
    s_mov_b32 s{sC}, 0
L_stg:
    """)
    tile_base(sM0, sC)
    a(f"""
    s_add_u32 s{sM0}, s{sM0}, s{sXO}
    s_add_u32 s{sT0}, s{sTAU}, s{sC}
    s_and_b32 s{sT1}, s{sT0}, 31
    s_mul_i32 s{sT1}, s{sT1}, {64*1280}
    s_add_u32 s{sT1}, s{sT1}, s{sL}
    s_cmp_eq_u32 s{sT1}, 0
    s_cselect_b32 s{sT3}, 3840, 0
    s_lshr_b32 s{sT0}, s{sT0}, 5
    s_lshl_b32 s{sT2}, s{sT0}, 7
    s_add_u32 s{sT1}, s{sT1}, s{sT2}
    v_subrev_u32 v18, s{sT3}, v23
    v_cmp_gt_i32 vcc, 0, v18
    s_add_u32 s{sT2}, s{sT1}, s{sT3}
    s_sub_u32 s{sT2}, s{sT2}, 3840
    v_cndmask_b32 v18, v18, v20, vcc
    s_mov_b32 m0, s{sM0}
    s_lshl_b32 s{sT0}, s{sT0}, 9
    buffer_load_dwordx4 v18, {srd(sK)}, s{sT2} offen lds
    s_add_u32 s{sT2}, s{sT1}, {10240-3840}
    s_add_u32 m0, s{sM0}, 1024
    s_add_u32 s{sT3}, s{sT1}, {20480-3840}
    buffer_load_dwordx4 v23, {srd(sK)}, s{sT2} offen lds
    s_add_u32 m0, s{sM0}, 2048
    s_add_u32 s{sT2}, s{sT1}, 10240
    buffer_load_dwordx4 v17, {srd(sK)}, s{sT3} offen lds
    s_add_u32 m0, s{sM0}, 3072
    s_add_u32 s{sC}, s{sC}, 1
    buffer_load_dwordx4 v23, {srd(sV)}, s{sT1} offen lds
    s_add_u32 m0, s{sM0}, 4096
    s_cmp_eq_u32 s{sC}, 2
    buffer_load_dwordx4 v23, {srd(sV)}, s{sT2} offen lds
    s_cbranch_scc1 L_stg_b
    s_cmp_eq_u32 s{sC}, 3
    s_cbranch_scc1 L_stg_c
    buffer_load_dwordx4 {vr(SWT,4)}, v14, {srd(sSHK)}, s{sT0} offen
    s_cmp_eq_u32 s{sNT}, 1
    s_cbranch_scc1 L_stg_done
    s_branch L_stg
L_stg_b:
    buffer_load_dwordx4 {vr(SWT+4,4)}, v14, {srd(sSHK)}, s{sT0} offen
    s_branch L_stg
L_stg_c:
    buffer_load_dwordx4 {vr(SWT+8,4)}, v14, {srd(sSHK)}, s{sT0} offen
L_stg_done:
    v_and_b32 v21, 7, v1
    v_xor_b32 v21, v21, v2
    v_lshlrev_b32 v21, 4, v21
    v_lshl_add_u32 v21, v1, 7, v21
    s_lshl_b32 s{sT0}, s{sW}, 12
    v_add_u32 v{BX}, s{sT0}, v21
    v_xor_b32 v{BX+1}, 64, v{BX}
    ; w read bases: row = 8g + i ; slot tile T holds physical tile T ^ 2w, stored at position tile ^ f, f = i | (g&1)<<2
    v_lshrrev_b32 v21, 2, v0
    v_and_b32 v22, 7, v21
    s_lshl_b32 s{sT0}, s{sW}, 1
    v_xor_b32 v22, s{sT0}, v22
    v_lshlrev_b32 v22, 5, v22
    v_and_b32 v21, 3, v21
    v_lshl_add_u32 v21, v2, 3, v21
    v_lshl_add_u32 v22, v21, 8, v22
    v_and_b32 v21, 3, v0
    v_lshl_add_u32 v22, v21, 3, v22
    v_add_u32 v{BW}, {WP_O}, v22
    v_and_b32 v14, 1, v15
    v_lshlrev_b32 v14, 10, v14
    v_lshl_add_u32 v14, v16, 2, v14
    v_add_u32 v14, s{sXO}, v14
    v_sub_u32 v17, 7, v15
    v_xor_b32 v17, v17, v16
    v_and_b32 v17, 7, v17
    v_lshlrev_b32 v17, 4, v17
    v_lshl_add_u32 v17, v16, 8, v17
    """)
    for T in range(1, 8): a(f"v_xor_b32 v{BW+T}, {32*T}, v{BW}")
    for r in range(ACC, ACC+72): a(f"v_mov_b32 v{r}, 0")
    for r in range(4): a(f"v_mov_b32 v{ONES+r}, 0x3f803f80")
    a(f"s_mov_b32 s{sC}, 0\ns_waitcnt vmcnt(0)")
    stamp(1)
    a("L_kv:")
    tile_base(sM0, sC)
    a(f"v_add_u32 v21, s{sM0}, v14\nv_add_u32 v22, 1024, v21\nv_add_u32 v23, 3072, v21")
    for q in range(4): a(f"ds_read2_b32 {vr(KR+2*q,2)}, v21 offset0:{64*q} offset1:{64*q+32}")
    a(f"ds_read2_b32 {vr(KR+8,2)}, v22 offset0:0 offset1:32\nds_read_b32 v{KR+10}, v22 offset:256")
    for q in range(4): a(f"ds_read2_b32 {vr(VR_+2*q,2)}, v23 offset0:{64*q} offset1:{64*q+32}")
    for j in range(4):
        for c in range(2):
            r = SWT + 2*c + (j >> 1)
            if j & 1: a(f"v_and_b32 v{WPK+2*j+c}, 0xffff0000, v{r}")
            else: a(f"v_lshlrev_b32 v{WPK+2*j+c}, 16, v{r}")
    out_base(sM0, sC)
    a(f"v_add_u32 v21, s{sM0}, v17\ns_waitcnt lgkmcnt(4)")
    unp(KU, KR, 11)
    for s in range(8): a(f"v_pk_mul_f32 {vr(U+2*s,2)}, {vr(KU+2*(s+3),2)}, {vr(WPK,2)}")
    for j in range(1, 4):
        for s in range(8): a(f"v_pk_fma_f32 {vr(U+2*s,2)}, {vr(KU+2*(s+3-j),2)}, {vr(WPK+2*j,2)}, {vr(U+2*s,2)}")
    a("s_waitcnt lgkmcnt(0)")
    unp(KU+8, VR_, 8)
    for s in range(8): a(f"v_pk_mul_f32 {vr(U+2*s,2)}, {vr(U+2*s,2)}, {vr(KU+8+2*s,2)}")
    for c in range(2):
        for d in range(4):
            a(f"v_cvt_pk_bf16_f32 v{PK+4*c+d}, v{U+2*(7-2*d)+c}, v{U+2*(6-2*d)+c}")
        a(f"ds_write_b128 v21, {vr(PK+4*c,4)} offset:{128*c}")
    a(f"""
    s_add_u32 s{sC}, s{sC}, 1
    s_cmp_ge_u32 s{sC}, s{sNT}
    s_cbranch_scc1 L_kv_done
    """)
    for r in range(8): a(f"v_mov_b32 v{SWT+r}, v{SWT+4+r}")
    a(f"""
    s_branch L_kv
L_kv_done:
    s_lshl_b32 s{sT0}, s{sCJ}, 8
    v_lshlrev_b32 v17, 3, v2
    s_cmp_eq_u32 s{sNT}, 1
    s_waitcnt lgkmcnt(0)
    s_barrier
    s_cbranch_scc1 L_c_busy
    {nonce}
    """)
    lds_inc(GW, perwave=True, wait=False)
    a(f"""
    s_mov_b32 s3, 2
    s_mul_i32 s{sCH}, s{sX}, 80
    s_mul_i32 s{sT0}, s{sI}, 6
    s_add_u32 s{sCH}, s{sCH}, s{sT0}
    s_add_u32 s{sCH}, s{sCH}, s{sW}
    s_sub_u32 s{sCH}, s{sCH}, 112
    s_mul_i32 s{sM0}, s{sW}, {CONV_STRIDE}
    s_mov_b32 s{sT2}, s{sM0}
    s_branch L_cprep
L_c_busy:
    """)
    def reads(sig):
        F = FS1 if sig else FS0
        l = [f"ds_read_b128 {vr(F+4*mt,4)}, v{BX+sig} offset:{2048*mt}" for mt in range(2)]
        for T in range(8):
            for j in range(2):
                l.append(f"ds_read_b64_tr_b16 {vr(F+8+4*T+2*j,2)}, v{BW+T} offset:{8192*sig+1024*j}")
        return l
    r0 = reads(0)
    for x in r0[:12]: a(x)
    for P in range(4):
        a(f"s_xor_b32 s{sT1}, s{sW}, {P}\ns_lshl_b32 s{sT1}, s{sT1}, 6\ns_add_u32 s{sT1}, s{sT1}, s{sT0}")
        for h in range(2): a(f"buffer_load_dwordx2 {vr(B1R+4*P+2*h,2)}, v17, {srd(sB1)}, s{sT1} offen offset:{32*h}")
        if P == 0:
            a("s_waitcnt lgkmcnt(4)")
            for x in r0[12:]: a(x)
    a(nonce)
    stamp(2)
    a(f"s_mov_b32 s{sC}, 0\ns_mov_b32 s{sNP}, 1\ns_mov_b32 s{sT0}, {SLOT}\ns_mov_b32 s{sT3}, {SLOT}\ns_mov_b32 s{sT2}, {-2*SLOT}\nL_g1:")
    def step(sig, plan):
        F = FS1 if sig else FS0
        ms = [(vr(ACC+(mt*8+T)*4, 4), vr(F+8+4*T, 4), vr(F+4*mt, 4)) for T in range(8) for mt in range(2)]
        ms += [(vr(CS+4*k, 4), vr(F+8+4*k, 4), vr(ONES, 4)) for k in range(2)]
        for k, (ac, A_, B_) in enumerate(ms):
            if not (opt.get("x_halfmfma") and k & 1): a(f"{MF} {ac}, {A_}, {B_}, {ac}")
            for x in plan[k]: a(x)
    rd1, rd0 = reads(1), reads(0)
    n1 = [2, 1, 1, 1, 2, 1, 1, 1, 2, 1, 1, 1, 2, 1, 0, 0, 0, 0]
    n0 = [0, 0, 0, 0, 2, 2, 2, 1, 1, 1, 1, 1, 1, 1, 1, 1, 1, 2]
    n0[17] = 1; n0[7] = 2
    assert sum(n1) == 18 and sum(n0) == 18
    plan = [[] for _ in range(18)]; issued = 0
    for k in range(18):
        for _ in range(n1[k]): plan[k].append(rd1.pop(0)); issued += 1
        if k in (3, 7, 11):
            plan[k].append(f"s_waitcnt lgkmcnt({min(14, 18 - (k + 7) + issued)})")
    vadd = [f"v_add_u32 v{r}, s{sT0}, v{r}" for r in range(BX, BX+10)]
    for k in (14, 15, 16, 17):
        plan[k] += [vadd.pop(0), vadd.pop(0)]
    plan[17].append("s_waitcnt lgkmcnt(12)")
    a("s_waitcnt lgkmcnt(12)")
    step(0, plan)
    plan = [[] for _ in range(18)]; issued = 0
    plan[0] = [vadd.pop(0), vadd.pop(0)]
    plan[1] = [f"s_add_u32 s{sNP}, s{sNP}, 1", f"s_cmp_eq_u32 s{sNP}, 3"]
    plan[2] = [f"s_cselect_b32 s{sNP}, 0, s{sNP}", f"s_cselect_b32 s{sT0}, s{sT2}, s{sT3}", f"s_cmp_ge_u32 s{sC}, 8"]
    plan[3] = ["s_waitcnt lgkmcnt(0)", "s_cbranch_scc1 L_g1_nobar", "s_barrier", "L_g1_nobar:"]
    for k in range(18):
        for _ in range(n0[k]): plan[k].append(rd0.pop(0))
    plan[15].append(f"s_add_u32 s{sC}, s{sC}, 1")
    plan[16].append(f"s_cmp_lt_u32 s{sC}, 10")
    step(1, plan)
    a("s_cbranch_scc1 L_g1")
    stamp(3)
    CSR, MN, NM = 24, 56, 60
    a(f"""
    s_lshl_b32 s{sT0}, s{sW}, 8
    s_add_u32 s{sT0}, s{sT0}, {XST}
    v_lshl_add_u32 v17, v1, 3, s{sT0}
    ds_read_b64 {vr(MN,2)}, v17
    ds_read_b64 {vr(MN+2,2)}, v17 offset:128
    s_lshl_b32 s{sT0}, s{sW}, 7
    s_add_u32 s{sT1}, s{sT0}, {XCH}
    v_add_u32 v17, s{sT1}, v0
    v_lshl_add_u32 v16, v2, 4, s{sT0}
    s_mov_b32 exec_lo, 0x10001
    s_mov_b32 exec_hi, 0x10001
    ds_write_b128 v17, {vr(CS,4)}
    ds_write_b128 v17, {vr(CS+4,4)} offset:64
    s_mov_b64 exec, -1
    """)
    k0 = -2.0 * math.log2(math.e) * math.sqrt(2.0/math.pi)
    C0, C1, ONE, B1F, TT = 64, 66, 68, 70, 74
    for q in range(2): a(f"v_mov_b32 v{C0+q}, {f2u(k0):#x}\nv_mov_b32 v{C1+q}, {f2u(k0*0.044715):#x}\nv_mov_b32 v{ONE+q}, 1.0")
    a(f"""
    s_lshl_b32 s{sT0}, s{sRB}, 1
    s_lshr_b32 s{sT1}, s{sW}, 1
    s_add_u32 s{sT0}, s{sT0}, s{sT1}
    s_mul_i32 s{sT0}, s{sT0}, {54*4096}
    s_and_b32 s{sT1}, s{sW}, 1
    s_lshl_b32 s{sT1}, s{sT1}, 11
    s_add_u32 s{sT0}, s{sT0}, s{sT1}
    s_add_u32 s{sXO}, s{sT0}, {H_OFF}
    s_lshl_b32 s{sL}, s{sCJ}, 2
    """)
    lds_inc(XCNT)
    a(f"""
    v_mul_f32 v{NM}, -v{MN}, v{MN+1}
    v_mul_f32 v{NM+2}, -v{MN+2}, v{MN+3}
    v_mov_b32 v{MN}, v{MN+1}
    v_mov_b32 v{MN+2}, v{MN+3}
    v_mov_b32 v{NM+1}, v{NM}
    v_mov_b32 v{NM+3}, v{NM+2}
    s_waitcnt vmcnt(0)
    """)
    stamp(4)
    HP = 104
    for T in range(8):
        if T == 1:
            for P in range(1, 4): a(f"v_xor_b32 v{8+P}, {128*P}, v16\nv_add_u32 v{8+P}, {XCH}, v{8+P}")
            lds_wait("C", XCNT, 4)
            for T2 in range(2, 8): a(f"ds_read_b128 {vr(CSR+4*T2,4)}, v{8+(T2>>1)} offset:{64*(T2&1)}")
        if T == 2: a("s_waitcnt lgkmcnt(0)")
        if T & 1:
            a(f"""
    s_xor_b32 s{sT1}, s{sW}, {T>>1}
    s_add_u32 s{sT1}, s{sT1}, s{sL}
    s_lshl_b32 s{sT2}, s{sT1}, 12
    s_add_u32 s{sT2}, s{sT2}, s{sXO}
    s_cmp_lt_u32 s{sT1}, 54
    s_cselect_b32 s{sT2}, s{sT2}, {OOB}
    """)
        unp(B1F, B1R + 2*T)
        cs = CS + 4*T if T < 2 else CSR + 4*T
        for mt in range(2):
            ac = ACC + (mt*8+T)*4
            for h in range(2):
                a(f"v_pk_fma_f32 {vr(TT+2*h,2)}, {vr(cs+2*h,2)}, {vr(NM+2*mt,2)}, {vr(B1F+2*h,2)}")
            for h in range(2):
                a(f"v_pk_fma_f32 {vr(ac+2*h,2)}, {vr(ac+2*h,2)}, {vr(MN+2*mt,2)}, {vr(TT+2*h,2)}")
            for h in range(2): a(f"v_pk_mul_f32 {vr(TT+2*h,2)}, {vr(ac+2*h,2)}, {vr(ac+2*h,2)}")
            for h in range(2): a(f"v_pk_fma_f32 {vr(TT+2*h,2)}, {vr(TT+2*h,2)}, {vr(C1,2)}, {vr(C0,2)}")
            for h in range(2): a(f"v_pk_mul_f32 {vr(TT+2*h,2)}, {vr(TT+2*h,2)}, {vr(ac+2*h,2)}")
            for r in range(4): a(f"v_exp_f32 v{TT+r}, v{TT+r}")
            for h in range(2): a(f"v_pk_add_f32 {vr(TT+2*h,2)}, {vr(TT+2*h,2)}, {vr(ONE,2)}")
            for r in range(4): a(f"v_rcp_f32 v{TT+r}, v{TT+r}")
            for h in range(2): a(f"v_pk_mul_f32 {vr(ac+2*h,2)}, {vr(ac+2*h,2)}, {vr(TT+2*h,2)}")
            for h in range(2): a(f"v_cvt_pk_bf16_f32 v{HP+(mt*8+T)*2+h}, v{ac+2*h}, v{ac+2*h+1}")
            if T & 1:
                a(f"buffer_store_dwordx4 {vr(HP+(mt*8+T-1)*2,4)}, v3, {srd(sWS)}, s{sT2} offen offset:{1024*mt} sc0 sc1")
    lds_inc(GW, perwave=True, wait=False)
    a("L_g2_pro:")
    def h_again():
        a(f"s_cmp_eq_u32 s{sNT}, 1\ns_cbranch_scc0 L_noagain")
        for P in range(4):
            a(f"""
    s_xor_b32 s{sT1}, s{sW}, {P}
    s_add_u32 s{sT1}, s{sT1}, s{sC}
    s_lshl_b32 s{sT3}, s{sT1}, 12
    s_add_u32 s{sT3}, s{sT3}, s{sXO}
    s_cmp_lt_u32 s{sT1}, 54
    s_cselect_b32 s{sT3}, s{sT3}, {OOB}
    """)
            for mt in range(2): a(f"buffer_store_dwordx4 {vr(HP+(mt*8+2*P)*2,4)}, v3, {srd(sWS)}, s{sT3} offen offset:{1024*mt}")
        a("L_noagain:")
    if not opt.get("noprio"): a("s_setprio 0")
    stamp(5)
    GA, HF, WR, HD, WD = 20, 100, 148, 3, 5
    a(f"""
    v_lshlrev_b32 v12, 12, v2
    v_lshl_add_u32 v12, v1, 7, v12
    s_lshl_b32 s{sT2}, s{sL}, 12
    s_add_u32 s{sT2}, s{sT2}, s{sXO}
    s_sub_u32 s{sT1}, 54, s{sL}
    v_cmp_gt_u32 vcc, s{sT1}, v2
    v_mov_b32 v13, {OOB}
    v_cndmask_b32 v12, v13, v12, vcc
    s_mov_b32 s{sC}, s{sL}
    s_sub_u32 s{sL}, 3, s{sW}
    s_mul_i32 s{sT0}, s{sNI}, 54
    s_add_u32 s{sT0}, s{sT0}, s{sL}
    s_mul_i32 s{sWO}, s{sT0}, 5120
    s_add_u32 s{sWO}, s{sWO}, {W2T_OFF}
    v_add_u32 v4, 4096, v3
    s_lshl_b32 s{sT0}, s{sRB}, 4
    s_add_u32 s{sT0}, s{sT0}, s{sCJ}
    s_lshl_b32 s{sT0}, s{sT0}, 2
    s_add_u32 s{sT0}, s{sT0}, s{sW}
    s_lshl_b32 s{sT0}, s{sT0}, 7
    s_add_u32 s{sT0}, s{sT0}, {FH_OFF}
    s_cmp_eq_u32 s{sNT}, 1
    s_cselect_b32 s{sT0}, s{sT0}, {OOB}
    s_cselect_b32 s{sT2}, s{sT2}, {OOB}
    """)
    wslot = [0, 1, 2, 3, 4, 3, 4, 3, 4, 3, 0, 1, 2, 4]
    def wload(j):
        l = []
        if j == 13: l.append(f"s_cmp_ge_u32 s{sW}, 2\ns_cselect_b32 s{sWO}, s{sWO}, {OOB}")
        for t in range(5):
            l.append(f"buffer_load_dwordx4 {vr(WR+20*wslot[j]+4*t,4)}, v{3 if t<4 else 4}, {srd(sWS)}, s{sWO} offen offset:{1024*(t%4)} sc1")
        if j == 13: l[0:2] = [l[0] + "\n" + l[1]]
        if j < 13: l[-1] += f"\ns_add_u32 s{sWO}, s{sWO}, {(6 if j == 4 else 1)*4*5120}"
        return l
    a("s_waitcnt vmcnt(0)")
    flag_store(sT0)
    if opt.get("htouch"): a(f"buffer_load_dword v14, v12, {srd(sWS)}, s{sT2} offen sc1")
    if opt.get("hagain"): h_again()
    if not opt.get("x_nofc"):
        lds_inc(FCNT, wait=False)
        lds_wait("F", FCNT, 4)
    lds_wait("A", ACNT, 1, sleep=1)
    for j in range(WD):
        for x in wload(j): a(x)
    a(f"""
    s_mul_i32 s{sT1}, s{sMB}, 54
    s_add_u32 s{sT1}, s{sT1}, s{sL}
    s_lshl_b32 s{sXO}, s{sT1}, 12
    s_add_u32 s{sXO}, s{sXO}, {H_OFF}
    s_lshr_b32 s{sT0}, s{sMB}, 1
    s_lshl_b32 s{sT0}, s{sT0}, 13
    s_and_b32 s{sT1}, s{sMB}, 1
    s_lshl_b32 s{sT1}, s{sT1}, 8
    s_add_u32 s{sT0}, s{sT0}, s{sT1}
    s_add_u32 s{sT0}, s{sT0}, {FH_OFF}
    v_min_u32 v13, 27, v0
    v_lshrrev_b32 v15, 1, v13
    v_and_b32 v13, 1, v13
    v_lshlrev_b32 v13, 7, v13
    v_lshl_add_u32 v13, v15, 9, v13
    s_mul_i32 s{sT1}, s{sW}, 25600
    v_add_u32 v7, s{sT1}, v3
    s_lshl_b32 s{sT2}, s{sMB}, 6
    s_lshl_b32 s{sT1}, s{sW}, 4
    s_add_u32 s{sT2}, s{sT2}, s{sT1}
    s_mul_i32 s{sT2}, s{sT2}, 1280
    s_mul_i32 s{sCJ}, s{sNI}, 160
    s_add_u32 s{sCJ}, s{sCJ}, s{sT2}
    """)
    for j, r in enumerate((5, 6, 12)):
        divmod10(15, 16, 17, 64*j)
        a(f"v_mul_u32_u24 v15, 1280, v15\nv_lshl_add_u32 v{r}, v16, 4, v15")
    for mu in range(4):
        a(f"s_xor_b32 s{sT1}, s{sW}, {mu}\ns_lshl_b32 s{sT1}, s{sT1}, 10\nv_add_u32 v{8+mu}, s{sT1}, v3")
    stamp(6)
    a(f"s_cmp_eq_u32 s{sW}, 0\ns_cbranch_scc0 L_hwait")
    poll("H", [(13, sT0)], sleep=2)
    lds_inc(HCNT, wait=False)
    a("s_branch L_hready\nL_hwait:")
    lds_wait("HC", HCNT, 1, sleep=1)
    a("L_hready:")
    def hload(j):
        l = []
        if j == 13: l.append(f"s_cmp_ge_u32 s{sW}, 2\ns_cselect_b32 s{sXO}, s{sXO}, {OOB}")
        for mu in range(4):
            l.append(f"buffer_load_dwordx4 {vr(HF+16*(j%HD)+4*mu,4)}, v{8+mu}, {srd(sWS)}, s{sXO} offen sc1")
        if j < 13: l.append(f"s_add_u32 s{sXO}, s{sXO}, 16384")
        return l
    fifo = []
    for j in range(HD):
        for x in hload(j): a(x)
        fifo += [("h", j)] * 4
    stamp(7)
    wq = []
    for j in range(14):
        need = [i for i, e in enumerate(fifo) if e in (("h", j), ("w", j))]
        a(f"s_waitcnt vmcnt({len(fifo)-1-max(need)})" + (" lgkmcnt(0)" if 5 <= j <= 9 else ""))
        if j == 9: lds_inc(GCNT, wait=False)
        if j == 4: lds_wait("W", WW, 1, perwave=2)
        lr = [f"ds_read_b128 {vr(WR+20*wslot[j+1]+4*t,4)}, v7 offset:{5120*(j-4)+1024*t}" for t in range(5)] if 4 <= j <= 8 else []
        if j in (1, 3, 5, 9): wq += [(x, {1: 10, 3: 11, 5: 12, 9: 13}[j]) for x in wload({1: 10, 3: 11, 5: 12, 9: 13}[j])]
        nw = 3 if j in (1, 3, 5, 9) else 2
        pw = []
        if j == 13:
            for mu in range(1, 4):
                a(f"s_xor_b32 s{sT0}, s{sW}, {mu}\ns_mul_i32 s{sT0}, s{sT0}, 15360\ns_add_u32 s{sT0}, s{sT0}, {(mu-1)*5120}\nv_add_u32 v{8+mu}, s{sT0}, v3")
            pw = [f"ds_write_b128 v{8+mu}, {vr(GA+(mu*5+t)*4,4)} offset:{1024*t}" for mu in range(1, 4) for t in range(5)]
        if j == 12: lds_wait("G", GCNT, 4)
        k = 0
        for mu in ((1, 2, 3, 0) if j == 13 else range(4)):
            for t in range(5):
                ac = vr(GA + (mu*5+t)*4, 4)
                a(f"{MF} {ac}, {vr(WR+20*wslot[j]+4*t,4)}, {vr(HF+16*(j%HD)+4*mu,4)}, {'0' if j==0 else ac}")
                if t == 0 and mu > 0 and j + HD < 14:
                    if mu == 1:
                        hl = hload(j + HD)
                        if j + HD == 13: a(hl.pop(0))
                    a(hl.pop(0)); fifo.append(("h", j+HD))
                if t == 2 and wq and nw > 0 and mu < 3:
                    x, jj = wq.pop(0); a(x); fifo.append(("w", jj)); nw -= 1
                if t in (1, 3) and lr: a(lr.pop(0))
                if pw and k >= 6: a(pw.pop(0))
                k += 1
        if j + HD < 14:
            for x in hl: a(x)
            fifo.append(("h", j+HD))
        assert not lr
    assert not wq
    stamp(8)
    a(pw.pop(0)); assert not pw
    a(f"""
    s_mul_i32 s{sT1}, s{sW}, 15360
    v_add_u32 v15, s{sT1}, v3
    s_mul_i32 s{sT0}, s{sW}, 5120
    s_add_u32 s{sT0}, s{sT0}, {RG}
    v_add_u32 v16, s{sT0}, v3
    s_waitcnt lgkmcnt(0)
    s_barrier
    """)
    stamp(9)
    for t in range(5): a(f"ds_read_b128 {vr(GA+80+4*t,4)}, v16 offset:{1024*t}")
    for mu in range(1, 3):
        for t in range(5): a(f"ds_read_b128 {vr(GA+(mu*5+t)*4,4)}, v15 offset:{(mu-1)*5120+1024*t}")
    for k, mu in enumerate((4, 1, 2, 3)):
        a(f"s_waitcnt lgkmcnt({(10, 10, 5, 0)[k]})")
        if k == 0:
            for t in range(5): a(f"ds_read_b128 {vr(GA+(15+t)*4,4)}, v15 offset:{2*5120+1024*t}")
        for t in range(5):
            for h in range(2):
                a(f"v_pk_add_f32 {vr(GA+4*t+2*h,2)}, {vr(GA+4*t+2*h,2)}, {vr(GA+(mu*5+t)*4+2*h,2)}")
    XR = 124
    a(f"v_mul_u32_u24 v16, 160, v1\nv_add_u32 v16, s{sT1}, v16\nv_lshl_add_u32 v17, v2, 4, v16\nv_lshl_add_u32 v16, v2, 3, v16")
    for t in range(5):
        for h in range(2): a(f"v_cvt_pk_bf16_f32 v{XR+2*t+h}, v{GA+4*t+2*h}, v{GA+4*t+2*h+1}")
        if t == 1: a(f"ds_write_b128 v17, {vr(XR,4)}")
        if t == 3: a(f"ds_write_b128 v17, {vr(XR+4,4)} offset:64")
    a(f"""
    ds_write_b64 v16, {vr(XR+8,2)} offset:128
    s_waitcnt lgkmcnt(0)
    ds_read_b128 {vr(XR,4)}, v15
    ds_read_b128 {vr(XR+4,4)}, v15 offset:1024
    ds_read_b128 {vr(XR+8,4)}, v15 offset:2048
    s_waitcnt lgkmcnt(2)
    buffer_store_dwordx4 {vr(XR,4)}, v5, {srd(sOUT)}, s{sCJ} offen
    s_waitcnt lgkmcnt(1)
    buffer_store_dwordx4 {vr(XR+4,4)}, v6, {srd(sOUT)}, s{sCJ} offen
    s_waitcnt lgkmcnt(0)
    s_mov_b32 exec_hi, 0
    buffer_store_dwordx4 {vr(XR+8,4)}, v12, {srd(sOUT)}, s{sCJ} offen
    s_mov_b32 exec_hi, -1
    s_branch L_fin
    """)
    a(f"""
L_role_L:
    s_sub_u32 s{sW}, s{sW}, 4
    s_cmp_ge_u32 s{sW}, 2
    s_cbranch_scc1 L_aux
    s_cmp_eq_u32 s{sNT}, 1
    s_cbranch_scc1 L_loader
    s_waitcnt lgkmcnt(0)
    {nonce}
    s_barrier
    s_branch L_aux_over
L_loader:
    s_lshl_b32 s{sT0}, s{sRB}, 7
    s_lshl_b32 s{sT1}, s{sW}, 6
    s_add_u32 s{sT0}, s{sT0}, s{sT1}
    v_xor_b32 v22, v22, v21
    v_add_u32 v21, s{sT0}, v21
    v_mul_u32_u24 v21, 1280, v21
    v_lshl_add_u32 v24, v22, 4, v21
    s_lshl_b32 s{sT0}, s{sCJ}, 8
    s_mul_i32 s{sT1}, s{sW}, {32*3456}
    s_add_u32 s{sT0}, s{sT0}, s{sT1}
    s_cmp_eq_u32 s{sCJ}, 13
    s_cselect_b32 s{sT1}, 8, 16
    v_lshlrev_b32 v21, 1, v2
    v_xor_b32 v21, v21, v1
    v_mul_u32_u24 v22, 3456, v2
    v_add_u32 v22, s{sT0}, v22
    v_lshl_add_u32 v32, v21, 4, v22
    v_cmp_gt_u32 vcc, s{sT1}, v21
    v_xor_b32 v21, 8, v21
    v_add_u32 v22, {8*3456}, v22
    v_cndmask_b32 v32, v20, v32, vcc
    v_lshl_add_u32 v34, v21, 4, v22
    v_cmp_gt_u32 vcc, s{sT1}, v21
    s_mov_b32 s{sLD}, 0
    v_lshlrev_b32 v12, 7, v1
    s_lshl_b32 s{sNP}, s{sW}, 13
    v_cndmask_b32 v34, v20, v34, vcc
    """)
    for j in range(1, 8):
        a(f"v_add_u32 v{24+j}, {10240*j}, v24")
        if j != 2: a(f"v_add_u32 v{32+j}, {3456*(4*j - (8 if j & 2 else 0))}, v{34 if j & 2 else 32}")
    rot = [k for k in opt if k.startswith("rot")]
    if rot:
        ra, rb_, rs = ([int(x) for x in rot[0].split(":")[1:]] + [0])[:3] if ":" in rot[0] else (1, 3, 0)
        a(f"""
    s_mul_i32 s{sT1}, s{sRB}, {rb_}
    s_mul_i32 s{sLD}, s{sCJ}, {ra}
    s_add_u32 s{sLD}, s{sLD}, s{sT1}
    s_lshr_b32 s{sLD}, s{sLD}, {rs}
    s_mul_i32 s{sT1}, s{sLD}, 6554
    s_lshr_b32 s{sT1}, s{sT1}, 16
    s_mul_i32 s{sT1}, s{sT1}, 10
    s_sub_u32 s{sLD}, s{sLD}, s{sT1}
    """)
    def ld_body():
        a(f"""
    s_lshl_b32 s{sT0}, s{sLD}, 7
    s_mul_i32 s{sT1}, s{sLD}, {64*3456}
    """)
        if opt.get("x_samechunk"): a(f"s_mov_b32 s{sT0}, 0\ns_mov_b32 s{sT1}, 0")
        for j in range(8):
            if opt.get("x_half") and j >= 4: a("s_nop 0\nbuffer_load_dword v60, off, s[4:7], 0\nbuffer_load_dword v60, off, s[4:7], 0"); continue
            a(f"s_add_u32 m0, s{sNP}, {1024*j}\nbuffer_load_dwordx4 v{24+j}, {srd(sQ)}, s{sT0} offen lds")
            a(f"s_add_u32 m0, s{sNP}, {WP_O+1024*j}\nbuffer_load_dwordx4 v{32+j}, {srd(sW1)}, s{sT1} offen lds")
        a(f"""
    s_add_u32 s{sLD}, s{sLD}, 1
    s_cmp_eq_u32 s{sLD}, 10
    s_cselect_b32 s{sLD}, 0, s{sLD}
    s_add_u32 s{sNP}, s{sNP}, {SLOT}
    s_cmp_ge_u32 s{sNP}, {3*SLOT}
    s_cselect_b32 s{sT0}, {3*SLOT}, 0
    s_sub_u32 s{sNP}, s{sNP}, s{sT0}
    """)
    def st_flag():
        a(f"""
    s_lshl_b32 s{sL}, s{sRB}, 1
    s_add_u32 s{sL}, s{sL}, s{sW}
    s_lshl_b32 s{sXO}, s{sL}, 11
    s_add_u32 s{sXO}, s{sXO}, {FS_OFF}
    buffer_load_dword v16, v12, {srd(sWS)}, s{sXO} offen sc1
    """)
    def st_load():
        a("s_waitcnt lgkmcnt(0)\n" + nonce)
        poll("S", [(12, sXO)], pre=16)
        a(f"""
    s_lshl_b32 s{sL}, s{sL}, 9
    s_add_u32 s{sL}, s{sL}, {ST_OFF}
    v_lshlrev_b32 v21, 3, v0
    buffer_load_dwordx2 v[22:23], v21, {srd(sWS)}, s{sL} offen sc1
    s_lshl_b32 s{sT0}, s{sW}, 9
    s_add_u32 s{sT0}, s{sT0}, {XST}
    v_add_u32 v21, s{sT0}, v21
    s_waitcnt vmcnt(0)
    ds_write_b64 v21, v[22:23]
    """)
    if opt.get("ldstamps"):
        for c in range(10):
            ld_body()
            if c == 8: st_flag()
            if c == 9: st_load()
            if c >= 1:
                a(f"s_waitcnt vmcnt({16 if c < 9 else 0}) lgkmcnt(0)\ns_barrier")
                stamp(c)
        a("s_branch L_aux_over")
    else:
        a(f"s_mov_b32 s{sC}, 0\nL_ld:")
        ld_body()
        a(f"""
    s_add_u32 s{sC}, s{sC}, 1
    s_cmp_eq_u32 s{sC}, 1
    s_cbranch_scc1 L_ld
    s_cmp_eq_u32 s{sC}, 10
    s_cbranch_scc1 L_ld_done
    s_cmp_lg_u32 s{sC}, 9
    s_cbranch_scc1 L_ld_nf
    """)
        st_flag()
        a("""
L_ld_nf:
    s_waitcnt vmcnt(16)
    s_barrier
    s_branch L_ld
L_ld_done:
    """)
        st_load()
        a("""
    s_waitcnt lgkmcnt(0)
    s_barrier
    s_branch L_aux_over
    """)
    W2R = 72
    a(f"""
L_aux:
    s_and_b32 s{sLD}, s{sW}, 1
    v_mov_b32 v23, {XCH+1536}
    v_lshl_add_u32 v23, v16, 2, v23
    v_mov_b32 v24, 0
    ds_write_b32 v23, v24
    s_lshl_b32 s{sT0}, s{sLD}, 5
    v_add_u32 v21, s{sT0}, v21
    v_lshrrev_b32 v23, 1, v21
    v_xor_b32 v23, v23, v22
    v_and_b32 v23, 7, v23
    v_lshlrev_b32 v23, 4, v23
    v_lshl_add_u32 v12, v21, 7, v23
    v_xor_b32 v13, 64, v12
    v_lshlrev_b32 v4, 12, v21
    v_lshl_add_u32 v4, v22, 4, v4
    v_add_u32 v5, {8*4096}, v4
    v_add_u32 v6, {16*4096}, v4
    v_add_u32 v7, {24*4096}, v4
    """)
    for j in range(5):
        divmod10(22, 23, 21, 64*j)
        a(f"v_mul_u32_u24 v22, 1280, v22\nv_lshl_add_u32 v{104+j}, v23, 4, v22")
    a(f"""
    s_lshl_b32 s{sWO}, s{sLD}, 5
    s_add_u32 s{sWO}, s{sWO}, s{sI}
    s_cmp_eq_u32 s{sNT}, 1
    s_mov_b32 s{sT0}, {W2ST_I[0]}
    s_cselect_b32 s{sT0}, {ZST_L if opt.get('w2late') else W2ST}, s{sT0}
    s_mov_b32 s{sT1}, {W2ST_I[1]-W2ST_I[0]}
    s_cselect_b32 s{sT1}, 5120, s{sT1}
    s_mul_i32 s{sXO}, s{sLD}, s{sT1}
    s_add_u32 s{sXO}, s{sXO}, s{sT0}
    v_lshrrev_b32 v21, 2, v0                  ; 4g + ((l>>2)&3)
    v_mul_u32_u24 v21, 160, v21
    v_add_u32 v21, s{sXO}, v21
    v_and_b32 v22, 3, v0
    v_lshl_add_u32 v15, v22, 3, v21
    v_lshl_add_u32 v14, v22, 4, v21
    v_add_u32 v11, 4096, v3
    s_mov_b32 s{sL}, 0
    s_waitcnt lgkmcnt(0)
    {nonce}
    s_barrier
L_aux_seg:
    s_cmp_eq_u32 s{sL}, 0
    s_cbranch_scc1 L_hook0
    s_cmp_eq_u32 s{sL}, 1
    s_cbranch_scc1 L_hook1
    s_cmp_eq_u32 s{sL}, 2
    s_cbranch_scc1 L_hook2
    s_cmp_eq_u32 s{sL}, 4
    s_cbranch_scc1 L_hook4
    s_cmp_eq_u32 s{sL}, 7
    s_cbranch_scc1 L_hook7
L_aux_st:
    s_add_u32 s{sL}, s{sL}, 1
    s_cmp_eq_u32 s{sL}, 8
    s_cbranch_scc1 L_aux_last
    s_cmp_eq_u32 s{sNT}, 1
    s_cbranch_scc0 L_aux_seg
    s_barrier
    s_branch L_aux_seg
L_hook0:
    """)
    if opt.get("ldstamps"): stamp(1)
    a(f"""
    s_lshl_b32 s{sT0}, s{sX}, 5
    s_add_u32 s{sT0}, s{sT0}, s{sI}
    s_lshl_b32 s{sT0}, s{sT0}, 1
    s_add_u32 s{sCH}, s{sT0}, s{sLD}
    s_mul_i32 s{sT0}, s{sCH}, 5120
    v_mul_u32_u24 v21, 1280, v2
    v_lshl_add_u32 v21, v1, 4, v21
    """)
    XS = 24
    for j in range(5): a(f"buffer_load_dwordx4 {vr(XS+4*j,4)}, v21, {srd(sQ)}, s{sT0} offen offset:{256*j}")
    a(f"""
    s_mov_b32 s{sC}, 0
L_rb:
    """)
    out_base(sM0, sC)
    a(f"v_add_u32 v21, s{sM0}, v12\nv_add_u32 v22, s{sM0}, v13")
    for q in range(4): a(f"ds_read_b128 {vr(72+4*q,4)}, v{22 if q & 1 else 21} offset:{1024*q}")
    a(f"""
    s_add_u32 s{sT0}, s{sTAU}, s{sC}
    s_and_b32 s{sT1}, s{sT0}, 31
    s_lshr_b32 s{sT0}, s{sT0}, 5
    s_lshl_b32 s{sT0}, s{sT0}, 18
    s_lshl_b32 s{sT1}, s{sT1}, 7
    s_sub_u32 s{sT0}, s{sT0}, s{sT1}
    s_add_u32 s{sT0}, s{sT0}, {KVT_OFF + 1984*2}
    s_add_u32 s{sC}, s{sC}, 1
    s_waitcnt lgkmcnt(0)
    """)
    for q in range(4): a(f"buffer_store_dwordx4 {vr(72+4*q,4)}, v{4+q}, {srd(sWS)}, s{sT0} offen sc0 sc1")
    a(f"""
    s_cmp_lt_u32 s{sC}, s{sNT}
    s_cbranch_scc1 L_rb
    """)
    if opt.get("ldstamps"): stamp(2)
    a(f"""
    s_branch L_aux_st
L_hook1:
    v_mov_b32 v21, 0x3f803f80
    s_waitcnt vmcnt(4)
    """)
    for j in range(5):
        for d in range(4):
            k = (4*j+d) & 1
            first = 4*j+d < 2
            a(f"v_dot2_f32_bf16 v{44+k}, v{XS+4*j+d}, v21, {'0' if first else 'v%d'%(44+k)}")
            a(f"v_dot2_f32_bf16 v{46+k}, v{XS+4*j+d}, v{XS+4*j+d}, {'0' if first else 'v%d'%(46+k)}")
    a(f"s_mov_b32 s{sT0}, 0x3acccccd\ns_mov_b32 s{sT1}, 0x3727c5ac\ns_nop 1\nv_add_f32 v44, v44, v45\nv_add_f32 v45, v46, v47")
    for st in (1, 2, 4, 8):
        for r in (44, 45): a(f"v_add_f32_dpp v{r}, v{r}, v{r} row_shr:{st} row_mask:0xf bank_mask:0xf bound_ctrl:1")
    a(f"""
    v_mul_f32 v44, s{sT0}, v44
    v_mul_f32 v45, s{sT0}, v45
    v_fma_f32 v45, -v44, v44, v45
    v_max_f32 v45, 0, v45
    """)
    rbf(45); a(f"v_add_f32 v45, s{sT1}, v45"); rbf(45); a("v_sqrt_f32 v45, v45"); rbf(44); rbf(45)
    a(f"""
    v_rcp_f32 v45, v45
    s_lshl_b32 s{sT0}, s{sCH}, 5
    s_add_u32 s{sT0}, s{sT0}, {ST_OFF}
    v_lshlrev_b32 v21, 3, v2
    s_mov_b32 exec_lo, 0x80008000
    s_mov_b32 exec_hi, 0x80008000
    buffer_store_dwordx2 v[44:45], v21, {srd(sWS)}, s{sT0} offen sc0 sc1
    s_mov_b64 exec, -1
    """)
    if opt.get("ldstamps"): stamp(3)
    a(f"""
    s_branch L_aux_st
L_hook2:
    v_mov_b32 v16, {PCNT}
    v_mov_b32 v17, 1
    v_mov_b32 v19, s{sNON}
    s_lshl_b32 s{sT0}, s{sTAU}, 7
    s_add_u32 s{sT0}, s{sT0}, {FP_OFF}
    s_bfm_b32 s{sT1}, s{sNT}, 0
    v_lshlrev_b32 v21, 7, v0
    s_waitcnt vmcnt(1)
    s_mov_b64 exec, 1
    ds_add_rtn_u32 v17, v16, v17
    s_mov_b64 exec, -1
    s_waitcnt lgkmcnt(0)
    v_readfirstlane_b32 s{sT2}, v17
    s_cmp_eq_u32 s{sT2}, 1
    s_cselect_b32 s{sT0}, s{sT0}, {OOB}
    s_mov_b32 exec_lo, s{sT1}
    s_mov_b32 exec_hi, 0
    buffer_store_dword v19, v21, {srd(sWS)}, s{sT0} offen sc0 sc1
    s_mov_b64 exec, -1
    s_cmp_eq_u32 s{sNT}, 1
    s_cbranch_scc1 {'L_aux_st' if opt.get("w2late") else 'L_hook2b'}
    """)
    lds_wait("P", PCNT, 2)
    a(f"""
L_hook2b:
    s_mul_i32 s{sT2}, s{sWO}, {32*1280}
    s_mul_i32 s{sT3}, s{sX}, 160
    s_add_u32 s{sT2}, s{sT2}, s{sT3}
    """)
    for j in range(5): a(f"s_add_u32 m0, s{sXO}, {1024*j}\nbuffer_load_dwordx4 v{104+j}, {srd(sW2)}, s{sT2} offen lds")
    if opt.get("w2late"): a(f"s_cmp_eq_u32 s{sL}, 8\ns_cbranch_scc0 L_aux_st\ns_waitcnt vmcnt(0)\ns_branch L_hook4b")
    a(f"""
    s_branch L_aux_st
L_hook4:
    """)
    if opt.get("ldstamps"): stamp(4)
    a(f"s_lshl_b32 s{sT0}, s{sCH}, 7\ns_add_u32 s{sT0}, s{sT0}, {FS_OFF}\ns_waitcnt vmcnt(0)")
    flag_store(sT0)
    if opt.get("ldstamps"): stamp(5)
    if opt.get("w2late"): a(f"s_cmp_eq_u32 s{sNT}, 1\ns_cbranch_scc1 L_aux_st\nL_hook4b:")
    for t in range(5):
        for j in range(2):
            if t < 4: a(f"ds_read_b64_tr_b16 {vr(W2R+4*t+2*j,2)}, v14 offset:{2560*j + 8*(t&1) + 64*(t>>1)}")
            else: a(f"ds_read_b64_tr_b16 {vr(W2R+4*t+2*j,2)}, v15 offset:{2560*j + 128}")
    a(f"""
    s_mul_i32 s{sT3}, s{sX}, 54
    s_add_u32 s{sT3}, s{sT3}, s{sWO}
    s_mul_i32 s{sT3}, s{sT3}, 5120
    s_add_u32 s{sT3}, s{sT3}, {W2T_OFF}
    s_cmp_ge_u32 s{sWO}, 54
    s_cselect_b32 s{sT2}, {OOB}, s{sT3}
    s_waitcnt lgkmcnt(0)
    """)
    for t in range(5):
        a(f"buffer_store_dwordx4 {vr(W2R+4*t,4)}, v{3 if t<4 else 11}, {srd(sWS)}, s{sT2} offen offset:{1024*(t%4)} sc0 sc1")
    if opt.get("w2late"): a(f"s_cmp_eq_u32 s{sL}, 8\ns_cbranch_scc1 L_hook7b")
    a(f"""
    s_branch L_aux_st
L_hook7:
    """)
    if opt.get("ldstamps"): stamp(6)
    a(f"""
    """)
    if opt.get("w2late"): a(f"s_cmp_eq_u32 s{sNT}, 1\ns_cbranch_scc1 L_aux_st\nL_hook7b:")
    a(f"""
    s_lshl_b32 s{sT0}, s{sCH}, 7
    s_add_u32 s{sT0}, s{sT0}, {FA_OFF}
    s_waitcnt vmcnt(0)
    """)
    flag_store(sT0)
    if opt.get("w2late"): a(f"s_cmp_eq_u32 s{sL}, 8\ns_cbranch_scc1 L_aux_over")
    a(f"""
    s_branch L_aux_st
L_aux_last:
    """)
    if opt.get("ldstamps"): stamp(7)
    a(f"""
    s_cmp_eq_u32 s{sNT}, 1
    s_cbranch_scc0 L_aux_nob8
    s_barrier
    s_branch {'L_hook2b' if opt.get("w2late") else 'L_aux_over'}
L_aux_nob8:
    """)
    lds_inc(XCNT)
    a("L_aux_over:")
    if opt.get("ldstamps"):
        stamp0 = stamp
        stamp = lambda k: stamp0(k) if k == 10 else None
    stamp(1)
    KVR, K0R, DR = 20, 36, 38
    a(f"""
    s_mul_i32 s{sCH}, s{sX}, 80
    s_lshl_b32 s{sT0}, s{sI}, 1
    s_mul_i32 s{sT1}, s{sI}, 6
    s_sub_u32 s{sT1}, s{sT1}, 108
    s_cmp_eq_u32 s{sNT}, 1
    s_cselect_b32 s{sT0}, s{sT0}, s{sT1}
    s_cselect_b32 s3, 0, 1
    s_add_u32 s{sCH}, s{sCH}, s{sT0}
    s_and_b32 s{sT0}, s{sW}, 1
    s_add_u32 s{sCH}, s{sCH}, s{sT0}
    s_mul_i32 s{sM0}, s{sT0}, {CONV_STRIDE}
    s_add_u32 s{sM0}, s{sM0}, {RG}
    s_mul_i32 s{sT2}, s{sW}, 2560
    s_add_u32 s{sT2}, s{sT2}, {ZST_L}
L_cprep:
    s_cmp_lt_u32 s{sW}, 2
    s_cselect_b32 s{sLD}, 1, 0
    s_cmp_eq_u32 s3, 2
    s_cselect_b32 s{sLD}, 1, s{sLD}
    s_lshl_b32 s{sT1}, s{sCH}, 1
    v_and_b32 v12, 31, v0
    v_lshlrev_b32 v12, 7, v12
    s_lshr_b32 s{sL}, s{sCH}, 6
    s_lshl_b32 s{sL}, s{sL}, 12
    s_add_u32 s{sL}, s{sL}, {FP_OFF}
    s_cmp_eq_u32 s{sLD}, 1
    s_cbranch_scc1 L_cp1
    v_lshlrev_b32 v12, 7, v0
    s_lshl_b32 s{sL}, s{sNI}, 13
    s_add_u32 s{sL}, s{sL}, {FA_OFF}
    s_cmp_eq_u32 s{sW}, 3
    s_cselect_b32 s{sL}, s{sL}, {OOB}
L_cp1:
    buffer_load_dword v16, v12, {srd(sWS)}, s{sL} offen sc1
    buffer_load_ushort v{DR}, off, {srd(sSSMD)}, s{sT1}
    v_add_u32 v15, 1, v1
    v_and_b32 v17, 3, v15
    v_mul_u32_u24 v17, 4160, v17
    v_and_b32 v15, 28, v15
    v_lshl_add_u32 v17, v15, 1, v17
    v_lshl_add_u32 v5, v2, 4, v17
    v_add_u32 v5, s{sM0}, v5
    v_lshlrev_b32 v15, 5, v1
    v_lshl_add_u32 v8, v2, 3, v15
    v_add_u32 v8, s{sT2}, v8
    v_add_u32 v9, s{sT2}, v3
    s_add_u32 s{sT2}, s{sM0}, {16640+480}
    v_sub_u32 v15, s{sT2}, v15
    v_lshl_add_u32 v6, v2, 4, v15
    v_lshlrev_b32 v17, 3, v2
    v_sub_u32 v7, v15, v17
    v_add_u32 v7, 24, v7
    s_cmp_eq_u32 s{sLD}, 1
    s_cbranch_scc0 L_ywave
    s_lshl_b32 s{sT0}, s{sCH}, 12
    buffer_load_dwordx2 {vr(K0R,2)}, off, {srd(sSSMK)}, s{sT0}
    s_add_u32 m0, s{sM0}, 32
    v_add_u32 v13, s{sM0}, v3
    """)
    for j in range(4): a(f"buffer_load_dwordx4 v3, {srd(sSSMK)}, s{sT0} offen offset:{1024*j} lds")
    poll("K", [(12, sL)], pre=6)
    a(f"s_add_u32 s{sT1}, s{sT0}, {KVT_OFF}")
    for j in range(4): a(f"buffer_load_dwordx4 {vr(KVR+4*j,4)}, v3, {srd(sWS)}, s{sT1} offen offset:{1024*j} sc1")
    a(f"""
    s_add_u32 s{sT0}, s{sM0}, 16640
    v_add_u32 v15, s{sT0}, v3
    v_mov_b32 v40, 0
    v_mov_b32 v41, 0
    v_mov_b32 v42, 0
    v_mov_b32 v43, 0
    s_mov_b64 exec, 0x3fffffff
    ds_write_b128 v15, v[40:43] offset:4096
    s_mov_b64 exec, -1
    v_lshrrev_b32 v16, 1, v0
    v_lshlrev_b32 v17, 4, v16
    v_sub_u32 v17, 48, v17
    v_and_b32 v18, 1, v0
    v_mul_u32_u24 v16, 4160, v16
    v_lshl_add_u32 v16, v18, 4, v16
    v_add_u32 v16, s{sM0}, v16
    v_cmp_eq_u32 vcc, 1, v18
    s_waitcnt vmcnt(4)
    """)
    for j in range(4): a(f"ds_read_b128 {vr(48+6*j,4)}, v13 offset:{32+1024*j}\nds_read_b64 {vr(52+6*j,2)}, v13 offset:{48+1024*j}")
    a(f"""
    v_lshlrev_b64 v[42:43], v17, {vr(K0R,2)}
    v_lshlrev_b64 v[42:43], 16, v[42:43]
    v_cndmask_b32 v42, 0, v42, vcc
    v_cndmask_b32 v43, 0, v43, vcc
    s_mov_b64 exec, 0xff
    ds_write_b128 v16, v[40:43]
    s_mov_b64 exec, -1
    """)
    for j in range(4):
        d = 48 + 6*j; e = 72 + 12*j
        a(f"s_waitcnt lgkmcnt({7 + j})" if j else "s_waitcnt lgkmcnt(7)")
        for i in range(4): a(f"v_alignbit_b32 v{e+i}, v{d+i+1}, v{d+i}, 16")
        a(f"ds_write_b128 v13, {vr(e,4)} offset:{4160+32+1024*j}")
        for i in range(4): a(f"v_mov_b32 v{e+4+i}, v{d+i+1}")
        a(f"ds_write_b128 v13, {vr(e+4,4)} offset:{2*4160+32+1024*j}")
        for i in range(3): a(f"v_mov_b32 v{e+8+i}, v{e+1+i}")
        a(f"v_alignbit_b32 v{e+11}, v{d+5}, v{d+4}, 16")
        a(f"ds_write_b128 v13, {vr(e+8,4)} offset:{3*4160+32+1024*j}")
    a("s_waitcnt vmcnt(0) lgkmcnt(8)")
    for j in range(4): a(f"ds_write_b128 v15, {vr(KVR+4*j,4)} offset:{1024*j}")
    a("s_waitcnt lgkmcnt(0)\ns_cmp_eq_u32 s3, 2\ns_cbranch_scc1 L_staged")
    lds_inc(SW, perwave=2, wait=False)
    a(f"""
    s_branch L_staged
L_ywave:
    s_cmp_eq_u32 s{sW}, 3
    s_cbranch_scc0 L_staged
    """)
    poll("P", [(12, sL)], pre=1)
    lds_inc(ACNT, wait=False)
    a(f"""
    s_cmp_lg_u32 s2, 0
    s_cbranch_scc1 L_staged
    v_lshlrev_b32 v13, 8, v0
    s_mov_b32 s{sT0}, {FA_OFF}
    s_mov_b32 s{sT1}, {FA_OFF+16384}
    s_mov_b32 s{sT2}, {FA_OFF+32768}
    s_mov_b32 s{sT3}, {FA_OFF+49152}
    """)
    poll("N", [(13, sT0), (13, sT1), (13, sT2), (13, sT3)])
    a(f"s_mov_b32 s{sT0}, {NONCE_OFF}")
    flag_store(sT0)
    a(f"L_staged:\ns_waitcnt vmcnt(0)\nv_lshlrev_b32 v{DR}, 16, v{DR}\nv_mov_b32 v{DR+1}, v{DR}")
    stamp(2)
    def burst(tag, n):
        lds_wait("A" + tag, ACNT, 1, sleep=1)
        lds_wait("X" + tag, XCNT, n, sleep=1)
        a(f"""
    s_mul_i32 s{sWO}, s{sNI}, 54
    s_sub_u32 s{sWO}, s{sWO}, s{sW}
    s_add_u32 s{sWO}, s{sWO}, 23
    s_mul_i32 s{sWO}, s{sWO}, 5120
    s_add_u32 s{sWO}, s{sWO}, {W2T_OFF}
    s_mul_i32 s{sXO}, s{sW}, 25600
    v_add_u32 v4, 4096, v3
    s_mov_b32 s{sC}, 0
L_burst{tag}:
    """)
        for o in range(2):
            a(f"s_sub_u32 m0, s{sXO}, {51200*o}\ns_add_u32 s{sT0}, s{sWO}, {10240*o}")
            for t in range(4): a(f"buffer_load_dwordx4 v3, {srd(sWS)}, s{sT0} offen offset:{1024*t} sc1 lds")
            a(f"s_add_u32 m0, s{sXO}, {4096-51200*o}\nbuffer_load_dwordx4 v4, {srd(sWS)}, s{sT0} offen sc1 lds")
        a(f"""
    s_add_u32 s{sXO}, s{sXO}, 5120
    s_add_u32 s{sWO}, s{sWO}, 20480
    s_add_u32 s{sC}, s{sC}, 1
    s_cmp_lt_u32 s{sC}, 5
    s_cbranch_scc1 L_burst{tag}
    """)
    a(f"s_or_b32 s{sT0}, s3, s{sLD}\ns_cmp_eq_u32 s{sT0}, 0\ns_cbranch_scc0 L_noburst")
    burst("0", 4)
    a("L_noburst:")
    stamp(3)
    CA, CB, CACC, UR = (40, 104), (72, 136), 168, 200
    def creads(par, off, ai, bi):
        A_, B_ = CA[par], CB[par]
        l = []
        for i, ip in zip(ai, bi):
            l.append(f"ds_read_b128 {vr(B_+4*ip,4)}, v11 offset:{off+512*ip}")
            l.append(f"ds_read_b64 {vr(A_+4*i,2)}, v10 offset:{off+512*i}")
            l.append(f"ds_read_b64 {vr(A_+4*i+2,2)}, v10 offset:{off+512*i+8}")
        return l
    def conv(tag, ds, ai, bi, tiles, goff):
        a("v_mov_b32 v10, v5\nv_mov_b32 v11, v6")
        first = creads(0, 0, ai, bi)
        for x in first[:12]: a(x)
        a("s_waitcnt lgkmcnt(3)")
        for x in first[12:]: a(x)
        for d in ds:
            for r in range(4): a(f"v_mov_b32 v{CACC+4*(7-d)+r}, 0")
        lds_wait("G" + tag, GW, 1, perwave=True, sleep=1)
        if not opt.get("noprio"): a("s_setprio 2")
        stamp(4)
        a(f"s_mov_b32 s{sC}, {3 if opt.get('x_noconv') else 0}\nL_cv{tag}:")
        for par in range(2):
            A_, B_ = CA[par], CB[par]
            nxt = creads(par ^ 1, 64*(par+1), ai, bi); nr = len(nxt)
            late = ["v_add_u32 v10, 128, v10", "v_add_u32 v11, 128, v11", f"s_add_u32 s{sC}, s{sC}, 1", f"s_cmp_lt_u32 s{sC}, 4"] if par else []
            ms = [(ip, ip - d) for ip in range(8) for d in reversed(ds) if ip - d >= 0]
            issued = 0; guar = 0
            for k, (ip, i) in enumerate(ms):
                req = 3*(list(bi).index(ip)+1)
                if req > guar:
                    n = min(14, nr - req + issued); a(f"s_waitcnt lgkmcnt({n})"); guar = nr + issued - n
                ac = vr(CACC + 4*(7-(ip-i)), 4)
                a(f"{MF} {ac}, {vr(A_+4*i,4)}, {vr(B_+4*ip,4)}, {ac}")
                while nxt and issued * (len(ms) - 2) < (k + 1) * nr: a(nxt.pop(0)); issued += 1
                if not nxt:
                    for _ in range(2):
                        if late: a(late.pop(0))
            assert not nxt and not late, (tag, par, nxt, late)
        a(f"s_cbranch_scc1 L_cv{tag}\ns_waitcnt lgkmcnt(0)")
        for k, jt in enumerate(tiles): a(f"ds_read_b64 {vr(UR+2*k,2)}, v7 offset:{512*(7-jt)}")
        stamp(5)
        if tag == "F": a("s_waitcnt lgkmcnt(0)")
        if tag == "Y":
            a(f"s_cmp_eq_u32 s3, 0\ns_cbranch_scc0 L_now{tag}\ns_waitcnt vmcnt(0)")
            lds_inc(WW, perwave=2, wait=False)
        a(f"L_now{tag}:\ns_lshl_b32 s{sT0}, s{sCH}, 12\ns_add_u32 s{sT0}, s{sT0}, {Z_OFF}\ns_waitcnt lgkmcnt(0)")
        for k, jt in enumerate(tiles):
            ac = CACC + 4*jt; u = UR + 2*k
            a(f"""
    v_and_b32 v216, 0xffff0000, v{u+1}
    v_lshlrev_b32 v217, 16, v{u+1}
    v_and_b32 v218, 0xffff0000, v{u}
    v_lshlrev_b32 v219, 16, v{u}
    v_pk_fma_f32 {vr(ac,2)}, v[216:217], {vr(DR,2)}, {vr(ac,2)}
    v_pk_fma_f32 {vr(ac+2,2)}, v[218:219], {vr(DR,2)}, {vr(ac+2,2)}
    v_cvt_pk_bf16_f32 v{u}, v{ac}, v{ac+1}
    v_cvt_pk_bf16_f32 v{u+1}, v{ac+2}, v{ac+3}
    ds_write_b64 v8, {vr(u,2)} offset:{512*k}
    """)
        a("s_waitcnt lgkmcnt(0)")
        n = len(goff)
        for j in range(n): a(f"ds_read_b128 {vr(220+4*j,4)}, v9 offset:{1024*j}")
        for j in range(n):
            a(f"s_waitcnt lgkmcnt({n-1-j})")
            if j == n-1 and len(tiles) & 1: a("s_mov_b32 exec_hi, 0")
            a(f"buffer_store_dwordx4 {vr(220+4*j,4)}, v3, {srd(sWS)}, s{sT0} offen offset:{goff[j]} sc0 sc1")
        a("s_mov_b32 exec_hi, -1")
    a(f"s_cmp_eq_u32 s{sLD}, 1\ns_cbranch_scc0 L_convY\ns_cmp_eq_u32 s3, 2\ns_cbranch_scc0 L_convX")
    conv("F", list(range(8)), range(8), range(8), list(range(8)), [0, 1024, 2048, 3072])
    lds_inc(XCNT, wait=False)
    a("s_branch L_conv_sig\nL_convX:")
    conv("X", [0, 1, 5], range(8), range(8), [6, 7, 2], [3072, 1024])
    a("s_branch L_conv_sig\nL_convY:")
    lds_wait("S", SW, 1, perwave=2, sleep=1)
    conv("Y", [2, 3, 4, 6, 7], range(6), range(2, 8), [0, 1, 3, 4, 5], [0, 1536, 2560])
    a(f"""
L_conv_sig:
    {'s_setprio 0' if not opt.get("noprio") else ''}
    s_lshl_b32 s{sT0}, s{sX}, 5
    s_add_u32 s{sT0}, s{sT0}, s{sI}
    s_lshl_b32 s{sT0}, s{sT0}, 7
    s_add_u32 s{sT0}, s{sT0}, {FZ_OFF}
    s_cmp_eq_u32 s3, 0
    s_cselect_b32 s{sCNT}, 4, 8
    v_mov_b32 v16, {ZCNT}
    v_mov_b32 v17, 1
    s_waitcnt vmcnt(0)
    s_mov_b64 exec, 1
    ds_add_rtn_u32 v17, v16, v17
    s_waitcnt lgkmcnt(0)
    s_mov_b64 exec, -1
    v_readfirstlane_b32 s{sT1}, v17
    s_add_u32 s{sT1}, s{sT1}, 1
    s_cmp_lg_u32 s{sT1}, s{sCNT}
    s_cbranch_scc1 L_conv_done
    """)
    flag_store(sT0)
    a("L_conv_done:\ns_cmp_eq_u32 s3, 2\ns_cbranch_scc1 L_g2_pro")
    a(f"s_sub_u32 s{sT0}, s3, s{sLD}\ns_cmp_eq_u32 s{sT0}, 1\ns_cbranch_scc0 L_conv_over")
    burst("1", 6)
    a("s_waitcnt vmcnt(0)")
    lds_inc(WW, perwave=2, wait=False)
    a("L_conv_over:")
    stamp(6)
    lds_wait("Z", ZCNT, f"s{sCNT}", sleep=2)
    XR, B2R, STR, ZR, ZT, PR = 20, 30, 40, 44, 56, 68
    a(f"""
    s_lshl_b32 s{sT0}, s{sMB}, 6
    s_lshl_b32 s{sT1}, s{sW}, 4
    s_add_u32 s{sL}, s{sT0}, s{sT1}
    s_mul_i32 s{sT0}, s{sL}, 1280
    s_mul_i32 s{sT2}, s{sNI}, 160
    s_add_u32 s{sT0}, s{sT0}, s{sT2}
    s_mul_i32 s{sM0}, s{sW}, 5120
    s_add_u32 s{sM0}, s{sM0}, {RG}
    """)
    for j in range(3):
        divmod10(22, 23, 21, 64*j)
        a(f"""
    v_mul_u32_u24 v22, 1280, v22
    v_lshl_add_u32 v22, v23, 4, v22
    s_add_u32 m0, s{sM0}, {2560+1024*j}
    {'s_mov_b32 exec_hi, 0' if j == 2 else ''}
    buffer_load_dwordx4 v22, {srd(sQ)}, s{sT0} offen lds
    """)
    a(f"""
    s_mov_b32 exec_hi, -1
    v_lshlrev_b32 v17, 4, v2
    v_lshlrev_b32 v18, 3, v2
    v_lshlrev_b32 v12, 3, v1
    s_lshl_b32 s{sT1}, s{sL}, 3
    s_add_u32 s{sT1}, s{sT1}, {ST_OFF}
    buffer_load_dwordx4 {vr(B2R,4)}, v17, {srd(sB2)}, s{sT2} offen
    buffer_load_dwordx4 {vr(B2R+4,4)}, v17, {srd(sB2)}, s{sT2} offen offset:64
    buffer_load_dwordx2 {vr(B2R+8,2)}, v18, {srd(sB2)}, s{sT2} offen offset:128
    s_lshl_b32 s{sT0}, s{sNI}, 12
    s_add_u32 s{sT0}, s{sT0}, {FZ_OFF}
    v_and_b32 v14, 31, v0
    v_lshlrev_b32 v14, 7, v14
    """)
    lds_wait("H", HCNT, 1, sleep=2)
    a(f"buffer_load_dwordx2 {vr(STR,2)}, v12, {srd(sWS)}, s{sT1} offen sc1")
    ZS2 = RG + 20480
    a(f"""
    v_add_u32 v15, s{sM0}, v3
    v_mul_u32_u24 v16, 160, v1
    v_add_u32 v16, s{sM0}, v16
    v_lshl_add_u32 v17, v2, 4, v16
    v_lshl_add_u32 v16, v2, 3, v16
    s_waitcnt vmcnt(0)
    ds_read_b128 {vr(XR,4)}, v17 offset:2560
    ds_read_b128 {vr(XR+4,4)}, v17 offset:{2560+64}
    ds_read_b64 {vr(XR+8,2)}, v16 offset:{2560+128}
    v_lshrrev_b32 v16, 2, v0
    v_and_b32 v17, 3, v0
    v_lshlrev_b32 v17, 3, v17
    v_add_u32 v17, {ZS2}, v17
    v_lshl_add_u32 v13, v16, 7, v17
    v_lshl_add_u32 v12, v2, 9, v13
    v_lshrrev_b32 v16, 3, v0
    v_and_b32 v17, 3, v16
    v_xor_b32 v17, s{sW}, v17
    v_lshl_add_u32 v12, v17, 5, v12
    v_and_b32 v16, 1, v16
    v_and_b32 v17, 2, v2
    v_or_b32 v17, v17, v16
    v_xor_b32 v17, s{sW}, v17
    v_lshl_add_u32 v13, v17, 5, v13
    v_mov_b32 v{STR+2}, v{STR+1}
    v_mov_b32 v{STR+3}, v{STR+1}
    v_mov_b32 v{STR+1}, v{STR}
    s_waitcnt lgkmcnt(0)
    """)
    for t in range(5):
        x = PR + 4*t; xn = 104 + 4*t
        unp(x, XR + 2*t); unp(96, B2R + 2*t)
        for h in range(2): a(f"v_pk_add_f32 {vr(xn+2*h,2)}, {vr(x+2*h,2)}, {vr(STR,2)} neg_lo:[0,1] neg_hi:[0,1]")
        for h in range(2): a(f"v_pk_add_f32 {vr(x+2*h,2)}, {vr(x+2*h,2)}, {vr(96+2*h,2)}")
        for h in range(2): a(f"v_pk_mul_f32 {vr(xn+2*h,2)}, {vr(xn+2*h,2)}, {vr(STR+2,2)}")
    a(f"s_cmp_eq_u32 s{sW}, 0\ns_cbranch_scc0 L_zwait")
    a(f"""
    v_lshrrev_b32 v21, 3, v0
    v_lshrrev_b32 v22, 3, v0
    v_and_b32 v22, 2, v22
    v_and_b32 v23, 7, v0
    v_xor_b32 v23, v23, v22
    v_lshlrev_b32 v21, 12, v21
    v_lshl_add_u32 v21, v23, 4, v21
    v_xor_b32 v22, 64, v21
    s_mul_i32 s{sT2}, s{sNI}, {80*4096}
    s_lshl_b32 s{sT1}, s{sMB}, 7
    s_add_u32 s{sT2}, s{sT2}, s{sT1}
    s_add_u32 s{sT2}, s{sT2}, {Z_OFF}
    """)
    poll("Z", [(14, sT0)], sleep=2)
    stamp(7)
    for q in range(10):
        a(f"s_mov_b32 m0, {ZS2+1024*q}\ns_add_u32 s{sT1}, s{sT2}, {8*4096*q}\nbuffer_load_dwordx4 v{22 if q & 1 else 21}, {srd(sWS)}, s{sT1} offen sc1 lds")
    a("s_waitcnt vmcnt(0)")
    lds_inc(ZRDY, wait=False)
    a("s_branch L_zready\nL_zwait:")
    lds_wait("ZR", ZRDY, 1, sleep=1)
    stamp(7)
    a("L_zready:")
    for t in range(5):
        if t < 4: a(f"ds_read_b64_tr_b16 {vr(ZT+2*t,2)}, v12 offset:{128*(32*(t>>1)+4*(t&1))}")
        else: a(f"ds_read_b64_tr_b16 {vr(ZT+2*t,2)}, v13 offset:{128*64}")
    a("s_waitcnt lgkmcnt(0)")
    for t in range(5):
        x = PR + 4*t; xn = 104 + 4*t
        unp(92, ZT + 2*t)
        for h in range(2): a(f"v_pk_fma_f32 {vr(x+2*h,2)}, {vr(xn+2*h,2)}, {vr(92+2*h,2)}, {vr(x+2*h,2)}")
        a(f"ds_write_b128 v15, {vr(x,4)} offset:{1024*t}")
    a("s_waitcnt lgkmcnt(0)")
    stamp(8)
    a(f"s_barrier\ns_add_u32 s{sW}, s{sW}, 4")
    stamp(9)
    a("L_fin:")
    dbl = [k for k in opt if k.startswith("dbl:")]
    if dbl:
        _, i, j, mult = dbl[0].split(":"); i, j, mult = int(i), int(j), int(mult)
        a("s_waitcnt vmcnt(0)")
        stamp(10)
        a(f"""
    s_waitcnt lgkmcnt(0)
    s_cmp_ge_u32 s{sW}, 4
    s_cbranch_scc1 L_end
    s_cmp_lg_u32 s{sNT}, 1
    s_cbranch_scc1 L_end
    s_sub_u32 s{sT0}, s{sTS+2*j}, s{sTS+2*i}
    s_mul_i32 s{sT0}, s{sT0}, {mult}
    s_min_u32 s{sT0}, s{sT0}, 100000
L_dbl:
    s_memrealtime s[{sT4}:{sT5}]
    s_waitcnt lgkmcnt(0)
    s_sub_u32 s{sT1}, s{sT4}, s{sTS+20}
    s_cmp_lt_u32 s{sT1}, s{sT0}
    s_cbranch_scc1 L_dbl
    """)
    elif stamps:
        a("s_waitcnt vmcnt(0)")
        stamp(10)
        a("s_waitcnt lgkmcnt(0)")
        for k in range(12):
            a(f"v_mov_b32 v{40+k}, s{sTS+2*k}" if k < 11 else f"v_mov_b32 v{40+k}, 0")
        a(f"""
    s_lshl_b32 s{sT0}, s2, 3
    s_add_u32 s{sT0}, s{sT0}, s{sW}
    s_lshl_b32 s{sT0}, s{sT0}, 6
    s_add_u32 s{sT0}, s{sT0}, {TS_OFF}
    s_mov_b64 exec, 1
    buffer_store_dwordx4 v[40:43], off, {srd(sWS)}, s{sT0}
    buffer_store_dwordx4 v[44:47], off, {srd(sWS)}, s{sT0} offset:16
    buffer_store_dwordx4 v[48:51], off, {srd(sWS)}, s{sT0} offset:32
    """)
    a("""
L_end:
    s_endpgm
.section .rodata,"a"
.p2align 6
""")
    def add_nt(srds):
        out = []
        for x in a.l:
            if "buffer_load" in x and any(srd(b) in x for b in srds) and " nt" not in x:
                x = x.replace(" lds", " nt lds") if x.rstrip().endswith(" lds") else x + " nt"
            out.append(x)
        a.l = out
    for fl, txt in (("outsc", " sc0 sc1"), ("outnt", " nt"), ("outsc1", " sc1")):
        if opt.get(fl): a.l = [x + txt if ("buffer_store" in x and srd(sOUT) in x) else x for x in a.l]
    if opt.get("ntkv"): add_nt([sK, sV])
    if opt.get("nt1"): add_nt([sK, sV, sW2, sSSMK])
    if opt.get("ntx"): add_nt([sQ])
    if opt.get("ntw"): add_nt([sW1])
    a(kd(NAME, 256, accum=256))
    return a.text(dopad=True), a

if __name__ == "__main__":
    out = sys.argv[1] if len(sys.argv) > 1 else "k.s"
    opt = {k: 1 for k in sys.argv[2:]}
    t, a = gen(stamps=bool(opt.get("stamps")), opt=opt)
    open(out, "w").write(t)
    print("nops inserted:", a.nops, "lines", len(t.split("\n")))
```
